```python
import torch

def _softmax(x, axis=-1):
    return torch.softmax(x, dim=axis)

def _gelu(x):
    return torch.nn.functional.gelu(x, approximate='tanh')

def _silu(x):
    return torch.nn.functional.silu(x)

def _sigmoid(x):
    return torch.sigmoid(x)

def _layernorm(x, axis=-1, eps=1e-05):
    m = x.mean(dim=axis, keepdim=True)
    v = x.var(dim=axis, keepdim=True, unbiased=False)
    return (x - m) / torch.sqrt(v + eps)

def _scatter_add(tgt, idx, src, axis=0):
    return tgt.clone().index_add_(axis, idx, src)

def _segment_sum(src, seg, n):
    out = torch.zeros((n,) + src.shape[1:], dtype=src.dtype)
    return out.index_add_(0, seg, src)

def _pad(x, pw):
    flat = tuple((v for pair in reversed(pw) for v in pair))
    return torch.nn.functional.pad(x, flat)
kernel_name = 'concat_heads__memory_aug_recurrent_mem_tr__ssm_conv_s5__prompt'

def setup_inputs():

    _w = lambda a: (lambda t: t.to(torch.bfloat16) if t.is_floating_point() else t)(torch.as_tensor(a))

    def _A_setup():
        B, S, Dm = (1, 2048, 512)
        H, Dh = (32, 128)
        M, seg = (8, 32)
        seg = min(seg, S)
        S = S // seg * seg
        return {'x': _w((lambda *s: torch.randn(*s, dtype=torch.bfloat16) * 0.05)(B, S, Dm)), 'mem0': _w((lambda *s: torch.randn(*s, dtype=torch.bfloat16) * 0.8)(B, M, Dm)), 'Wq': _w((lambda *s: torch.randn(*s, dtype=torch.bfloat16) * 1.6)(Dm, H, Dh) * Dm ** (-0.5)), 'Wk': _w((lambda *s: torch.randn(*s, dtype=torch.bfloat16) * 1.6)(Dm, H, Dh) * Dm ** (-0.5)), 'Wv': _w((lambda *s: torch.randn(*s, dtype=torch.bfloat16) * 0.8)(Dm, H, Dh) * Dm ** (-0.5)), 'Wo': _w((lambda *s: torch.randn(*s, dtype=torch.bfloat16) * 0.8)(H, Dh, Dm) * (H * Dh) ** (-0.5)), 'seg_len': seg}
    _A_in = _A_setup()

    def _B_setup():
        B, S, D = (1, 2048, 512)
        P = D
        Lambda_re = -0.5 * (lambda _x: torch.exp(torch.as_tensor(_x)))((lambda *s: torch.randn(*s, dtype=torch.bfloat16) * 0.8)(P))
        Lambda_im = (lambda *s: torch.randn(*s, dtype=torch.bfloat16) * 0.8)(P) * 1.0
        B_re = (lambda *s: torch.randn(*s, dtype=torch.bfloat16) * 0.8)(P, D) * D ** (-0.5)
        B_im = (lambda *s: torch.randn(*s, dtype=torch.bfloat16) * 0.8)(P, D) * D ** (-0.5)
        C_re = (lambda *s: torch.randn(*s, dtype=torch.bfloat16) * 0.8)(D, P) * P ** (-0.5)
        C_im = (lambda *s: torch.randn(*s, dtype=torch.bfloat16) * 0.8)(D, P) * P ** (-0.5)
        log_dt = (lambda *s: torch.randn(*s, dtype=torch.bfloat16) * 0.8)(P) * 0.3 - 2.0
        Dskip = (lambda *s: torch.randn(*s, dtype=torch.bfloat16) * 0.8)(D)
        return {'x': _w((lambda *s: torch.randn(*s, dtype=torch.bfloat16) * 0.05)(B, S, D)), 'Lambda_re': _w(Lambda_re), 'Lambda_im': _w(Lambda_im), 'B_re': _w(B_re), 'B_im': _w(B_im), 'C_re': _w(C_re), 'C_im': _w(C_im), 'log_dt': _w(log_dt), 'Dskip': _w(Dskip)}
    _B_in = _B_setup()
    return {'A_x': _A_in['x'], 'A_mem0': _A_in['mem0'], 'A_Wq': _A_in['Wq'], 'A_Wk': _A_in['Wk'], 'A_Wv': _A_in['Wv'], 'A_Wo': _A_in['Wo'], 'A_seg_len': _A_in['seg_len'], 'B_x': _B_in['x'], 'B_Lambda_re': _B_in['Lambda_re'], 'B_Lambda_im': _B_in['Lambda_im'], 'B_B_re': _B_in['B_re'], 'B_B_im': _B_in['B_im'], 'B_C_re': _B_in['C_re'], 'B_C_im': _B_in['C_im'], 'B_log_dt': _B_in['log_dt'], 'B_Dskip': _B_in['Dskip']}

def reference(A_x, A_mem0, A_Wq, A_Wk, A_Wv, A_Wo, A_seg_len, B_x, B_Lambda_re, B_Lambda_im, B_B_re, B_B_im, B_C_re, B_C_im, B_log_dt, B_Dskip):

    def _A_ref(x, mem0, Wq, Wk, Wv, Wo, seg_len):
        B, S, Dm = x.shape
        H, Dh = (Wq.shape[1], Wq.shape[2])
        M = mem0.shape[1]
        scale = Dh ** (-0.5)
        n_seg = S // seg_len
        L = M + seg_len
        idx = torch.arange(L)
        mask = (idx[:, None] < M) | (idx[:, None] >= idx[None, :])
        mem = mem0
        outs = []
        for s in range(n_seg):
            xs = x[:, s * seg_len:(s + 1) * seg_len, :].clone()
            h = torch.concatenate([mem, xs], axis=1)
            q = torch.einsum('btd,dhe->bhte', h, Wq)
            k = torch.einsum('btd,dhe->bhte', h, Wk)
            v = torch.einsum('btd,dhe->bhte', h, Wv)
            scores = torch.einsum('bhqe,bhke->bhqk', q, k) * scale
            scores = torch.where(mask[None, None], scores, -1000000000.0)
            p = _softmax(scores, axis=-1)
            o = torch.einsum('bhqk,bhke->bhqe', p, v)
            o = torch.einsum('bhte,hed->btd', o, Wo)
            mem = o[:, :M, :].clone()
            outs.append(o[:, M:, :])
        return torch.concatenate(outs, axis=1)

    def _B_ref(x, Lambda_re, Lambda_im, B_re, B_im, C_re, C_im, log_dt, Dskip):
        Bsz, L, H = x.shape
        Lam = Lambda_re + 1j * Lambda_im
        Bmat = B_re + 1j * B_im
        Cmat = C_re + 1j * C_im
        dt = torch.exp(log_dt)
        Lam_bar = torch.exp(dt * Lam)
        B_bar = ((Lam_bar - 1.0) / Lam)[:, None] * Bmat
        Bu = torch.einsum('bld,pd->blp', x + 0j, B_bar)
        h = torch.zeros_like(Bu[:, 0, :])
        hs = []
        for t in range(L):
            h = Lam_bar[None, :] * h + Bu[:, t, :]
            hs.append(h)
        hseq = torch.stack(hs, 1)
        y = 2.0 * torch.einsum('blp,dp->bld', hseq, Cmat).real + x * Dskip[None, None, :]
        return y
    a = _A_ref(A_x, A_mem0, A_Wq, A_Wk, A_Wv, A_Wo, A_seg_len)
    b = _B_ref(B_x, B_Lambda_re, B_Lambda_im, B_B_re, B_B_im, B_C_re, B_C_im, B_log_dt, B_Dskip)
    return torch.concatenate([a, b], axis=-1)
```

```python
import re

REG_RE = re.compile(r'^(-?)(\|?)([vas])(?:(\d+)|\[(\d+):(\d+)\])(\|?)$')

def parse_reg(tok):
    t = tok.strip()
    t = re.sub(r'^(neg|abs)\((.*)\)$', r'\2', t)
    m = REG_RE.match(t)
    if m:
        f = m.group(3)
        if m.group(4) is not None:
            return [(f, int(m.group(4)))]
        return [(f, i) for i in range(int(m.group(5)), int(m.group(6)) + 1)]
    if t == 'vcc': return [('s', 106), ('s', 107)]
    if t == 'vcc_lo': return [('s', 106)]
    if t == 'vcc_hi': return [('s', 107)]
    if t == 'exec': return [('s', 126), ('s', 127)]
    if t == 'm0': return [('s', 124)]
    return None

def split_ops(s):
    ops, cur, depth = [], '', 0
    for ch in s:
        if ch in '[(': depth += 1
        if ch in '])': depth -= 1
        if ch == ',' and depth == 0:
            ops.append(cur.strip()); cur = ''
        else:
            cur += ch
    if cur.strip(): ops.append(cur.strip())
    return ops

TRANS = ('v_exp_f32', 'v_log_f32', 'v_rcp_f32', 'v_rsq_f32', 'v_sqrt_f32', 'v_sin_f32', 'v_cos_f32', 'v_rcp_iflag_f32')

class Ins:
    __slots__ = ('text', 'mn', 'ops', 'mods', 'rd', 'wr', 'kind', 'passes', 'srcC', 'srcAB', 'dreg', 'comment', 'lds_dma', 'width')
    def __init__(self, text):
        self.text = text
        t = text.split(';')[0].split('//')[0].strip()
        parts = t.split(None, 1)
        self.mn = parts[0]
        rest = parts[1] if len(parts) > 1 else ''
        ops = split_ops(rest)
        mods = []
        cl = []
        for o in ops:
            w = o.split()
            cl.append(w[0]); mods += w[1:]
        self.ops, self.mods = cl, mods
        self.rd, self.wr = [], []
        self.kind = None; self.passes = 0; self.srcC = []; self.srcAB = []; self.dreg = []; self.lds_dma = False; self.width = 0
        self.classify()
    def R(self, i):
        if i >= len(self.ops): return []
        return parse_reg(self.ops[i]) or []
    def classify(self):
        mn, n = self.mn, len(self.ops)
        allr = lambda a, b=None: [r for i in range(a, b if b is not None else n) for r in self.R(i)]
        if mn.startswith('v_mfma') or mn.startswith('v_smfmac'):
            self.kind = 'mfma'
            self.passes = 8 if '32x32' in mn else 4
            self.dreg = self.R(0); self.wr = list(self.dreg)
            if mn.startswith('v_smfmac'):
                self.srcC = list(self.dreg); self.srcAB = self.R(1) + self.R(2) + self.R(3)
            else:
                self.srcC = self.R(3); self.srcAB = self.R(1) + self.R(2)
            self.rd = self.srcAB + self.srcC
        elif mn.startswith('v_'):
            self.kind = 'valu'
            if mn.startswith('v_cmp'):
                self.wr = self.R(0); self.rd = allr(1)
                if mn.startswith('v_cmpx'): self.wr += [('s', 126), ('s', 127)]
            elif mn.startswith('v_permlane') and 'swap' in mn:
                self.wr = self.R(0) + self.R(1); self.rd = list(self.wr)
            elif mn.startswith(('v_add_co', 'v_sub_co', 'v_addc_co', 'v_subb_co', 'v_subrev_co')):
                self.wr = self.R(0) + self.R(1); self.rd = allr(2)
            elif mn.startswith(('v_readfirstlane', 'v_readlane')):
                self.wr = self.R(0); self.rd = allr(1)
            elif mn.startswith(('v_fmac', 'v_pk_fmac', 'v_writelane')):
                self.wr = self.R(0); self.rd = allr(0)
            elif mn.startswith('v_nop'):
                pass
            else:
                self.wr = self.R(0); self.rd = allr(1)
                if mn.startswith('v_cndmask') and n == 3: self.rd += [('s', 106), ('s', 107)]
            if any(m.startswith(('row_', 'quad_perm', 'wave_', 'row_bcast')) for m in self.mods):
                self.kind = 'valu'
        elif mn.startswith('ds_'):
            self.kind = 'ds'
            if mn.startswith(('ds_read', 'ds_bpermute', 'ds_permute', 'ds_swizzle')):
                self.wr = self.R(0); self.rd = allr(1)
            else:
                self.rd = allr(0)
        elif mn.startswith(('buffer_', 'global_')):
            self.kind = 'vmem'
            w = re.search(r'x(\d)$', mn)
            self.width = int(w.group(1)) if w else 1
            if mn.startswith('buffer_load') and 'lds' in self.mods:
                self.lds_dma = True; self.rd = allr(0) + [('s', 124)]
            elif mn.startswith('global_load_lds'):
                self.lds_dma = True; self.rd = allr(0) + [('s', 124)]
            elif '_load' in mn:
                self.wr = self.R(0); self.rd = allr(1)
            elif '_atomic' in mn:
                self.rd = allr(0)
                if 'sc0' in self.mods: self.wr = self.R(0) if mn.startswith('buffer') else []
                if 'sc0' in self.mods and mn.startswith('global'):
                    self.wr = self.R(0); self.rd = allr(1)
            elif mn in ('buffer_wbl2', 'buffer_inv'):
                pass
            else:
                self.rd = allr(0)
        elif mn.startswith('s_'):
            self.kind = 'salu'
            if mn.startswith(('s_load', 's_buffer_load')):
                self.kind = 'smem'; self.wr = self.R(0); self.rd = allr(1)
            elif mn in ('s_memtime', 's_memrealtime'):
                self.kind = 'smem'; self.wr = self.R(0)
            elif mn.startswith(('s_cmp', 's_bitcmp', 's_cbranch', 's_branch', 's_waitcnt', 's_barrier', 's_nop', 's_endpgm', 's_setprio', 's_sleep')):
                self.rd = allr(0)
                if mn in ('s_cbranch_vccz', 's_cbranch_vccnz'): self.rd += [('s', 106), ('s', 107)]
                if mn in ('s_cbranch_execz', 's_cbranch_execnz'): self.rd += [('s', 126), ('s', 127)]
            elif 'saveexec' in mn:
                self.wr = self.R(0) + [('s', 126), ('s', 127)]; self.rd = allr(1) + [('s', 126), ('s', 127)]
            else:
                self.wr = self.R(0); self.rd = allr(1)
                if mn.startswith(('s_addk', 's_mulk', 's_cmov')): self.rd += self.R(0)
        else:
            raise ValueError('unknown instr: ' + self.text)
    @property
    def is_dpp(self):
        return any(m.startswith(('row_', 'quad_perm', 'wave_')) for m in self.mods)
    @property
    def nstates(self):
        if self.mn == 's_nop': return int(self.ops[0], 0) + 1
        return 1

def need_states(p, c):
    n = 0
    pw = set(p.wr); cr = set(c.rd); cw = set(c.wr)
    vfile = lambda S: {r for r in S if r[0] in 'va'}
    sfile = lambda S: {r for r in S if r[0] == 's'}
    if p.kind == 'valu':
        vw = vfile(pw); sw = sfile(pw)
        if c.kind == 'mfma' and vw & cr: n = max(n, 2)
        if c.kind == 'valu':
            if vw & cr:
                if c.mn.startswith('v_permlane'): n = max(n, 2)
                if c.is_dpp: n = max(n, 2)
                if c.mn.startswith(('v_readlane', 'v_readfirstlane')): n = max(n, 1)
                if p.mn.replace('_e32', '').replace('_e64', '') in TRANS and c.mn.replace('_e32', '').replace('_e64', '') not in TRANS: n = max(n, 1)
                if any(m.startswith(('op_sel', 'dst_sel')) for m in p.mods): n = max(n, 1)
            if sw & cr:
                n = max(n, 4 if c.mn.startswith(('v_readlane', 'v_writelane')) else 2)
            if ('s', 126) in sw:
                n = max(n, 5 if c.is_dpp else (4 if c.mn.startswith(('v_readlane', 'v_readfirstlane', 'v_writelane', 'v_permlane')) else 0))
        if c.kind == 'mfma' and ('s', 126) in sw: n = max(n, 4)
        if c.kind == 'vmem' and sw & cr: n = max(n, 5)
        if c.kind in ('salu', 'smem') and sw & cr: n = max(n, 1)
    if p.kind == 'mfma':
        D = set(p.dreg)
        far = {4: 8, 8: 12}[p.passes]
        if c.kind == 'mfma':
            if D & set(c.srcAB): n = max(n, far)
            if D & set(c.srcC):
                if p.dreg == c.srcC and p.mn == c.mn: pass
                else: n = max(n, {4: 6, 8: 10}[p.passes])
            if D & set(c.dreg) and not (p.dreg == c.dreg):
                n = max(n, {4: 6, 8: 10}[p.passes])
            if p.dreg == c.dreg and not (D & set(c.srcC)):
                n = max(n, 0)
        elif c.kind == 'valu':
            if D & (cr | cw): n = max(n, far)
            if set(p.srcC) & cw: n = max(n, {4: 3, 8: 7}[p.passes])
        elif c.kind in ('vmem', 'ds'):
            if D & (cr | cw): n = max(n, far)
    if p.kind == 'vmem' and ('store' in p.mn or 'atomic' in p.mn) and p.width >= 3:
        data = set(p.R(0)) if p.mn.startswith('buffer') else set(p.R(1))
        if data & cw: n = max(n, 2 if c.kind == 'valu' else 1)
    if p.kind == 'salu' and ('s', 124) in pw:
        if c.lds_dma or c.mn.startswith('s_sendmsg'): n = max(n, 1)
    return n

class Asm:
    def __init__(self):
        self.time_model = True
        self.items = []
    def __call__(self, text):
        for line in text.split('\n'):
            s = line.strip()
            if not s or s.startswith(';'): continue
            if s.endswith(':'):
                self.items.append(('l', s[:-1]))
            elif s.startswith('.'):
                self.items.append(('r', s))
            elif s.startswith('@'):
                self.items.append(('d', s[1:]))
            else:
                self.items.append(('i', Ins(s)))
    def label(self, name): self.items.append(('l', name))
    def raw(self, text): self.items.append(('r', text))

    def insert_waits(self):
        out = []
        vm, lg = [], []
        marks = {}
        def wait(v=None, l=None):
            parts = []
            if v is not None: parts.append(f'vmcnt({min(v,63)})')
            if l is not None: parts.append(f'lgkmcnt({min(l,15)})')
            out.append(('i', Ins('s_waitcnt ' + ' '.join(parts))))
        def trim(q, k):
            return q[len(q) - k:] if (k and len(q) > k) else ([] if k == 0 else q)
        def apply_wait(ins):
            nonlocal vm, lg
            t = ins.text
            m = re.search(r'vmcnt\((\d+)\)', t)
            if m: vm = trim(vm, int(m.group(1)))
            m = re.search(r'lgkmcnt\((\d+)\)', t)
            if m:
                k = int(m.group(1))
                if k == 0 or not any(e[1] for e in lg): lg = trim(lg, k)
        def younger(q):
            d = {}
            for i, e in enumerate(q):
                for r in e[0]: d[r] = len(q) - 1 - i
            return d
        for it in self.items:
            if it[0] == 'd':
                d = it[1].split()
                if d[0] == 'assume_drained': vm, lg = [], []
                elif d[0] == 'assume_vm_empty': vm = []
                elif d[0] == 'assume_lg_empty': lg = []
                elif d[0] == 'wait_ds_writes':
                    idx = max([i for i, e in enumerate(lg) if e[2]], default=-1)
                    if idx >= 0:
                        n = len(lg) - 1 - idx
                        wait(None, n); lg = trim(lg, min(n, 15))
                elif d[0] == 'check_drained':
                    assert not any(e[0] for e in vm) and not any(e[0] for e in lg), f'pending loads at check_drained: vm={vm} lg={lg}'
                elif d[0] == 'loop_begin':
                    marks[d[1]] = (list(vm), list(lg))
                elif d[0] == 'loop_end':
                    v0, l0 = marks[d[1]]
                    for (qe, q0, nm) in ((vm, v0, 'vm'), (lg, l0, 'lgkm')):
                        ye, y0 = younger(qe), younger(q0)
                        for r, n in ye.items():
                            assert r in y0, f'loop {d[1]}: {nm} pending {r} at end but not at entry'
                            assert n >= y0[r], f'loop {d[1]}: {nm} pending {r}: younger at end {n} < at entry {y0[r]}'
                out.append(it); continue
            if it[0] != 'i':
                out.append(it); continue
            ins = it[1]
            if ins.mn == 's_waitcnt':
                apply_wait(ins); out.append(it); continue
            touch = set(ins.rd) | set(ins.wr)
            nv = nl = None
            for idx, q in enumerate(vm):
                if q[0] & touch: nv = len(vm) - 1 - idx
            for idx, q in enumerate(lg):
                if q[0] & touch: nl = len(lg) - 1 - idx
            if nl is not None and any(e[1] for e in lg): nl = 0
            if nv is not None or nl is not None:
                wait(nv, nl)
                if nv is not None: vm = trim(vm, min(nv, 63))
                if nl is not None: lg = trim(lg, min(nl, 15))
            if ins.kind == 'vmem' and ins.mn not in ('buffer_inv',):
                vm.append((set(ins.wr), False, False))
            elif ins.kind == 'ds':
                lg.append((set(ins.wr), False, ins.mn.startswith('ds_write')))
            elif ins.kind == 'smem':
                lg.append((set(ins.wr), True, False))
            out.append(it)
        self.items = out

    def fix_smem(self):
        pass

    def pad_hazards(self):
        items = self.items
        labels = {}
        def build_index():
            labels.clear()
            for i, it in enumerate(items):
                if it[0] == 'l': labels[it[1]] = i
        def required_nops(hist, ins):
            dist = 0; need = 0
            for k in range(len(hist) - 1, -1, -1):
                p = hist[k]
                n = need_states(p, ins)
                if n > 0:
                    d = dist
                    if p.kind == 'mfma' and self.time_model:
                        t = 0; free = p.passes
                        for q in hist[k+1:]:
                            if q.kind == 'mfma':
                                t = max(t + 1, free); free = t + q.passes
                            else:
                                t += q.nstates
                        tc = t + 1
                        if ins.kind == 'mfma': tc = max(tc, free)
                        d = max(d, tc - 1)
                    if n > d: need = max(need, n - d)
                dist += p.nstates
                if dist >= 24: break
            return need
        out = []; hist = []
        for it in items:
            if it[0] == 'i':
                ins = it[1]
                n = required_nops(hist, ins)
                while n > 0:
                    k = min(n, 16)
                    nop = Ins(f's_nop {k-1}')
                    out.append(('i', nop)); hist.append(nop); n -= k
                out.append(it); hist.append(ins)
                if ins.mn in ('s_branch', 's_endpgm'): hist = []
                hist = hist[-32:]
            else:
                out.append(it)
        self.items = items = out
        changed = True; guard = 0
        while changed:
            changed = False; guard += 1
            assert guard < 200
            build_index()
            for i, it in enumerate(items):
                if it[0] == 'i' and it[1].mn.startswith(('s_cbranch', 's_branch')):
                    tgt = it[1].ops[0]
                    if tgt not in labels: continue
                    hist = [x[1] for x in items[max(0, i - 40):i + 1] if x[0] == 'i']
                    j = labels[tgt] + 1
                    h = list(hist); seen = 0
                    while j < len(items) and seen < 24:
                        x = items[j]
                        if x[0] == 'i':
                            n = required_nops(h, x[1])
                            if n > 0:
                                items.insert(labels[tgt] + 1, ('i', Ins(f's_nop {min(n,16)-1}')))
                                changed = True
                                break
                            h.append(x[1]); seen += x[1].nstates
                            if x[1].mn in ('s_branch', 's_endpgm'): break
                        j += 1
                    if changed: break
    def text(self):
        o = []
        for k, v in self.items:
            if k == 'i': o.append('    ' + v.text)
            elif k == 'l': o.append(v + ':')
            elif k == 'r': o.append(v)
        return '\n'.join(o) + '\n'
    def finalize(self):
        self.insert_waits()
        self.pad_hazards()
        return self.text()
    def count(self):
        return sum(1 for k, _ in self.items if k == 'i')
```

```python
from asmlib import Asm
import layout as L

T, L16, AGP, QW, QR, OW, OR_, RSW, AGW, WL, IDX, RSR = range(12)
SEL = 12
AO = 16
X = 24
AQ, AK, AV = 40, 48, 56
POOL = 64
WKR = 128
WOR = 192
S_WS = 8
sH, sWV, sSTEP, sAGR, sAGWR, sAGRST = 16, 17, 18, 19, 20, 21
sRSW = 22
sONES = 24
sKX, sVX, sKM, sVM = 28, 29, 30, 31
sC = 36
sSPIN = 37
sT0, sT1, sT2, sT3 = 38, 39, 40, 41
sPW = 42
sMEMS = 46
sSAVE = 48
sPLO, sPHI = 50, 51
sDBG = 52
sLKX, sLVX = 33, 34
sKMO = 32
sRST = 26
sRSR = 60
STAMP0 = 70

CFG = dict(stamps=False, stamp_step=40, dbg_mems=True, nsteps=64, noreset=False)
STAMPS = []

def vr(a, n=1): return f'v{a}' if n == 1 else f'v[{a}:{a+n-1}]'
def ar(a, n=1): return f'a{a}' if n == 1 else f'a[{a}:{a+n-1}]'
def sr(a, n=1): return f's{a}' if n == 1 else f's[{a}:{a+n-1}]'

def wq(sg, t): return ar((sg*2+t)*8, 8)
def wv(sg, t): return ar(128+(sg*2+t)*8, 8)
def wk(sg, t):
    return vr(POOL+(sg*2+t)*8, 8) if sg < 4 else vr(WKR+((sg-4)*2+t)*8, 8)
WO_SLOT = {0: 48, 4: 56, 1: 24, 5: 32, 2: 40, 6: 0, 3: 8, 7: 16}
def wo(ko, t):
    return vr(POOL+WO_SLOT[ko*4+t], 8) if t < 4 else vr(WOR+(ko*4+t-4)*8, 8)
def oacc(t):
    return 40+4*t if t < 6 else X+4*(t-6)

WS = sr(S_WS, 4)

def srd(a, dst, argoff, nbytes):
    a(f'''
    s_load_dwordx2 {sr(dst,2)}, s[0:1], {argoff}
    s_waitcnt lgkmcnt(0)
    s_and_b32 {sr(dst+1)}, {sr(dst+1)}, 0xffff
    s_mov_b32 {sr(dst+2)}, {nbytes}
    s_mov_b32 {sr(dst+3)}, 0x20000
    ''')

def lane(a, dst):
    a(f'v_lshrrev_b32 v{dst}, 4, v{L16}')

def stamp(a, name):
    if not CFG['stamps']: return
    if CFG.get('only') and name not in CFG['only']: return
    i = len(STAMPS); STAMPS.append(name)
    assert STAMP0+1+2*i <= 101
    a.raw(f'    {"s_memrealtime" if CFG.get("rt") else "s_memtime"} s[{STAMP0+2*i}:{STAMP0+1+2*i}]')

def dump_stamps(a):
    if not CFG['stamps']: return
    n = len(STAMPS)
    a(f'''
    s_cmp_lg_u32 s{sSTEP}, {CFG['stamp_step']}
    s_cbranch_scc1 C_nostamp
    s_waitcnt lgkmcnt(0)
    s_lshl_b32 s{sT0}, s{sH}, 2
    s_add_u32 s{sT0}, s{sT0}, s{sWV}
    s_lshl_b32 s{sT0}, s{sT0}, 7
    s_add_u32 s{sT0}, s{sT0}, {L.FLAGS + 0x10000}
    v_mov_b32 v{X}, 0
    ''')
    for i in range(n):
        a(f'v_mov_b32 v{T}, s{STAMP0+2*i}')
        a(f'buffer_store_dword v{T}, v{X}, {WS}, s{sT0} offen offset:{4*i}')
    a.label('C_nostamp')

DUMPS = []
def dump(a, name, regs):
    if not CFG.get('dump'): return
    a(f'''
    s_lshl_b32 s{sT2}, s{sH}, 2
    s_add_u32 s{sT2}, s{sT2}, s{sWV}
    s_lshl_b32 s{sT2}, s{sT2}, 14
    s_add_u32 s{sT2}, s{sT2}, {L.FLAGS + 0x100000}
    ''')
    for r in regs:
        i = len(DUMPS); DUMPS.append(f'{name}{r}')
        a(f's_add_u32 s{sT3}, s{sT2}, {i*256}')
        a(f'buffer_store_dword v{r}, v{RSW}, {WS}, s{sT3} offen')

def emit_setup(a):
    T2 = X
    a(f'''
    v_and_b32 v{T2}, 63, v0
    v_lshlrev_b32 v{L16}, 4, v{T2}
    s_lshl_b32 s{sT0}, s{sWV}, 11
    v_add_u32 v{AGP}, s{sT0}, v{L16}
    ''')
    a(f'''
    v_lshrrev_b32 v{T}, 4, v{T2}
    v_mul_u32_u24 v{QW}, {2*L.QROW}, v{T}
    v_and_b32 v{T}, 15, v{T2}
    v_lshl_add_u32 v{QW}, v{T}, 3, v{QW}
    s_lshr_b32 s{sT0}, s{sWV}, 1
    s_lshl_b32 s{sT0}, s{sT0}, 7
    s_and_b32 s{sT1}, s{sWV}, 1
    s_lshl_b32 s{sT1}, s{sT1}, 2
    s_add_u32 s{sT0}, s{sT0}, s{sT1}
    v_add_u32 v{QW}, s{sT0}, v{QW}
    ''')
    a(f'''
    v_and_b32 v{T}, 7, v{T2}
    v_mul_u32_u24 v{QR}, {L.QROW}, v{T}
    v_lshrrev_b32 v{T}, 4, v{T2}
    v_lshl_add_u32 v{QR}, v{T}, 5, v{QR}
    ''')
    a(f'''
    s_add_u32 s{sT1}, s{sT0}, {L.L_O}
    v_add_u32 v{OW}, s{sT1}, v{QR}
    ''')
    a(f'''
    v_bfe_u32 v{T}, v{T2}, 2, 2
    v_lshlrev_b32 v{T}, 1, v{T}
    v_and_b32 v{OR_}, 1, v{T2}
    v_add_u32 v{T}, v{T}, v{OR_}
    v_mul_u32_u24 v{OR_}, {L.QROW}, v{T}
    v_lshrrev_b32 v{T}, 4, v{T2}
    v_lshl_add_u32 v{OR_}, v{T}, 5, v{OR_}
    v_bfe_u32 v{T}, v{T2}, 1, 1
    v_lshl_add_u32 v{OR_}, v{T}, 4, v{OR_}
    ''')
    a(f'''
    v_lshlrev_b32 v{RSW}, 2, v{T2}
    v_lshrrev_b32 v{T}, 4, v{T2}
    v_mul_u32_u24 v{RSR}, {L.RSH}, v{T}
    v_and_b32 v{T}, 15, v{T2}
    v_lshl_add_u32 v{RSR}, v{T}, 4, v{RSR}
    ''')
    a(f'''
    v_lshrrev_b32 v{T}, 4, v{T2}
    v_lshlrev_b32 v{AGW}, 6, v{T}
    v_bfe_u32 v{T}, v{T2}, 2, 1
    v_lshl_add_u32 v{AGW}, v{T}, 5, v{AGW}
    v_and_b32 v{T}, 1, v{T2}
    v_lshl_add_u32 v{AGW}, v{T}, 4, v{AGW}
    v_bfe_u32 v{T}, v{T2}, 1, 1
    v_lshl_add_u32 v{AGW}, v{T}, 3, v{AGW}
    ''')
    a(f'''
    s_lshl_b32 s{sT0}, s{sWV}, 15
    s_add_u32 s{sT0}, s{sT0}, {L.L_W}
    v_add_u32 v{WL}, s{sT0}, v{L16}
    ''')
    a(f'''
    v_bfe_u32 v{T}, v{T2}, 1, 1
    v_mov_b32 v{IDX}, 0x44444444
    v_cmp_eq_u32 vcc, 1, v{T}
    v_mov_b32 v{T}, 0xeeeeeeee
    v_cndmask_b32 v{IDX}, v{IDX}, v{T}, vcc
    ''')
    a(f'v_and_b32 v{T}, 7, v{T2}')
    for c in range(4):
        a(f'''
        v_mov_b32 v{SEL+c}, 0
        v_cmp_eq_u32 vcc, {2*c}, v{T}
        v_mov_b32 v{X+1}, 0x3f80
        v_cndmask_b32 v{SEL+c}, v{SEL+c}, v{X+1}, vcc
        v_cmp_eq_u32 vcc, {2*c+1}, v{T}
        v_mov_b32 v{X+1}, 0x3f800000
        v_cndmask_b32 v{SEL+c}, v{SEL+c}, v{X+1}, vcc
        ''')
    a(f'''
    s_mov_b32 s{sC}, 0x3e0293ee
    s_mov_b32 s{sONES}, 0x3f803f80
    s_mov_b32 s{sONES+1}, 0x3f803f80
    s_mov_b32 s{sSPIN}, 0x80000
    s_mov_b32 s{sPLO}, 0x05040100
    s_mov_b32 s{sPHI}, 0x07060302
    ''')

def emit_weights(a):
    VA, VB, T2 = 16, 17, 19
    TA, TB = 18, 52
    RAW = 64
    lane(a, T2)
    a(f'''
    v_bfe_u32 v{T}, v{T2}, 4, 1
    v_lshlrev_b32 v{T}, 3, v{T}
    v_lshrrev_b32 v{VA}, 5, v{T2}
    v_add_u32 v{T}, v{T}, v{VA}
    v_lshlrev_b32 v{T}, 13, v{T}
    v_and_b32 v{VA}, 15, v{T2}
    v_lshl_add_u32 v{VA}, v{VA}, 3, v{T}
    s_lshl_b32 s{sT0}, s{sH}, 8
    s_lshr_b32 s{sT1}, s{sWV}, 1
    s_lshl_b32 s{sT1}, s{sT1}, 7
    s_add_u32 s{sT0}, s{sT0}, s{sT1}
    s_and_b32 s{sT1}, s{sWV}, 1
    s_lshl_b32 s{sT1}, s{sT1}, 2
    s_add_u32 s{sT0}, s{sT0}, s{sT1}
    v_add_u32 v{VA}, s{sT0}, v{VA}
    ''')
    for p in range(4):
        a(f'''
        s_xor_b32 s{sPW+p}, s{sWV}, {p}
        s_lshl_b32 s{sPW+p}, s{sPW+p}, 20
        ''')
    a(f'''
    v_lshrrev_b32 v{T}, 5, v{T2}
    v_lshlrev_b32 v{T}, 4, v{T}
    v_bfe_u32 v{VB}, v{T2}, 4, 1
    v_lshl_add_u32 v{T}, v{VB}, 2, v{T}
    v_lshlrev_b32 v{T}, 10, v{T}
    v_and_b32 v{VB}, 15, v{T2}
    v_lshl_add_u32 v{VB}, v{VB}, 4, v{T}
    s_lshl_b32 s{sT0}, s{sH}, 17
    s_lshl_b32 s{sT1}, s{sWV}, 8
    s_add_u32 s{sT0}, s{sT0}, s{sT1}
    v_add_u32 v{VB}, s{sT0}, v{VB}
    ''')
    FR = 20
    groups = [(mat, sg, q0) for mat in ('k', 'q', 'v') for sg in range(8) for q0 in range(0, 8, 2)]
    NG = 16
    SRDW = {'k': sr(12, 4), 'q': sr(60, 4), 'v': sr(64, 4), 'o': sr(68, 4)}
    def issue(gi):
        mat, sg, q0 = groups[gi]
        base = RAW + (gi % NG)*4
        for k, qv in enumerate((q0, q0+1)):
            dconst = 64*((qv >> 1) & 1) + 16*(qv & 1) + 4*(sg & 1) + 2*(qv >> 2)
            for e in range(2):
                row = dconst + 32*e
                a(f'''
                s_add_u32 s{sT0}, s{sPW+(sg>>1)}, {row*8192}
                buffer_load_dword v{base+2*k+e}, v{VA}, {SRDW[mat]}, s{sT0} offen nt
                ''')
    def process(gi):
        mat, sg, q0 = groups[gi]
        base = RAW + (gi % NG)*4
        for k, qv in enumerate((q0, q0+1)):
            r0, r1 = base+2*k, base+2*k+1
            for t, sel in ((0, sPLO), (1, sPHI)):
                if mat == 'q' or mat == 'v':
                    dst = (0 if mat == 'q' else 128) + (sg*2+t)*8 + qv
                    tmp = TA if t == 0 else TB
                    a(f'v_perm_b32 v{tmp}, v{r1}, v{r0}, s{sel}')
                    a(f'v_accvgpr_write_b32 a{dst}, v{tmp}')
                elif sg >= 4:
                    a(f'v_perm_b32 v{WKR+((sg-4)*2+t)*8+qv}, v{r1}, v{r0}, s{sel}')
                else:
                    a(f'v_perm_b32 v{FR+t*8+qv}, v{r1}, v{r0}, s{sel}')
        if mat == 'k' and sg < 4 and q0 == 6:
            for t in range(2):
                f = sg*2+t
                a(f'ds_write_b128 v{WL}, {vr(FR+t*8,4)} offset:{f*2048}')
                a(f'ds_write_b128 v{WL}, {vr(FR+t*8+4,4)} offset:{f*2048+1024}')
    srd(a, 12, L.ARG['A_Wk'], 4194304)
    srd(a, 60, L.ARG['A_Wq'], 4194304)
    srd(a, 64, L.ARG['A_Wv'], 4194304)
    srd(a, 68, L.ARG['A_Wo'], 4194304)
    AHEAD = 15
    for gi in range(AHEAD): issue(gi)
    for gi in range(len(groups)):
        process(gi)
        if gi + AHEAD < len(groups): issue(gi + AHEAD)
    items = [(ko, qv) for ko in range(2) for qv in range(8)]
    FO = 20
    def issue_o(i):
        ko, qv = items[i]
        base = RAW + (i % 8)*8
        e0 = 64*ko + 32*(qv >> 2) + 8*(qv & 1) + 2*((qv >> 1) & 1)
        for e in range(2):
            a(f'''
            s_mov_b32 s{sT0}, {(e0+e)*1024}
            buffer_load_dwordx4 {vr(base+4*e,4)}, v{VB}, {SRDW['o']}, s{sT0} offen nt
            ''')
    def process_o(i):
        ko, qv = items[i]
        base = RAW + (i % 8)*8
        for c in range(4):
            for hi, sel in ((0, sPLO), (1, sPHI)):
                t = 2*c + hi
                dst = FO + t*8 + qv if t < 4 else WOR + (ko*4+t-4)*8 + qv
                a(f'v_perm_b32 v{dst}, v{base+4+c}, v{base+c}, s{sel}')
        if qv == 7:
            for t in range(4):
                f = ko*4+t
                a(f'ds_write_b128 v{WL}, {vr(FO+t*8,4)} offset:{16384+f*2048}')
                a(f'ds_write_b128 v{WL}, {vr(FO+t*8+4,4)} offset:{16384+f*2048+1024}')
    for i in range(7): issue_o(i)
    for i in range(len(items)):
        process_o(i)
        if i + 7 < len(items): issue_o(i + 7)
    a('s_waitcnt vmcnt(0) lgkmcnt(0)')

def poll_loop(a, name, loads, checks):
    a.label(f'{name}')
    for l in loads: a(l)
    a('s_waitcnt vmcnt(0)')
    c = list(checks)
    if len(c) == 2:
        a(f'v_max_u32 v{T}, v{c[0]}, v{c[1]}')
    else:
        a(f'v_max3_u32 v{T}, v{c[0]}, v{c[1]}, v{c[2]}')
        c = c[3:]
        while len(c) >= 2:
            a(f'v_max3_u32 v{T}, v{T}, v{c[0]}, v{c[1]}'); c = c[2:]
        if c: a(f'v_max_u32 v{T}, v{T}, v{c[0]}')
    a(f'''
    v_cmp_eq_u32 vcc, -1, v{T}
    s_cbranch_vccz {name}_ok
    s_cmp_eq_u32 s{sSPIN}, 0
    s_cbranch_scc1 {name}_ok
    s_sub_u32 s{sSPIN}, s{sSPIN}, 1
    s_branch {name}
    ''')
    a.label(f'{name}_ok')

def smf(a, acc, A, B):
    a(f'v_smfmac_f32_16x16x64_bf16 {vr(acc,4)}, {vr(A,4)}, {B}, v{IDX}')
def mf(a, D, A, B, C):
    a(f'v_mfma_f32_16x16x32_bf16 {vr(D,4)}, {vr(A,4)}, {vr(B,4)}, {C if C == "0" else vr(C,4)}')
def rd128(a, dst, addr, off):
    a(f'ds_read_b128 {vr(dst,4)}, v{addr} offset:{off}')

def zero(a, r0, n):
    for r in range(r0, r0+n, 2):
        a(f'v_mov_b64 {vr(r,2)}, 0')

def fin_qk(a, acc, ldsoff):
    a(f'v_pk_add_f32 {vr(acc,2)}, {vr(acc,2)}, {vr(acc+2,2)}')
    a(f'v_pk_add_f32 {vr(acc+4,2)}, {vr(acc+4,2)}, {vr(acc+6,2)}')
    a(f'v_cvt_pk_bf16_f32 v{acc}, v{acc}, v{acc+4}')
    a(f'v_cvt_pk_bf16_f32 v{acc+1}, v{acc+1}, v{acc+5}')
    a(f'ds_write_b32 v{QW}, v{acc} offset:{ldsoff}')
    a(f'ds_write_b32 v{QW}, v{acc+1} offset:{ldsoff+L.QROW}')

def prefetch_wk(a, fr=range(8)):
    for f in fr:
        rd128(a, POOL+f*8, WL, f*2048)
        rd128(a, POOL+f*8+4, WL, f*2048+1024)

def prefetch_wo(a, f):
    rd128(a, POOL+WO_SLOT[f], WL, 16384+f*2048)
    rd128(a, POOL+WO_SLOT[f]+4, WL, 16384+f*2048+1024)

def dma8(a, ldsbase, soff):
    for half in range(2):
        a(f's_mov_b32 m0, {ldsbase + half*4096}')
        if half:
            a(f's_add_u32 s{sT0}, s{soff}, 4096')
        so = f's{sT0}' if half else f's{soff}'
        for k in range(4):
            off = f' offset:{k*1024}' if k else ''
            a(f'buffer_load_dwordx4 v{L16}, {WS}, {so} offen{off} lds')

def dma2(a, ldsbase_s, soff):
    if CFG.get('nodma'): soff = sAGR
    a(f's_mov_b32 m0, s{ldsbase_s}')
    a(f'buffer_load_dwordx4 v{L16}, {WS}, s{soff} offen lds')
    a(f'buffer_load_dwordx4 v{L16}, {WS}, s{soff} offen offset:1024 lds')

def fin_out(a, t):
    b = oacc(t)
    a(f'v_pk_add_f32 {vr(b,2)}, {vr(b,2)}, {vr(b+2,2)}')
    a(f'v_cvt_pk_bf16_f32 v{b}, v{b}, v{b+1}')
    a(f'buffer_store_dword v{b}, v{RSW}, {WS}, s{sRSW} offen offset:{t*256}')

def barrier(a, name):
    a('@wait_ds_writes')
    a('s_barrier')
    stamp(a, name)

def spin_fail(a, back, ok):
    a(f'''
    s_cmp_eq_u32 s{sSPIN}, 0
    s_cbranch_scc1 {ok}
    s_sub_u32 s{sSPIN}, s{sSPIN}, 1
    s_branch {back}
    ''')

def emit_step(a):
    dbg_mems = CFG['dbg_mems']
    a('@loop_begin chain')
    a.label('C_step')
    stamp(a, 'top')
    def pkadd(r): a(f'v_pk_add_f32 {vr(r,2)}, {vr(r,2)}, {vr(r+2,2)}')
    def add(r): a(f'v_add_f32 v{r}, v{r}, v{r+2}')
    def cvt(d, x, y): a(f'v_cvt_pk_bf16_f32 v{d}, v{x}, v{y}')
    def wr32(r, off): a(f'ds_write_b32 v{QW}, v{r} offset:{off}')
    def rdkx(f): rd128(a, POOL+32+4*f, L16, L.L_KX+f*1024)
    def rdq(ks): rd128(a, X+4*ks, QR, L.L_Q + 128*(ks >> 1) + 16*(ks & 1))
    def rdkm(ks): rd128(a, POOL+32+4*ks, OR_, L.L_K + 128*(ks >> 1) + 16*(ks & 1))
    def rdwo(f, h): rd128(a, POOL+WO_SLOT[f]+4*h, WL, 16384+f*2048+1024*h)
    def SX(tile, ks): mf(a, AQ+4*tile, POOL+32+4*(tile*4+ks), X+4*ks, '0' if ks == 0 else AQ+4*tile)
    def agl(base):
        a(f'buffer_load_dwordx4 {vr(base,4)}, v{AGP}, {WS}, s{sAGR} offen sc1')
        a(f'buffer_load_dwordx4 {vr(base+4,4)}, v{AGP}, {WS}, s{sAGR} offen offset:1024 sc1')
    def agchk(base, ok):
        a(f'v_max3_u32 v{T}, v{base}, v{base+2}, v{base+4}')
        a(f'v_max_u32 v{T}, v{T}, v{base+6}')
        a(f'v_cmp_eq_u32 vcc, -1, v{T}')
        a(f's_cbranch_vccz {ok}')
    for i in range(CFG.get('ag_delay', 0)): a('s_nop 15')
    if CFG.get('ag_sets', 2) == 2:
        agl(AO)
        for i in range(CFG.get('ag_gap', 2)): a('s_nop 15')
        agl(X)
        a.label('C_ag')
        a('s_waitcnt vmcnt(2)')
        agchk(AO, 'C_agA')
        agl(AO)
        a('s_waitcnt vmcnt(2)')
        agchk(X, 'C_agB')
        agl(X)
    else:
        if CFG.get('diag'):
            stamp(a, 'ag_i0'); agl(AO); a('s_waitcnt vmcnt(0)'); stamp(a, 'ag_r0'); agl(AO); a('s_waitcnt vmcnt(0)'); stamp(a, 'ag_r1')
        a.label('C_ag')
        agl(AO)
        a('s_waitcnt vmcnt(0)')
        agchk(AO, 'C_agA')
        a('s_branch C_agX')
        a('s_branch C_agB')
        a.label('C_agX')
    a(f'''
    s_cmp_eq_u32 s{sSPIN}, 0
    s_cbranch_scc1 C_agA
    s_sub_u32 s{sSPIN}, s{sSPIN}, 1
    s_branch C_ag
    ''')
    def prefix(A0, tag):
        Ar = lambda sg: A0+4*sg
        a(f'ds_write_b128 v{AGP}, {vr(A0,4)} offset:{L.L_MEM}')
        a(f'ds_write_b128 v{AGP}, {vr(A0+4,4)} offset:{L.L_MEM+1024}')
        smf(a, AQ, Ar(0), wq(0, 0)); smf(a, AQ+4, Ar(0), wq(0, 1)); smf(a, AQ, Ar(1), wq(1, 0)); smf(a, AQ+4, Ar(1), wq(1, 1))
        smf(a, AK, Ar(0), wk(0, 0)); a(f'v_xor_b32 v{T}, {1<<11}, v{AGP}')
        smf(a, AK+4, Ar(0), wk(0, 1))
        a('@wait_ds_writes')
        a('s_barrier')
        if tag == 'A': stamp(a, 'B1')
        rdA = lambda sg: rd128(a, POOL+(sg-2)*4, T, L.L_MEM + (sg & 1)*1024)
        smf(a, AK, Ar(1), wk(1, 0)); rdA(2)
        smf(a, AK+4, Ar(1), wk(1, 1)); rdA(3); a(f'v_xor_b32 v{T}, {2<<11}, v{AGP}')
        smf(a, AV, Ar(0), wv(0, 0)); rdA(4)
        smf(a, AV+4, Ar(0), wv(0, 1)); rdA(5); a(f'v_xor_b32 v{T}, {3<<11}, v{AGP}')
        smf(a, AV, Ar(1), wv(1, 0)); rdA(6)
        smf(a, AV+4, Ar(1), wv(1, 1)); rdA(7)
    a.label('C_agB')
    a('@assume_vm_empty')
    prefix(X, 'B')
    a('s_branch C_agJ')
    a.label('C_agA')
    stamp(a, 'ag_ok')
    prefix(AO, 'A')
    a.label('C_agJ')
    if CFG.get('skel'):
        a('s_waitcnt vmcnt(0) lgkmcnt(0)')
        for t in range(8): a(f'v_mov_b32 v{oacc(t)}, 0x3c003c00')
        for i in range(CFG['skel']): a('s_nop 15')
        stamp(a, 'B4')
        a('s_branch C_skel')
    Areg = lambda sg: POOL+(sg-2)*4
    Q = lambda sg, t: smf(a, AQ+4*t, Areg(sg), wq(sg, t))
    K = lambda sg, t: smf(a, AK+4*t, Areg(sg), wk(sg, t))
    V = lambda sg, t: smf(a, AV+4*t, Areg(sg), wv(sg, t))
    stamp(a, 'j0')
    def rst(i):
        if i < 2: a(f'buffer_store_dwordx4 {vr(X+12,4)}, v{RSR}, {WS}, s{sRST+i} offen')
        else: a(f'buffer_store_dwordx2 {vr(X+12,2)}, v{AGW}, {WS}, s{sAGRST} offen')
    def dma1(ldsbase_s, soff, k):
        if CFG.get('nodma'): soff = sAGR
        if k == 0: a(f's_mov_b32 m0, s{ldsbase_s}')
        a(f'buffer_load_dwordx4 v{L16}, {WS}, s{soff} offen' + (' offset:1024' if k else '') + ' lds')
    Q(2, 0); rdwo(1, 0)
    Q(2, 1); rdwo(1, 1)
    Q(3, 0); Q(3, 1)
    a('s_waitcnt vmcnt(0)')
    stamp(a, 'j1')
    Q(4, 0); a(f'v_mov_b32 v{X+12}, -1')
    Q(4, 1); a(f'v_mov_b32 v{X+13}, -1')
    Q(5, 0); a(f'v_mov_b32 v{X+14}, -1')
    Q(5, 1); a(f'v_mov_b32 v{X+15}, -1')
    Q(6, 0); rd128(a, AO, AGP, L.L_VX)
    Q(6, 1); rd128(a, AO+4, AGP, L.L_VX+1024)
    Q(7, 0); rst(0)
    Q(7, 1)
    stamp(a, 'j3')
    K(2, 0)
    K(2, 1); add(AQ)
    K(3, 0); rst(1); add(AQ+1)
    K(3, 1); rdkx(0); add(AQ+4)
    K(4, 0); rdkx(1); add(AQ+5)
    K(4, 1); rdkx(2); cvt(AQ, AQ, AQ+4)
    K(5, 0); rdkx(3); cvt(AQ+1, AQ+1, AQ+5)
    K(5, 1); wr32(AQ, L.L_Q); wr32(AQ+1, L.L_Q+L.QROW)
    K(6, 0); rdkx(4)
    K(6, 1); rdkx(5)
    K(7, 0); rdkx(6); rst(2)
    K(7, 1); rdkx(7)
    stamp(a, 'j5')
    V(2, 0)
    V(2, 1); add(AK)
    V(3, 0); add(AK+1)
    V(3, 1); add(AK+4)
    V(4, 0); add(AK+5)
    V(4, 1); cvt(AK, AK, AK+4)
    V(5, 0); cvt(AK+1, AK+1, AK+5)
    V(5, 1); wr32(AK, L.L_K); wr32(AK+1, L.L_K+L.QROW)
    V(6, 0)
    V(6, 1)
    barrier(a, 'B2')
    V(7, 0); rdq(0); rdq(1)
    V(7, 1); rdq(2); rdq(3)
    m, m2 = AK+4, AK+5
    KMR = AK
    stamp(a, 'j6')
    SX(0, 0); a(f'v_add_u32 v{T}, s{sKMO}, v{OR_}')
    SX(0, 1); dma1(sLVX, sVX, 0)
    SX(0, 2)
    SX(0, 3); rdkm(0)
    SX(1, 0); rdkm(1); dma1(sLVX, sVX, 1)
    SX(1, 1); rdkm(2)
    SX(1, 2); rdkm(3)
    SX(1, 3); dma1(sLKX, sKX, 0)
    def SM(ks): mf(a, AK, POOL+32+4*ks, X+4*ks, '0' if ks == 0 else AK)
    stamp(a, 'j8')
    SM(0); rdwo(0, 0); a(f'v_max3_f32 v{m}, v{AQ}, v{AQ+1}, v{AQ+2}')
    SM(1); rdwo(0, 1); a(f'v_max3_f32 v{m2}, v{AQ+3}, v{AQ+4}, v{AQ+5}')
    SM(2); dma1(sLKX, sKX, 1); a(f'v_max3_f32 v{m}, v{m}, v{AQ+6}, v{AQ+7}')
    SM(3)
    if not CFG.get('nopub'): rd128(a, POOL+56, T, L.L_K)
    a(f'v_max_f32 v{m}, v{m}, v{m2}')
    stamp(a, 'sm_issued')
    a(f'v_max3_f32 v{m}, v{m}, v{AK}, v{AK+1}')
    a(f'v_mov_b32 v{m2}, v{m}')
    if not CFG.get('nopub'): a(f'buffer_store_dwordx4 {vr(POOL+56,4)}, v{L16}, {WS}, s{sKM} offen sc1')
    a(f'v_permlane32_swap_b32 v{m}, v{m2}')
    a(f'v_max_f32 v{m}, v{m}, v{m2}')
    a(f'v_mov_b32 v{m2}, v{m}')
    rdwo(4, 0); rdwo(4, 1)
    a(f'v_permlane16_swap_b32 v{m}, v{m2}')
    a(f'v_max_f32 v{m}, v{m}, v{m2}')
    a(f'v_mul_f32 v{m}, s{sC}, v{m}')
    stamp(a, 'max_done')
    dump(a, 'S', [AQ+i for i in range(8)] + [AK, AK+1, AK+4])
    S = [AQ+i for i in range(8)] + [AK, AK+1]
    for i, r in enumerate(S):
        a(f'v_fma_f32 v{r}, v{r}, s{sC}, -v{m}')
    for i, r in enumerate(S):
        a(f'v_exp_f32 v{r}, v{r}')
    stamp(a, 'exp_done')
    cvt(AK+4, AQ, AQ+1); cvt(AK+5, AQ+2, AQ+3); cvt(AK+6, AQ+4, AQ+5); cvt(AK+7, AQ+6, AQ+7)
    a(f'v_mov_b32 v{X+4}, s{sONES}'); a(f'v_mov_b32 v{X+5}, s{sONES}')
    a(f'v_mov_b32 v{X+6}, s{sONES}'); a(f'v_mov_b32 v{X+7}, s{sONES}')
    mf(a, AQ, AO, AK+4, '0'); rdwo(5, 0)
    cvt(AK+3, AK, AK+1); cvt(AK, AK, AK+1)
    mf(a, AQ+4, AO+4, AK+4, '0'); rdwo(5, 1)
    add(AV); add(AV+1)
    mf(a, X, X+4, AK+4, '0'); rdwo(2, 0)
    add(AV+4); add(AV+5)
    a(f'v_mov_b32 v{AK+1}, 0')
    a(f'v_mov_b32 v{AK+2}, 0')
    cvt(AV, AV, AV+1); cvt(AV+1, AV+4, AV+5)
    a(f'v_mfma_f32_16x16x16_bf16 {vr(X,4)}, {vr(X+4,2)}, {vr(AK,2)}, {vr(X,4)}'); rdwo(2, 1)
    a(f'v_mfma_f32_16x16x16_bf16 {vr(AQ,4)}, {vr(AV,2)}, {vr(AK,2)}, {vr(AQ,4)}'); rdwo(6, 0)
    a(f'v_mfma_f32_16x16x16_bf16 {vr(AQ+4,4)}, {vr(AV,2)}, {vr(AK+2,2)}, {vr(AQ+4,4)}'); rdwo(6, 1)
    stamp(a, 'pv_issued')
    rdwo(3, 0); rdwo(3, 1); rdwo(7, 0); rdwo(7, 1)
    if not CFG.get('nopub'):
        a(f'v_lshrrev_b32 v{T}, 1, v{L16}')
        a(f'buffer_store_dwordx2 {vr(AV,2)}, v{T}, {WS}, s{sVM} offen sc1')
    dump(a, 'pv', [AQ+i for i in range(8)] + [X] + [AK+i for i in range(8)] + [AV, AV+1] + [AO+i for i in range(8)])
    a(f'v_rcp_f32 v{X}, v{X}')
    for i in range(4): a(f'v_pk_mul_f32 {vr(AQ+2*i,2)}, {vr(AQ+2*i,2)}, {vr(X,2)} op_sel_hi:[1,0]')
    for i in range(4): cvt(AQ+i, AQ+i, AQ+4+i)
    a(f'ds_write2_b32 v{OW}, v{AQ}, v{AQ+1} offset0:0 offset1:2')
    a(f'ds_write2_b32 v{OW}, v{AQ+2}, v{AQ+3} offset0:4 offset1:6')
    zero(a, 44, 20); zero(a, X, 8); zero(a, 40, 4)
    a(f's_waitcnt vmcnt({4 if CFG.get("nopub") else 6})')
    barrier(a, 'B4')
    for ko in range(2):
        rd128(a, AO+4*ko, OR_, L.L_O+128*ko)
    order = [4, 5, 6, 7, 0, 1, 2, 3]
    def st(t): a(f'buffer_store_dword v{oacc(t)}, v{RSW}, {WS}, s{sRSW} offen offset:{t*256}')
    for k, t in enumerate(order):
        smf(a, oacc(t), AO, wo(0, t))
        if k >= 3: st(order[k-3])
        if k >= 1: add(oacc(order[k-1]))
        smf(a, oacc(t), AO+4, wo(1, t))
        if k >= 1: add(oacc(order[k-1])+1)
        if k >= 2: cvt(oacc(order[k-2]), oacc(order[k-2]), oacc(order[k-2])+1)
    if CFG.get('skel'):
        a('s_branch C_skel2')
        a.label('C_skel')
        for t in range(8): st(t)
        a('s_branch C_skel3')
        a.label('C_skel2')
    st(order[5])
    cvt(oacc(order[6]), oacc(order[6]), oacc(order[6])+1)
    add(oacc(order[7])); add(oacc(order[7])+1)
    st(order[6])
    cvt(oacc(order[7]), oacc(order[7]), oacc(order[7])+1)
    st(order[7])
    if CFG.get('skel'): a.label('C_skel3')
    stamp(a, 'out_stored')
    a('@assume_lg_empty')
    prefetch_wk(a, range(4, 8))
    a(f'''
    s_cmp_lg_u32 s{sWV}, 0
    s_cbranch_scc1 C_nors
    ''')
    RA = [oacc(t) for t in range(8)]; RB = [POOL+4*t for t in range(8)]
    DA, DB = X+8, X+12
    def rsl(R, t): a(f'buffer_load_dwordx4 {vr(R[t],4)}, v{RSR}, {WS}, s{sRSR+t} offen sc1')
    two = CFG.get('rs_sets', 2) == 2
    def sweep(R, D, ok):
        for t in range(8):
            a(f's_waitcnt vmcnt({(15 if two else 7) - t})')
            mf(a, D, R[t], SEL, '0' if t == 0 else D)
            if t == 0: a(f'v_mov_b32 v{T}, v{R[0]}')
            else: a(f'v_max_u32 v{T}, v{T}, v{R[t]}')
        a(f'v_cmp_eq_u32 vcc, -1, v{T}')
        a(f's_cbranch_vccz {ok}')
        for t in range(8): rsl(R, t)
    for i in range(CFG.get('rs_delay', 0)): a('s_nop 15')
    if CFG.get('diag'):
        stamp(a, 'rs_i0'); a('s_waitcnt vmcnt(0)'); stamp(a, 'st_ack')
        for t in range(8): rsl(RA, t)
        a('s_waitcnt vmcnt(7)'); stamp(a, 'rs_f0'); a('s_waitcnt vmcnt(0)'); stamp(a, 'rs_r0')
    for t in range(8): rsl(RA, t)
    if two:
        for i in range(CFG.get('rs_gap', 0)): a('s_nop 15')
        for t in range(8): rsl(RB, t)
    a.label('C_rs')
    a('@assume_vm_empty')
    sweep(RA, DA, 'C_rsA')
    a('@assume_vm_empty')
    if two: sweep(RB, DB, 'C_rsB')
    a(f'''
    s_cmp_eq_u32 s{sSPIN}, 0
    s_cbranch_scc1 C_rsA
    s_sub_u32 s{sSPIN}, s{sSPIN}, 1
    s_branch C_rs
    ''')
    if not two: a('s_branch C_rsB')
    D = DA
    a.label('C_rsB')
    a('@assume_vm_empty')
    a('s_nop 3')
    a(f'v_cvt_pk_bf16_f32 v{D}, v{DB}, v{DB+1}')
    a(f'v_cvt_pk_bf16_f32 v{D+1}, v{DB+2}, v{DB+3}')
    a('s_branch C_rsJ')
    a.label('C_rsA')
    a(f'v_cvt_pk_bf16_f32 v{D}, v{D}, v{D+1}')
    a(f'v_cvt_pk_bf16_f32 v{D+1}, v{D+2}, v{D+3}')
    a.label('C_rsJ')
    stamp(a, 'rs_ok')
    a(f'buffer_store_dwordx2 {vr(D,2)}, v{AGW}, {WS}, s{sAGWR} offen')
    stamp(a, 'ag_pub')
    a('s_barrier')
    a('s_waitcnt vmcnt(1)')
    if dbg_mems:
        a(f'buffer_store_dwordx2 {vr(D,2)}, v{AGW}, {WS}, s{sMEMS} offen')
    prefetch_wk(a, range(0, 4))
    zero(a, 40, 24)
    a('s_branch C_rsdone')
    a.label('C_nors')
    a('@assume_lg_empty')
    prefetch_wk(a, range(0, 4))
    zero(a, 40, 24)
    a('s_barrier')
    a.label('C_rsdone')
    a(f'''
    s_xor_b32 s{sAGR}, s{sAGR}, 0x2000
    s_xor_b32 s{sAGWR}, s{sAGWR}, 0x2000
    s_xor_b32 s{sAGRST}, s{sAGRST}, 0x2000
    s_xor_b32 s{sRSW}, s{sRSW}, {L.RS_SLOT}
    ''')
    for t in range(8): a(f's_xor_b32 s{sRSR+t}, s{sRSR+t}, {L.RS_SLOT}')
    a(f's_xor_b32 s{sRST}, s{sRST}, {L.RS_SLOT}')
    a(f's_xor_b32 s{sRST+1}, s{sRST+1}, {L.RS_SLOT}')
    a(f'''
    s_add_u32 s{sKX}, s{sKX}, 262144
    s_add_u32 s{sVX}, s{sVX}, 262144
    s_add_u32 s{sKM}, s{sKM}, 131072
    s_add_u32 s{sVM}, s{sVM}, 65536
    s_add_u32 s{sMEMS}, s{sMEMS}, 8192
    s_add_u32 s{sSTEP}, s{sSTEP}, 1
    ''')
    stamp(a, 'end')
    if CFG.get('calib'):
        a('s_waitcnt lgkmcnt(0)')
        stamp(a, 'c0')
        for i in range(16): smf(a, X+8, AO, wq(i % 8, i & 1))
        stamp(a, 'c1')
        for i in range(16): smf(a, X+8+4*(i&1), AO+4*(i&1), wv(i % 8, i & 1))
        stamp(a, 'c2')
        for i in range(16): a(f'v_add_f32 v{X+(i%8)}, v{X+(i%8)}, v{T}')
        stamp(a, 'c3')
    dump_stamps(a)
    a(f's_cmp_lt_u32 s{sSTEP}, {CFG["nsteps"]}')
    a('@loop_end chain')
    a('s_cbranch_scc1 C_step')

def emit_chain(a):
    dbg_mems = CFG['dbg_mems']
    T2 = X
    emit_setup(a)
    a(f'''
    s_mov_b32 s{sSTEP}, 0
    s_mov_b32 s{sAGR}, {L.AG}
    s_lshl_b32 s{sT0}, s{sH}, 8
    s_add_u32 s{sAGRST}, s{sT0}, {L.AG}
    s_add_u32 s{sAGWR}, s{sT0}, {L.AG + 0x2000}
    s_add_u32 s{sMEMS}, s{sT0}, {L.MEMS + 8192}
    s_mul_i32 s{sT1}, s{sWV}, {L.RSW_STRIDE}
    s_mul_i32 s{sT0}, s{sH}, {L.RSH}
    s_add_u32 s{sT1}, s{sT1}, s{sT0}
    s_add_u32 s{sRSW}, s{sT1}, {L.RS}
    s_lshl_b32 s{sT0}, s{sH}, 13
    s_lshl_b32 s{sT1}, s{sWV}, 11
    s_add_u32 s{sT0}, s{sT0}, s{sT1}
    s_add_u32 s{sKX}, s{sT0}, {L.KX}
    s_add_u32 s{sVX}, s{sT0}, {L.VX}
    s_add_u32 s{sLKX}, s{sT1}, {L.L_KX}
    s_add_u32 s{sLVX}, s{sT1}, {L.L_VX}
    s_lshl_b32 s{sT0}, s{sH}, 12
    s_lshl_b32 s{sT1}, s{sWV}, 10
    s_add_u32 s{sT0}, s{sT0}, s{sT1}
    s_add_u32 s{sKM}, s{sT0}, {L.KM}
    s_lshr_b32 s{sKMO}, s{sWV}, 1
    s_lshl_b32 s{sKMO}, s{sKMO}, 7
    s_and_b32 s{sT1}, s{sWV}, 1
    s_lshl_b32 s{sT1}, s{sT1}, 4
    s_add_u32 s{sKMO}, s{sKMO}, s{sT1}
    s_lshl_b32 s{sT0}, s{sH}, 11
    s_lshl_b32 s{sT1}, s{sWV}, 9
    s_add_u32 s{sT0}, s{sT0}, s{sT1}
    s_add_u32 s{sVM}, s{sT0}, {L.VM}
    ''')
    def rsr_setup(dst):
        a(f'''
        s_lshr_b32 s{sT0}, s{sH}, 3
        s_mul_i32 s{sT0}, s{sT0}, {L.RSW_STRIDE}
        s_and_b32 s{sT1}, s{sH}, 7
        s_lshl_b32 s{sT1}, s{sT1}, 8
        s_add_u32 s{sT0}, s{sT0}, s{sT1}
        ''')
        for t in range(8): a(f's_add_u32 s{dst+t}, s{sT0}, {L.RS + t*4*L.RSH}')
    a(f'''
    s_cmp_lg_u32 s{sWV}, 0
    s_cbranch_scc1 C_noinit
    ''')
    rsr_setup(sRSR)
    for i in range(4): a(f'v_mov_b32 v{X+12+i}, -1')
    for slot in range(2):
        for t in range(8):
            a(f's_add_u32 s{sT0}, s{sRSR+t}, {slot*L.RS_SLOT}')
            a(f'buffer_store_dwordx4 {vr(X+12,4)}, v{RSR}, {WS}, s{sT0} offen')
    a(f'buffer_store_dwordx2 {vr(X+12,2)}, v{AGW}, {WS}, s{sAGRST} offen')
    a(f'buffer_store_dwordx2 {vr(X+12,2)}, v{AGW}, {WS}, s{sAGWR} offen')
    a(f'''
    s_waitcnt vmcnt(0)
    v_mov_b32 v{T}, 32
    v_mov_b32 v{T2}, 1
    s_mov_b64 {sr(sSAVE,2)}, exec
    s_mov_b64 exec, 1
    global_atomic_add v{T}, v{T2}, {sr(sDBG,2)}
    s_mov_b64 exec, {sr(sSAVE,2)}
    ''')
    a.label('C_noinit')
    emit_weights(a)
    rsr_setup(sRSR)
    a(f'''
    s_mul_i32 s{sT0}, s{sWV}, {8*L.RSH}
    s_add_u32 s{sRST}, s{sRSR}, s{sT0}
    s_xor_b32 s{sRST}, s{sRST}, {L.RS_SLOT}
    s_add_u32 s{sRST+1}, s{sRST}, {4*L.RSH}
    ''')
    dma2(a, sLKX, sKX)
    dma2(a, sLVX, sVX)
    a(f'''
    s_add_u32 s{sKX}, s{sKX}, 262144
    s_add_u32 s{sVX}, s{sVX}, 262144
    ''')
    a(f'''
    s_cmp_lg_u32 s{sWV}, 0
    s_cbranch_scc1 C_nomem0
    ''')
    a.label('C_initwait')
    a(f'''
    v_mov_b32 v{T}, 32
    global_load_dword v{T2}, v{T}, {sr(sDBG,2)} sc1
    s_waitcnt vmcnt(0)
    v_cmp_gt_u32 vcc, 32, v{T2}
    s_cbranch_vccz C_initok
    s_cmp_eq_u32 s{sSPIN}, 0
    s_cbranch_scc1 C_initok
    s_sub_u32 s{sSPIN}, s{sSPIN}, 1
    s_branch C_initwait
    ''')
    a.label('C_initok')
    srd(a, 12, L.ARG['A_mem0'], 8192)
    lane(a, T2)
    a(f'''
    v_lshrrev_b32 v{T}, 4, v{T2}
    v_lshlrev_b32 v{T}, 1, v{T}
    v_and_b32 v{X+1}, 1, v{T2}
    v_add_u32 v{T}, v{T}, v{X+1}
    v_lshlrev_b32 v{T}, 10, v{T}
    v_bfe_u32 v{X+1}, v{T2}, 1, 2
    v_lshl_add_u32 v{T}, v{X+1}, 4, v{T}
    s_lshr_b32 s{sT0}, s{sH}, 3
    s_lshl_b32 s{sT0}, s{sT0}, 8
    s_and_b32 s{sT1}, s{sH}, 7
    s_lshl_b32 s{sT1}, s{sT1}, 1
    s_add_u32 s{sT0}, s{sT0}, s{sT1}
    ''')
    for i in range(4):
        a(f'buffer_load_ushort v{X+i}, v{T}, {sr(12,4)}, s{sT0} offen offset:{64*i}')
    a(f'''
    v_lshl_or_b32 v{X}, v{X+1}, 16, v{X}
    v_lshl_or_b32 v{X+1}, v{X+3}, 16, v{X+2}
    buffer_store_dwordx2 {vr(X,2)}, v{AGW}, {WS}, s{sAGRST} offen
    ''')
    if dbg_mems:
        a(f'''
        s_sub_u32 s{sT0}, s{sMEMS}, 8192
        buffer_store_dwordx2 {vr(X,2)}, v{AGW}, {WS}, s{sT0} offen
        ''')
    a.label('C_nomem0')
    a(f'''
    s_lshl_b32 s{sT0}, s{sH}, 8
    s_add_u32 s{sT0}, s{sT0}, {L.FLAGS + 0x20000}
    s_cmp_eq_u32 s{sWV}, 0
    s_cselect_b32 s{sAGRST}, s{sAGWR}, s{sT0}
    ''')
    a('s_waitcnt vmcnt(0) lgkmcnt(0)')
    a('s_barrier')
    a('@assume_drained')
    prefetch_wk(a, range(4, 8))
    a('s_waitcnt lgkmcnt(0)')
    prefetch_wk(a, range(0, 4))
    zero(a, 40, 24)
    emit_step(a)
    if CFG['stamps']:
        a(f'''
        s_lshl_b32 s{sT0}, s{sH}, 2
        s_add_u32 s{sT0}, s{sT0}, s{sWV}
        s_lshl_b32 s{sT0}, s{sT0}, 7
        s_add_u32 s{sT0}, s{sT0}, {L.FLAGS + 0x10000}
        v_mov_b32 v{X}, 0
        v_mov_b32 v{T}, s{sSPIN}
        buffer_store_dword v{T}, v{X}, {WS}, s{sT0} offen offset:124
        ''')

HEADER = '''; @launch grid=(256,1,1) block=(256,1,1) lds=163840
.amdgcn_target "amdgcn-amd-amdhsa--gfx950"
.text
.globl {name}
.p2align 8
.type {name},@function
{name}:
'''
FOOTER = '''
.section .rodata,"a"
.p2align 6
.amdhsa_kernel {name}
  .amdhsa_next_free_vgpr 512
  .amdhsa_next_free_sgpr 102
  .amdhsa_accum_offset 256
  .amdhsa_group_segment_fixed_size 0
  .amdhsa_kernarg_size 152
  .amdhsa_user_sgpr_count 2
  .amdhsa_user_sgpr_kernarg_segment_ptr 1
  .amdhsa_system_sgpr_workgroup_id_x 1
.end_amdhsa_kernel
'''
NAME = 'concat_heads__memory_aug_recurrent_mem_tr__ssm_conv_s5__prompt_kernel'

def emit_elect(a):
    a(f'''
    s_cmp_ge_u32 s2, 256
    s_cbranch_scc1 L_end
    s_load_dwordx2 {sr(sDBG,2)}, s[0:1], {L.ARG['dbg']}
    s_getreg_b32 s3, hwreg(HW_REG_XCC_ID)
    s_and_b32 s3, s3, 7
    s_waitcnt lgkmcnt(0)
    ''')
    srd(a, S_WS, L.ARG['ws'], L.WS_BYTES)
    a(f'''
    v_lshrrev_b32 v1, 6, v0
    s_nop 0
    v_readfirstlane_b32 s{sWV}, v1
    v_cmp_eq_u32 vcc, 0, v0
    s_and_saveexec_b64 {sr(sSAVE,2)}, vcc
    s_cbranch_execz L_noticket
    s_lshl_b32 s{sT0}, s3, 2
    v_mov_b32 v1, s{sT0}
    v_mov_b32 v2, 1
    global_atomic_add v3, v1, v2, {sr(sDBG,2)} sc0
    s_waitcnt vmcnt(0)
    v_mov_b32 v1, 0
    ds_write_b32 v1, v3
    s_waitcnt lgkmcnt(0)
    ''')
    a.label('L_noticket')
    a(f'''
    s_mov_b64 exec, {sr(sSAVE,2)}
    s_barrier
    v_mov_b32 v1, 0
    ds_read_b32 v3, v1
    s_waitcnt lgkmcnt(0)
    v_readfirstlane_b32 s{sH}, v3
    s_barrier
    ''')

if __name__ == '__main__':
    import sys
    for arg in sys.argv[1:]:
        if arg == 'stamps': CFG['stamps'] = True
        elif arg.startswith('only='): CFG['only'] = arg[5:].split(',')
        elif '=' in arg:
            k, v = arg.split('='); CFG[k] = int(v)
    a = Asm()
    emit_elect(a)
    a(f'''
    s_cmp_lg_u32 s3, 0
    s_cbranch_scc1 L_end
    s_cmp_ge_u32 s{sH}, 32
    s_cbranch_scc1 L_end
    ''')
    emit_chain(a)
    a.label('L_end')
    a('s_endpgm')
    body = a.finalize()
    open('chain_test.s', 'w').write(HEADER.format(name=NAME) + body + FOOTER.format(name=NAME))
    print('instructions:', a.count(), ','.join(STAMPS), DUMPS)
```

```python
from asmlib import Asm
import layout as L
from gen_chain import vr, ar, sr, srd, WS, S_WS, sWV, sDBG, sT0, sT1, sT2, sT3, sPLO, sPHI

sTK = 16
sXW = 3
S_X = 12
S_M = 20
S_M2 = 24
S_OUT = 28
sG, sHD, sWO = 32, 33, 34
sDST = 35
sA, sB, sC_, sD = 42, 43, 44, 45
vL16, vXA, vWA, vT, vT2, vT3 = 1, 2, 3, 4, 5, 6
XF = 64
WRAW = 128
WF = 176
EP = 208

def setup_lane(a):
    a(f'''
    v_and_b32 v{vT}, 63, v0
    v_lshlrev_b32 v{vL16}, 4, v{vT}
    s_mov_b32 s{sPLO}, 0x05040100
    s_mov_b32 s{sPHI}, 0x07060302
    ''')

def load_xtile(a, tok0_s, koff_bytes=0, row_bytes=1024):
    a(f'''
    v_and_b32 v{vT}, 63, v0
    v_and_b32 v{vT2}, 15, v{vT}
    v_mul_u32_u24 v{vXA}, {row_bytes}, v{vT2}
    v_lshrrev_b32 v{vT}, 4, v{vT}
    v_lshl_add_u32 v{vXA}, v{vT}, 4, v{vXA}
    s_lshl_b32 s{sT0}, s{sWV}, 5
    s_add_u32 s{sT0}, s{sT0}, s{tok0_s}
    s_mul_i32 s{sT0}, s{sT0}, {row_bytes}
    s_add_u32 s{sT0}, s{sT0}, {koff_bytes}
    s_lshl_b32 s{sT1}, s{sWV}, 15
    ''')
    for rr in range(2):
        for s in range(16):
            a(f's_add_u32 m0, s{sT1}, {(rr*16+s)*1024}')
            a(f's_add_u32 s{sT2}, s{sT0}, {rr*16*row_bytes + s*64}')
            a(f'buffer_load_dwordx4 v{vXA}, {sr(S_X,4)}, s{sT2} offen lds')
    a('s_waitcnt vmcnt(0)')
    a('s_barrier')

def gemm128x64(a, nks, issue_w, conv_w, transposed, zero_acc=True, xs0=0, direct=False):
    if zero_acc:
        for i in range(128): a(f'v_accvgpr_write_b32 a{i}, 0')
    raw = lambda ks: WRAW + (ks % 3)*16
    wf = (lambda ks: raw(ks)) if direct else (lambda ks: WF + (ks & 1)*16)
    xf = lambda ks: XF + (ks & 1)*32
    def xreads(ks): return [f'ds_read_b128 {vr(xf(ks)+4*r,4)}, v{vL16} offset:{(r*16+xs0+ks)*1024 - (65536 if (r*16+xs0+ks)*1024 >= 65536 else 0)}'.replace(f'v{vL16} ', f'v{vL16} ' if (r*16+xs0+ks)*1024 < 65536 else f'v{vT3} ') for r in range(8)]
    a(f'v_add_u32 v{vT3}, 0x10000, v{vL16}')
    for l in issue_w(0, raw(0)): a(l)
    if nks > 1:
        for l in issue_w(1, raw(1)): a(l)
    for l in xreads(0): a(l)
    for l in conv_w(raw(0), wf(0)): a(l)
    for ks in range(nks):
        ld = issue_w(ks+2, raw(ks+2)) if ks+2 < nks else []
        xr = xreads(ks+1) if ks+1 < nks else []
        cv = conv_w(raw(ks+1), wf(ks+1)) if ks+1 < nks else []
        k = 0
        for r in range(8):
            for t in range(4):
                acc = ar((r*4+t)*4, 4)
                A, B = vr(xf(ks)+4*r, 4), vr(wf(ks)+4*t, 4)
                if transposed: A, B = B, A
                a(f'v_mfma_f32_16x16x32_bf16 {acc}, {A}, {B}, {acc}')
                if k % 4 == 0 and xr: a(xr.pop(0))
                if k < 24 and k % 2 == 1 and ld:
                    a(ld.pop(0))
                    if ld and ld[0].startswith('buffer'): a(ld.pop(0))
                if k >= 12 and cv: a(cv.pop(0))
                k += 1
        for l in xr + ld + cv: a(l)

def w_ncontig(srd_reg):
    def issue(ks, raw):
        out = []
        for j in range(8):
            out.append(f's_add_u32 s{sT0}, s{sWO}, {(32*ks+j)*8192}')
            out.append(f'buffer_load_dwordx2 {vr(raw+2*j,2)}, v{vWA}, {sr(srd_reg,4)}, s{sT0} offen')
        return out
    def conv(raw, wf):
        out = []
        for t in range(4):
            for q in range(4):
                r0, r1 = raw + 2*(2*q) + (t >> 1), raw + 2*(2*q+1) + (t >> 1)
                out.append(f'v_perm_b32 v{wf+4*t+q}, v{r1}, v{r0}, s{sPHI if t & 1 else sPLO}')
        return out
    return issue, conv

def acc_read(a, dst, src): a(f'v_accvgpr_read_b32 v{dst}, a{src}')

def epi_kq(a, base_s):
    for r in range(8):
        for u in range(2):
            b = EP + ((r*2+u) % 4)*12
            for dq in range(4):
                i = 2*u + (dq >> 1); t = 2*(dq & 1)
                acc_read(a, b+4+2*(dq & 1), (r*4+t)*4+i)
                acc_read(a, b+5+2*(dq & 1), (r*4+t+1)*4+i)
                a(f'v_cvt_pk_bf16_f32 v{b+dq}, v{b+4+2*(dq&1)}, v{b+5+2*(dq&1)}')
            a(f's_add_u32 s{sT0}, s{base_s}, {(r >> 1)*262144 + (r & 1)*4096 + u*1024}')
            a(f'buffer_store_dwordx4 {vr(b,4)}, v{vL16}, {WS}, s{sT0} offen sc1')

def epi_v(a, base_s):
    n = 0
    for sg in range(4):
        for t in range(4):
            b = EP + (n % 4)*12; n += 1
            for dq in range(4):
                r = 2*sg + (dq >> 1); i = 2*(dq & 1)
                acc_read(a, b+4+2*(dq & 1), (r*4+t)*4+i)
                acc_read(a, b+5+2*(dq & 1), (r*4+t)*4+i+1)
                a(f'v_cvt_pk_bf16_f32 v{b+dq}, v{b+4+2*(dq&1)}, v{b+5+2*(dq&1)}')
            a(f's_add_u32 s{sT0}, s{base_s}, {sg*262144 + t*1024}')
            a(f'buffer_store_dwordx4 {vr(b,4)}, v{vL16}, {WS}, s{sT0} offen sc1')

def emit_p_task(a, tag, isq):
    a(f's_lshl_b32 s{sA}, s{sG}, 7')
    load_xtile(a, sA)
    a(f'''
    v_and_b32 v{vT}, 63, v0
    v_lshrrev_b32 v{vT2}, 4, v{vT}
    v_lshlrev_b32 v{vWA}, 16, v{vT2}
    v_and_b32 v{vT2}, 15, v{vT}
    v_lshl_add_u32 v{vWA}, v{vT2}, 3, v{vWA}
    s_and_b32 s{sB}, s{sWV}, 1
    s_lshr_b32 s{sC_}, s{sWV}, 1
    ''')
    if isq:
        a(f'''
        s_lshl_b32 s{sD}, s{sHD}, 1
        s_add_u32 s{sD}, s{sD}, s{sC_}
        ''')
    else:
        a(f's_mov_b32 s{sD}, s{sHD}')
    a(f'''
    s_lshl_b32 s{sWO}, s{sD}, 8
    s_lshl_b32 s{sT0}, s{sB}, 7
    s_add_u32 s{sWO}, s{sWO}, s{sT0}
    s_lshl_b32 s{sDST}, s{sG}, 20
    s_lshl_b32 s{sT0}, s{sD}, 13
    s_add_u32 s{sDST}, s{sDST}, s{sT0}
    ''')
    if isq:
        srd(a, S_M, L.ARG['A_Wq'], 4194304)
        a(f'''
        s_lshl_b32 s{sT0}, s{sB}, 11
        s_add_u32 s{sDST}, s{sDST}, s{sT0}
        s_add_u32 s{sDST}, s{sDST}, {L.QX}
        ''')
        iss, cv = w_ncontig(S_M)
        gemm128x64(a, 16, iss, cv, True)
        epi_kq(a, sDST)
    else:
        a(f'''
        s_cmp_eq_u32 s{sC_}, 1
        s_cbranch_scc1 {tag}_v
        ''')
        srd(a, S_M, L.ARG['A_Wk'], 4194304)
        a(f'''
        s_lshl_b32 s{sT0}, s{sB}, 11
        s_add_u32 s{sDST}, s{sDST}, s{sT0}
        s_add_u32 s{sDST}, s{sDST}, {L.KX}
        ''')
        iss, cv = w_ncontig(S_M)
        gemm128x64(a, 16, iss, cv, True)
        epi_kq(a, sDST)
        a(f's_branch {tag}_done')
        a.label(f'{tag}_v')
        a('@assume_drained')
        srd(a, S_M, L.ARG['A_Wv'], 4194304)
        a(f'''
        s_lshl_b32 s{sT0}, s{sB}, 12
        s_add_u32 s{sDST}, s{sDST}, s{sT0}
        s_add_u32 s{sDST}, s{sDST}, {L.VX}
        ''')
        gemm128x64(a, 16, iss, cv, False)
        epi_v(a, sDST)
        a.label(f'{tag}_done')
    a('s_waitcnt vmcnt(0) lgkmcnt(0)')
    a('s_barrier')
    a('@assume_drained')

if __name__ == '__main__':
    import sys
    from gen_chain import HEADER, FOOTER, NAME, emit_elect, sH
    a = Asm()
    emit_elect(a)
    setup_lane(a)
    srd(a, S_X, L.ARG['A_x'], 2097152)
    for rnd in range(2):
        a(f'''
        s_add_u32 s{sT0}, s2, {256*rnd}
        s_lshr_b32 s{sG}, s{sT0}, 5
        s_and_b32 s{sHD}, s{sT0}, 31
        ''')
        emit_p_task(a, f'P{rnd}', False)
    a(f'''
    s_lshr_b32 s{sG}, s2, 4
    s_and_b32 s{sHD}, s2, 15
    ''')
    emit_p_task(a, 'PQ', True)
    a.label('L_end')
    a('s_endpgm')
    body = a.finalize()
    open('p_test.s', 'w').write(HEADER.format(name=NAME) + body + FOOTER.format(name=NAME))
    print('instructions', a.count())

sSEG = 46
sMK = 54
sCC = 62
QF, KF, KMF, VF, VMF = 64, 96, 128, 144, 176
SX0, SX1, SM_, PX, PB0, PB1, ONE, TM = 184, 188, 192, 196, 200, 202, 204, 208

def attn_setup(a):
    a(f'''
    v_and_b32 v{vT}, 63, v0
    v_and_b32 v{vT2}, 15, v{vT}
    v_lshrrev_b32 v{vT}, 4, v{vT}
    v_lshlrev_b32 v{vT}, 2, v{vT}
    s_mov_b32 s{sCC}, 0x3e0293ee
    ''')
    for i in range(4):
        a(f'v_add_u32 v{vT3}, {i}, v{vT}')
        a(f'v_cmp_le_u32 {sr(sMK+2*i,2)}, v{vT3}, v{vT2}')
    for i in range(4): a(f'v_mov_b32 v{ONE+i}, 0x3f803f80')

def attn_loads_pre(a):
    a(f'''
    s_lshl_b32 s{sA}, s{sSEG}, 5
    s_add_u32 s{sA}, s{sA}, s{sHD}
    s_lshl_b32 s{sB}, s{sA}, 13
    ''')
    for nm, reg, base in (('q', QF, L.QX), ('k', KF, L.KX), ('v', VF, L.VX)):
        a(f's_add_u32 s{sT0}, s{sB}, {base}')
        a(f's_add_u32 s{sT1}, s{sB}, {base+4096}')
        for f in range(8):
            a(f'buffer_load_dwordx4 {vr(reg+4*f,4)}, v{vL16}, {WS}, s{sT0 if f < 4 else sT1} offen offset:{(f&3)*1024}')

def attn_loads_post(a):
    a(f'''
    s_lshl_b32 s{sT0}, s{sA}, 12
    s_add_u32 s{sT0}, s{sT0}, {L.KM}
    s_lshl_b32 s{sT1}, s{sA}, 11
    s_add_u32 s{sT1}, s{sT1}, {L.VM}
    v_lshrrev_b32 v{vT}, 1, v{vL16}
    ''')
    for ks in range(4):
        a(f'buffer_load_dwordx4 {vr(KMF+4*ks,4)}, v{vL16}, {WS}, s{sT0} offen offset:{ks*1024}')
    for w in range(4):
        a(f'buffer_load_dwordx2 {vr(VMF+2*w,2)}, v{vT}, {WS}, s{sT1} offen offset:{w*512}')

def attn_compute(a):
    M = 'v_mfma_f32_16x16x32_bf16'; M16 = 'v_mfma_f32_16x16x16_bf16'
    for u in range(2):
        for ks in range(4):
            c = '0' if ks == 0 else vr(SX0, 4)
            a(f'{M} {vr(SX0,4)}, {vr(KF+4*ks,4)}, {vr(QF+16*u+4*ks,4)}, {c}')
            if u == 1:
                c = '0' if ks == 0 else vr(SX1, 4)
                a(f'{M} {vr(SX1,4)}, {vr(KF+16+4*ks,4)}, {vr(QF+16*u+4*ks,4)}, {c}')
        for ks in range(4):
            c = '0' if ks == 0 else vr(SM_, 4)
            a(f'{M} {vr(SM_,4)}, {vr(KMF+4*ks,4)}, {vr(QF+16*u+4*ks,4)}, {c}')
        dg = SX0 if u == 0 else SX1
        a(f'v_mov_b32 v{TM}, 0xf149f2ca')
        for i in range(4):
            a(f'v_cndmask_b32 v{dg+i}, v{TM}, v{dg+i}, {sr(sMK+2*i,2)}')
        S = [SX0+i for i in range(4)] + ([SX1+i for i in range(4)] if u == 1 else []) + [SM_, SM_+1]
        m, m2 = TM, TM+1
        a(f'v_max3_f32 v{m}, v{S[0]}, v{S[1]}, v{S[2]}')
        rest = S[3:]
        while len(rest) >= 2:
            a(f'v_max3_f32 v{m}, v{m}, v{rest[0]}, v{rest[1]}'); rest = rest[2:]
        if rest: a(f'v_max_f32 v{m}, v{m}, v{rest[0]}')
        a(f'''
        v_mov_b32 v{m2}, v{m}
        v_permlane32_swap_b32 v{m}, v{m2}
        v_max_f32 v{m}, v{m}, v{m2}
        v_mov_b32 v{m2}, v{m}
        v_permlane16_swap_b32 v{m}, v{m2}
        v_max_f32 v{m}, v{m}, v{m2}
        v_mul_f32 v{m}, s{sCC}, v{m}
        ''')
        for r in S: a(f'v_fma_f32 v{r}, v{r}, s{sCC}, -v{m}')
        for r in S: a(f'v_exp_f32 v{r}, v{r}')
        a(f'v_cvt_pk_bf16_f32 v{PX}, v{SX0}, v{SX0+1}')
        a(f'v_cvt_pk_bf16_f32 v{PX+1}, v{SX0+2}, v{SX0+3}')
        if u == 1:
            a(f'v_cvt_pk_bf16_f32 v{PX+2}, v{SX1}, v{SX1+1}')
            a(f'v_cvt_pk_bf16_f32 v{PX+3}, v{SX1+2}, v{SX1+3}')
        else:
            a(f'v_mov_b32 v{PX+2}, 0'); a(f'v_mov_b32 v{PX+3}, 0')
        a(f'v_cvt_pk_bf16_f32 v{PB0}, v{SM_}, v{SM_+1}')
        a(f'v_mov_b32 v{PB0+1}, 0')
        a(f'v_mov_b32 v{PB1}, 0')
        a(f'v_mov_b32 v{PB1+1}, v{PB0}')
        for f in range(8):
            a(f'{M} {ar(4*f,4)}, {vr(VF+4*f,4)}, {vr(PX,4)}, 0')
        a(f'{M} {ar(32,4)}, {vr(ONE,4)}, {vr(PX,4)}, 0')
        for f in range(8):
            hf, t = f >> 2, f & 3
            w = 2*hf + (t >> 1)
            a(f'{M16} {ar(4*f,4)}, {vr(VMF+2*w,2)}, {vr(PB1 if t & 1 else PB0,2)}, {ar(4*f,4)}')
        a(f'{M16} {ar(32,4)}, {vr(ONE,2)}, {vr(PB0,2)}, {ar(32,4)}')
        a(f'v_accvgpr_read_b32 v{TM}, a32')
        a(f'v_rcp_f32 v{TM}, v{TM}')
        a(f'''
        s_lshl_b32 s{sT0}, s{sA}, 13
        s_add_u32 s{sT0}, s{sT0}, {L.OX + u*4096}
        ''')
        n = 0
        for hf in range(2):
            for up in range(2):
                b = TM + 4 + (n % 2)*8; n += 1
                for dq in range(4):
                    i = 2*up + (dq >> 1); t = 2*(dq & 1)
                    a(f'v_accvgpr_read_b32 v{b+4}, a{(4*hf+t)*4+i}')
                    a(f'v_accvgpr_read_b32 v{b+5}, a{(4*hf+t+1)*4+i}')
                    a(f'v_mul_f32 v{b+4}, v{b+4}, v{TM}')
                    a(f'v_mul_f32 v{b+5}, v{b+5}, v{TM}')
                    a(f'v_cvt_pk_bf16_f32 v{b+dq}, v{b+4}, v{b+5}')
                a(f'buffer_store_dwordx4 {vr(b,4)}, v{vL16}, {WS}, s{sT0} offen offset:{(2*hf+up)*1024} sc1')

def gen_attn_test():
    from gen_chain import HEADER, FOOTER, NAME, emit_elect
    a = Asm()
    emit_elect(a)
    setup_lane(a)
    attn_setup(a)
    for k in range(2):
        a(f'''
        s_lshl_b32 s{sT0}, s2, 2
        s_add_u32 s{sT0}, s{sT0}, s{sWV}
        s_add_u32 s{sT0}, s{sT0}, {1024*k}
        s_lshr_b32 s{sSEG}, s{sT0}, 5
        s_and_b32 s{sHD}, s{sT0}, 31
        ''')
        attn_loads_pre(a); attn_loads_post(a); attn_compute(a)
    a('s_waitcnt vmcnt(0)')
    a.label('L_end')
    a('s_endpgm')
    body = a.finalize()
    open('a_test.s', 'w').write(HEADER.format(name=NAME) + body + FOOTER.format(name=NAME))
    print('attn instructions', a.count())
gen_attn_test() if __name__ == '__main__' else None

sCB, sUN = 47, 48
OF = 64
OACC = 192
OTM = 200

def oproj_load_weights(a):
    srd(a, S_M, L.ARG['A_Wo'], 4194304)
    a(f'''
    v_and_b32 v{vT}, 63, v0
    v_lshrrev_b32 v{vT2}, 4, v{vT}
    v_lshlrev_b32 v{vWA}, 14, v{vT2}
    v_and_b32 v{vT2}, 15, v{vT}
    v_lshl_add_u32 v{vWA}, v{vT2}, 2, v{vWA}
    s_lshl_b32 s{sWO}, s{sWV}, 20
    s_lshl_b32 s{sT0}, s{sCB}, 6
    s_add_u32 s{sWO}, s{sWO}, s{sT0}
    ''')
    groups = [(hh, ks) for hh in range(8) for ks in range(4)]
    RAW = 64; NB = 7
    def issue(gi):
        hh, ks = groups[gi]
        for j in range(8):
            e = 64*(ks >> 1) + 8*(ks & 1) + j
            a(f's_add_u32 s{sT0}, s{sWO}, {hh*131072 + e*1024}')
            a(f'buffer_load_dword v{RAW+(gi % NB)*8+j}, v{vWA}, {sr(S_M,4)}, s{sT0} offen')
    def proc(gi):
        hh, ks = groups[gi]
        b = RAW+(gi % NB)*8
        for t in range(2):
            for q in range(4):
                a(f'v_perm_b32 v{vT+(q&1)}, v{b+2*q+1}, v{b+2*q}, s{sPHI if t else sPLO}')
                a(f'v_accvgpr_write_b32 a{((hh*4+ks)*2+t)*4+q}, v{vT+(q&1)}')
    for gi in range(NB-1): issue(gi)
    for gi in range(32):
        proc(gi)
        if gi+NB-1 < 32: issue(gi+NB-1)

def oproj_unit_loads(a):
    a(f'''
    s_lshr_b32 s{sT0}, s{sUN}, 1
    s_lshl_b32 s{sT0}, s{sT0}, 18
    s_and_b32 s{sT1}, s{sUN}, 1
    s_lshl_b32 s{sT1}, s{sT1}, 12
    s_add_u32 s{sT0}, s{sT0}, s{sT1}
    s_lshl_b32 s{sT1}, s{sWV}, 16
    s_add_u32 s{sT0}, s{sT0}, s{sT1}
    s_add_u32 s{sA}, s{sT0}, {L.OX}
    ''')
    for hh in range(8):
        a(f's_add_u32 s{sT0}, s{sA}, {hh*8192}')
        for ks in range(4):
            a(f'buffer_load_dwordx4 {vr(OF+(hh*4+ks)*4,4)}, v{vL16}, {WS}, s{sT0} offen offset:{ks*1024}')

def oproj_unit_compute(a, par, tag):
    M = 'v_mfma_f32_16x16x32_bf16'
    for f in range(32):
        for t in range(2):
            c = '0' if f == 0 else vr(OACC+4*t, 4)
            a(f'{M} {vr(OACC+4*t,4)}, {ar((f*2+t)*4,4)}, {vr(OF+4*f,4)}, {c}')
    lds = par*8192
    a(f'''
    s_lshl_b32 s{sT0}, s{sWV}, 11
    v_lshlrev_b32 v{vT}, 1, v{vL16}
    v_add_u32 v{vT}, s{sT0}, v{vT}
    ds_write_b128 v{vT}, {vr(OACC,4)} offset:{lds}
    ds_write_b128 v{vT}, {vr(OACC+4,4)} offset:{lds+16}
    s_waitcnt lgkmcnt(0)
    s_barrier
    s_cmp_lg_u32 s{sWV}, 0
    s_cbranch_scc1 {tag}_skip
    v_lshlrev_b32 v{vT}, 1, v{vL16}
    ''')
    for w in range(1, 4):
        a(f'ds_read_b128 {vr(OTM+8*(w-1),4)}, v{vT} offset:{lds+w*2048}')
        a(f'ds_read_b128 {vr(OTM+8*(w-1)+4,4)}, v{vT} offset:{lds+w*2048+16}')
    for w in range(1, 4):
        for i in range(8): a(f'v_add_f32 v{OACC+i}, v{OACC+i}, v{OTM+8*(w-1)+i}')
    for i in range(4):
        a(f'v_cvt_pk_bf16_f32 v{OTM+i}, v{OACC+i}, v{OACC+4+i}')
    for i in range(4):
        a(f'v_lshlrev_b32 v{OTM+8+2*i}, 16, v{OTM+i}')
        a(f'v_and_b32 v{OTM+9+2*i}, 0xffff0000, v{OTM+i}')
    a(f'''
    v_lshrrev_b32 v{vT}, 4, v{vL16}
    v_and_b32 v{vT2}, 15, v{vT}
    v_lshlrev_b32 v{vT2}, 12, v{vT2}
    v_lshrrev_b32 v{vT}, 4, v{vT}
    v_lshl_add_u32 v{vT2}, v{vT}, 5, v{vT2}
    s_lshl_b32 s{sT0}, s{sUN}, 16
    s_lshl_b32 s{sT1}, s{sCB}, 7
    s_add_u32 s{sT0}, s{sT0}, s{sT1}
    buffer_store_dwordx4 {vr(OTM+8,4)}, v{vT2}, {sr(S_OUT,4)}, s{sT0} offen
    buffer_store_dwordx4 {vr(OTM+12,4)}, v{vT2}, {sr(S_OUT,4)}, s{sT0} offen offset:16
    ''')
    a.label(f'{tag}_skip')
    a('@assume_lg_empty')

def gen_o_test():
    from gen_chain import HEADER, FOOTER, NAME, emit_elect
    a = Asm()
    emit_elect(a)
    setup_lane(a)
    srd(a, S_OUT, L.ARG['out'], 2048*1024*4)
    a(f'''
    s_and_b32 s{sCB}, s2, 15
    s_lshr_b32 s{sUN}, s2, 4
    ''')
    oproj_load_weights(a)
    for k in range(8):
        oproj_unit_loads(a)
        oproj_unit_compute(a, k & 1, f'O{k}')
        a(f's_add_u32 s{sUN}, s{sUN}, 16')
    a('s_waitcnt vmcnt(0)')
    a.label('L_end')
    a('s_endpgm')
    body = a.finalize()
    open('o_test.s', 'w').write(HEADER.format(name=NAME) + body + FOOTER.format(name=NAME))
    print('oproj instructions', a.count())
gen_o_test() if __name__ == '__main__' else None

S_BX = 12
def s1_task(a, tag):
    srd(a, S_X, L.ARG['B_x'], 2097152)
    srd(a, S_M, L.ARG['B_B_re'], 524288)
    srd(a, S_M2, L.ARG['B_B_im'], 524288)
    a(f's_lshl_b32 s{sA}, s{sG}, 7')
    load_xtile(a, sA)
    a(f'''
    v_lshrrev_b32 v{vT}, 4, v{vL16}
    v_and_b32 v{vT2}, 15, v{vT}
    v_lshlrev_b32 v{vWA}, 10, v{vT2}
    v_lshrrev_b32 v{vT}, 4, v{vT}
    v_lshl_add_u32 v{vWA}, v{vT}, 4, v{vWA}
    s_lshl_b32 s{sWO}, s{sCB}, 7
    s_lshl_b32 s{sT0}, s{sWV}, 5
    s_add_u32 s{sB}, s{sWO}, s{sT0}
    s_lshl_b32 s{sWO}, s{sB}, 10
    ''')
    def issue(ks, raw):
        out = []
        for t in range(4):
            pb, c = t >> 1, t & 1
            out.append(f's_add_u32 s{sT0}, s{sWO}, {pb*16*1024 + ks*64}')
            out.append(f'buffer_load_dwordx4 {vr(raw+4*t,4)}, v{vWA}, {sr(S_M2 if c else S_M,4)}, s{sT0} offen')
        return out
    gemm128x64(a, 16, issue, lambda raw, wf: [], True, direct=True)
    a(f'''
    v_lshrrev_b32 v{vT}, 4, v{vL16}
    v_and_b32 v{vT2}, 15, v{vT}
    v_lshlrev_b32 v{vT2}, 12, v{vT2}
    v_lshrrev_b32 v{vT}, 4, v{vT}
    v_lshl_add_u32 v{vT2}, v{vT}, 5, v{vT2}
    s_lshl_b32 s{sDST}, s{sG}, 19
    s_lshl_b32 s{sT0}, s{sB}, 3
    s_add_u32 s{sDST}, s{sDST}, s{sT0}
    s_add_u32 s{sDST}, s{sDST}, {L.UB}
    ''')
    n = 0
    for r in range(8):
        for pb in range(2):
            b = EP + (n % 4)*8; n += 1
            for i in range(4):
                acc_read(a, b+2*i, (r*4+2*pb)*4+i)
                acc_read(a, b+2*i+1, (r*4+2*pb+1)*4+i)
            a(f's_add_u32 s{sT0}, s{sDST}, {r*16*4096 + pb*128}')
            a(f'buffer_store_dwordx4 {vr(b,4)}, v{vT2}, {WS}, s{sT0} offen sc1')
            a(f'buffer_store_dwordx4 {vr(b+4,4)}, v{vT2}, {WS}, s{sT0} offen offset:16 sc1')
    a('s_waitcnt vmcnt(0) lgkmcnt(0)')
    a('s_barrier')
    a('@assume_drained')

LR, LI, CR, CI, PR, PI, GR, GI, TA_, TB_, TC_, TD_ = range(8, 20)
vP8 = 20
UREG = 64
def s5_params(a):
    srd(a, S_M, L.ARG['B_Lambda_re'], 1024)
    srd(a, S_M2, L.ARG['B_Lambda_im'], 1024)
    srd(a, S_X, L.ARG['B_log_dt'], 1024)
    a(f'''
    s_lshl_b32 s{sT0}, s{sCB}, 8
    v_add_u32 v{vT}, s{sT0}, v0
    v_lshlrev_b32 v{vP8}, 3, v{vT}
    v_lshlrev_b32 v{vT}, 1, v{vT}
    buffer_load_ushort v{TA_}, v{vT}, {sr(S_M,4)}, 0 offen
    buffer_load_ushort v{TB_}, v{vT}, {sr(S_M2,4)}, 0 offen
    buffer_load_ushort v{TC_}, v{vT}, {sr(S_X,4)}, 0 offen
    v_lshlrev_b32 v{TA_}, 16, v{TA_}
    v_lshlrev_b32 v{TB_}, 16, v{TB_}
    v_lshlrev_b32 v{TC_}, 16, v{TC_}
    v_mul_f32 v{TC_}, 0x3fb8aa3b, v{TC_}
    v_exp_f32 v{TC_}, v{TC_}
    s_nop 0
    v_cvt_pk_bf16_f32 v{TC_}, v{TC_}, v{TC_}
    v_lshlrev_b32 v{TC_}, 16, v{TC_}
    v_mul_f32 v{TD_}, v{TC_}, v{TA_}
    v_mul_f32 v{GR}, v{TC_}, v{TB_}
    v_mul_f32 v{TD_}, 0x3fb8aa3b, v{TD_}
    v_exp_f32 v{TD_}, v{TD_}
    v_mul_f32 v{GR}, 0.15915494, v{GR}
    v_rndne_f32 v{GI}, v{GR}
    v_sub_f32 v{GR}, v{GR}, v{GI}
    v_cos_f32 v{LR}, v{GR}
    v_sin_f32 v{LI}, v{GR}
    s_nop 0
    v_mul_f32 v{LR}, v{LR}, v{TD_}
    v_mul_f32 v{LI}, v{LI}, v{TD_}
    v_add_f32 v{GR}, -1.0, v{LR}
    v_mul_f32 v{GI}, v{TA_}, v{TA_}
    v_fma_f32 v{GI}, v{TB_}, v{TB_}, v{GI}
    v_rcp_f32 v{GI}, v{GI}
    v_mul_f32 v{CR}, v{GR}, v{TA_}
    v_fma_f32 v{CR}, v{LI}, v{TB_}, v{CR}
    v_mul_f32 v{CI}, v{LI}, v{TA_}
    v_fma_f32 v{CI}, -v{GR}, v{TB_}, v{CI}
    v_mul_f32 v{CR}, v{CR}, v{GI}
    v_mul_f32 v{CI}, v{CI}, v{GI}
    v_mov_b32 v{PR}, v{LR}
    v_mov_b32 v{PI}, v{LI}
    ''')
    for k in range(6):
        a(f'''
        v_mul_f32 v{TA_}, v{PI}, v{PI}
        v_mul_f32 v{TB_}, v{PR}, v{PI}
        v_fma_f32 v{PR}, v{PR}, v{PR}, -v{TA_}
        v_add_f32 v{PI}, v{TB_}, v{TB_}
        ''')

def cstep(a, xr, xi, ur, ui):
    a(f'''
    v_fma_f32 v{TA_}, -v{xi}, v{GI}, v{ur}
    v_fma_f32 v{TB_}, v{xi}, v{GR}, v{ui}
    v_fma_f32 v{GR}, v{xr}, v{GR}, v{TA_}
    v_fma_f32 v{GI}, v{xr}, v{GI}, v{TB_}
    ''')

def u_loads(a, half):
    a(f'''
    s_lshl_b32 s{sA}, s{sG}, 18
    s_add_u32 s{sA}, s{sA}, {L.UB + half*32*4096}
    ''')
    for k in range(32):
        a(f's_add_u32 s{sT0}, s{sA}, {k*4096}')
        a(f'buffer_load_dwordx2 {vr(UREG+half*64+2*k,2)}, v{vP8}, {WS}, s{sT0} offen')

def s2_task(a):
    u_loads(a, 0)
    s5_params_done = True
    a(f'v_mov_b32 v{GR}, 0'); a(f'v_mov_b32 v{GI}, 0')
    for k in range(32):
        cstep(a, LR, LI, UREG+2*k, UREG+2*k+1)
        if k == 0: u_loads(a, 1)
    for k in range(32): cstep(a, LR, LI, UREG+64+2*k, UREG+64+2*k+1)
    a(f'''
    s_lshl_b32 s{sT0}, s{sG}, 12
    s_add_u32 s{sT0}, s{sT0}, {L.EB}
    v_mov_b32 v{TC_}, v{GR}
    v_mov_b32 v{TD_}, v{GI}
    buffer_store_dwordx2 {vr(TC_,2)}, v{vP8}, {WS}, s{sT0} offen sc1
    s_waitcnt vmcnt(0)
    ''')

def s3_task(a, tag):
    EREG = 192
    for c in range(31):
        a(f'buffer_load_dwordx2 {vr(EREG+2*c,2)}, v{vP8}, {WS}, s{sD} offen offset:{(c*4096) % 4096}') if False else None
    a(f's_mov_b32 s{sD}, {L.EB}')
    for c in range(31):
        a(f's_add_u32 s{sT0}, s{sD}, {c*4096}')
        a(f'buffer_load_dwordx2 {vr(EREG+2*c,2)}, v{vP8}, {WS}, s{sT0} offen')
    u_loads(a, 0)
    a(f'v_mov_b32 v{GR}, 0'); a(f'v_mov_b32 v{GI}, 0')
    a('s_waitcnt vmcnt(32)')
    for c in range(31):
        a(f's_cmp_le_u32 s{sG}, {c}')
        a(f's_cbranch_scc1 {tag}_carry')
        cstep(a, PR, PI, EREG+2*c, EREG+2*c+1)
    a.label(f'{tag}_carry')
    a(f'''
    v_lshrrev_b32 v{vT}, 1, v{vP8}
    s_lshl_b32 s{sB}, s{sG}, 17
    s_add_u32 s{sB}, s{sB}, {L.HB}
    ''')
    for half in range(2):
        for k in range(32):
            cstep(a, LR, LI, UREG+half*64+2*k, UREG+half*64+2*k+1)
            if half == 0 and k == 0: u_loads(a, 1)
            a(f'''
            v_mul_f32 v{TC_}, v{CR}, v{GR}
            v_mul_f32 v{TD_}, v{CR}, v{GI}
            v_fma_f32 v{TC_}, -v{CI}, v{GI}, v{TC_}
            v_fma_f32 v{TD_}, v{CI}, v{GR}, v{TD_}
            v_cvt_pk_bf16_f32 v{vT2}, v{TC_}, -v{TD_}
            s_add_u32 s{sT0}, s{sB}, {(half*32+k)*2048}
            buffer_store_dword v{vT2}, v{vT}, {WS}, s{sT0} offen sc1
            ''')
    a('s_waitcnt vmcnt(0)')

def s4_task(a, tag):
    a(f'''
    s_add_u32 s{S_X}, s{S_WS}, {L.HB}
    s_addc_u32 s{S_X+1}, s{S_WS+1}, 0
    s_mov_b32 s{S_X+2}, {2048*2048}
    s_mov_b32 s{S_X+3}, 0x20000
    ''')
    srd(a, S_M, L.ARG['B_C_re'], 524288)
    srd(a, S_M2, L.ARG['B_C_im'], 524288)
    a(f'''
    v_lshrrev_b32 v{vT}, 4, v{vL16}
    v_and_b32 v{vT2}, 15, v{vT}
    v_lshlrev_b32 v{vWA}, 10, v{vT2}
    v_lshrrev_b32 v{vT}, 4, v{vT}
    v_lshl_add_u32 v{vWA}, v{vT}, 3, v{vWA}
    s_lshl_b32 s{sB}, s{sCB}, 8
    s_lshl_b32 s{sT0}, s{sWV}, 6
    s_add_u32 s{sB}, s{sB}, s{sT0}
    s_lshl_b32 s{sWO}, s{sB}, 10
    ''')
    def mk_issue(kh):
        def issue(ks, raw):
            out = []
            for t in range(4):
                out.append(f's_add_u32 s{sT0}, s{sWO}, {t*16*1024 + (kh*16+ks)*32}')
                out.append(f'buffer_load_dwordx2 {vr(raw+4*t,2)}, v{vWA}, {sr(S_M,4)}, s{sT0} offen')
                out.append(f'buffer_load_dwordx2 {vr(raw+4*t+2,2)}, v{vWA}, {sr(S_M2,4)}, s{sT0} offen')
            return out
        return issue
    def conv(raw, wf):
        out = []
        for t in range(4):
            for q in range(4):
                out.append(f'v_perm_b32 v{wf+4*t+q}, v{raw+4*t+2+(q>>1)}, v{raw+4*t+(q>>1)}, s{sPHI if q & 1 else sPLO}')
        return out
    for kh in range(2):
        a(f's_lshl_b32 s{sA}, s{sG}, 7')
        if kh: a('s_barrier')
        load_xtile(a, sA, koff_bytes=kh*1024, row_bytes=2048)
        gemm128x64(a, 16, mk_issue(kh), conv, True, zero_acc=(kh == 0))
        a('s_waitcnt vmcnt(0) lgkmcnt(0)')
    srd(a, S_X, L.ARG['B_x'], 2097152)
    srd(a, S_M, L.ARG['B_Dskip'], 1024)
    a(f'''
    v_lshrrev_b32 v{vT}, 4, v{vL16}
    v_and_b32 v{vT2}, 15, v{vT}
    v_lshrrev_b32 v{vT}, 4, v{vT}
    v_lshlrev_b32 v{vXA}, 10, v{vT2}
    v_lshl_add_u32 v{vXA}, v{vT}, 3, v{vXA}
    v_lshlrev_b32 v{vWA}, 12, v{vT2}
    v_lshl_add_u32 v{vWA}, v{vT}, 4, v{vWA}
    v_lshlrev_b32 v{vT3}, 3, v{vT}
    s_lshl_b32 s{sA}, s{sG}, 7
    s_lshl_b32 s{sC_}, s{sA}, 10
    s_lshl_b32 s{sT0}, s{sB}, 1
    s_add_u32 s{sC_}, s{sC_}, s{sT0}
    s_lshl_b32 s{sD}, s{sA}, 12
    s_lshl_b32 s{sT0}, s{sB}, 2
    s_add_u32 s{sD}, s{sD}, s{sT0}
    s_add_u32 s{sD}, s{sD}, 2048
    s_lshl_b32 s{sWO}, s{sB}, 1
    ''')
    DS_ = 64
    for t in range(4):
        a(f's_add_u32 s{sT0}, s{sWO}, {t*32}')
        a(f'buffer_load_dwordx2 {vr(96+2*t,2)}, v{vT3}, {sr(S_M,4)}, s{sT0} offen')
    for t in range(4):
        for q in range(2):
            a(f'v_lshlrev_b32 v{DS_+4*t+2*q}, 16, v{96+2*t+q}')
            a(f'v_and_b32 v{DS_+4*t+2*q+1}, 0xffff0000, v{96+2*t+q}')
    XR = 128
    for r in range(8):
        for t in range(4):
            a(f's_add_u32 s{sT0}, s{sC_}, {r*16*1024 + t*32}')
            a(f'buffer_load_dwordx2 {vr(XR+(r*4+t)*2,2)}, v{vXA}, {sr(S_X,4)}, s{sT0} offen')
    n = 0
    for r in range(8):
        for t in range(4):
            b = EP + (n % 4)*8; n += 1
            x0 = XR+(r*4+t)*2
            for q in range(2):
                a(f'v_lshlrev_b32 v{b+4+2*q}, 16, v{x0+q}')
                a(f'v_and_b32 v{b+5+2*q}, 0xffff0000, v{x0+q}')
            for i in range(4): a(f'v_mul_f32 v{b+4+i}, v{b+4+i}, v{DS_+4*t+i}')
            for q in range(2): a(f'v_cvt_pk_bf16_f32 v{x0+q}, v{b+4+2*q}, v{b+5+2*q}')
            for q in range(2):
                a(f'v_lshlrev_b32 v{b+4+2*q}, 16, v{x0+q}')
                a(f'v_and_b32 v{b+5+2*q}, 0xffff0000, v{x0+q}')
            for i in range(4):
                acc_read(a, b+i, (r*4+t)*4+i)
                a(f'v_fma_f32 v{b+i}, v{b+i}, 2.0, v{b+4+i}')
            a(f's_add_u32 s{sT0}, s{sD}, {r*16*4096 + t*64}')
            a(f'buffer_store_dwordx4 {vr(b,4)}, v{vWA}, {sr(S_OUT,4)}, s{sT0} offen')
    a('s_waitcnt vmcnt(0) lgkmcnt(0)')
    a('s_barrier')
    a('@assume_drained')

def gen_s5_test():
    from gen_chain import FOOTER, NAME, emit_elect
    names = ['s5a_kernel', 's5b_kernel', 's5c_kernel', 's5d_kernel']
    txt = ''.join(f'; @launch kernel={n} grid=(256,1,1) block=(256,1,1) lds=163840\n' for n in names)
    txt += '.amdgcn_target "amdgcn-amd-amdhsa--gfx950"\n.text\n'
    for idx, n in enumerate(names):
        a = Asm()
        a(f'''
        s_cmp_ge_u32 s2, {64 if idx < 3 else 32}
        s_cbranch_scc1 L_end{idx}
        v_lshrrev_b32 v1, 6, v0
        s_nop 0
        v_readfirstlane_b32 s{sWV}, v1
        ''')
        srd(a, S_WS, L.ARG['ws'], L.WS_BYTES)
        srd(a, S_OUT, L.ARG['out'], 2048*1024*4)
        setup_lane(a)
        if idx == 0:
            a(f's_lshr_b32 s{sG}, s2, 2\ns_and_b32 s{sCB}, s2, 3'); s1_task(a, 'S1')
        elif idx == 1:
            a(f's_lshr_b32 s{sG}, s2, 1\ns_and_b32 s{sCB}, s2, 1'); s5_params(a); s2_task(a)
        elif idx == 2:
            a(f's_lshr_b32 s{sG}, s2, 1\ns_and_b32 s{sCB}, s2, 1'); s5_params(a); s3_task(a, 'S3')
        else:
            a(f's_lshr_b32 s{sG}, s2, 1\ns_and_b32 s{sCB}, s2, 1'); s4_task(a, 'S4')
        a.label(f'L_end{idx}')
        a('s_endpgm')
        txt += f'.globl {n}\n.p2align 8\n.type {n},@function\n{n}:\n' + a.finalize()
    for n in names: txt += FOOTER.format(name=n)
    open('s5_test.s', 'w').write(txt)
    print('s5 test written')
gen_s5_test() if __name__ == '__main__' else None
```

```python
KX   = 0x0000000
VX   = 0x1000000
QX   = 0x2000000
OX   = 0x3000000
KM   = 0x4000000
VM   = 0x4800000
RS   = 0x4C00000
RSH  = 2304
RSW_STRIDE = 32*2304
RS_SLOT = 0x80000
AG   = 0x4D80000
MEMS = 0x4E00000
FLAGS= 0x4F00000
UB   = 0x5400000
HB   = 0x5C00000
EB   = 0x6000000
WS_BYTES = 0x10000000
ARG = dict(A_x=0, A_mem0=8, A_Wq=16, A_Wk=24, A_Wv=32, A_Wo=40, A_seg_len=48, B_x=56, B_Lambda_re=64, B_Lambda_im=72,
           B_B_re=80, B_B_im=88, B_C_re=96, B_C_im=104, B_log_dt=112, B_Dskip=120, out=128, dbg=136, ws=144)
L_MEM = 0
L_KX  = 8192
L_VX  = 16384
L_Q   = 24576
L_K   = 24576 + 2176
L_O   = 24576 + 2*2176
L_W   = 32768
QROW  = 272
```

```python
from asmlib import Asm
import layout as L
import gen_chain as C
from gen_chain import srd, sr, sWV, sH, S_WS, FOOTER, emit_elect
from gen_work import *
C.CFG.update(dbg_mems=False, rs_gap=1, rs_delay=1)
names = ['proj_kernel', 'chain_kernel', 'attn_kernel', 'oproj_kernel']
txt = ''.join(f'; @launch kernel={n} grid=(256,1,1) block=(256,1,1) lds=163840\n' for n in names)
txt += '.amdgcn_target "amdgcn-amd-amdhsa--gfx950"\n.text\n'
def common(a, end):
    a(f'''
    s_cmp_ge_u32 s2, 256
    s_cbranch_scc1 {end}
    v_lshrrev_b32 v1, 6, v0
    s_nop 0
    v_readfirstlane_b32 s{sWV}, v1
    ''')
    srd(a, S_WS, L.ARG['ws'], L.WS_BYTES)
    srd(a, S_OUT, L.ARG['out'], 2048*1024*4)
    setup_lane(a)
def kern(n, a):
    return f'.globl {n}\n.p2align 8\n.type {n},@function\n{n}:\n' + a.finalize()
a = Asm(); common(a, 'K1_end')
srd(a, S_X, L.ARG['A_x'], 2097152)
for rnd in range(2):
    a(f's_add_u32 s{sT0}, s2, {256*rnd}\ns_lshr_b32 s{sG}, s{sT0}, 5\ns_and_b32 s{sHD}, s{sT0}, 31')
    emit_p_task(a, f'P{rnd}', False)
a(f's_lshr_b32 s{sG}, s2, 4\ns_and_b32 s{sHD}, s2, 15')
emit_p_task(a, 'PQ', True)
a('s_cmp_ge_u32 s2, 64\ns_cbranch_scc1 K1_end')
a(f's_lshr_b32 s{sG}, s2, 2\ns_and_b32 s{sCB}, s2, 3'); s1_task(a, 'S1')
a.label('K1_end'); a('s_endpgm')
txt += kern(names[0], a)
a = Asm()
emit_elect(a)
a(f'''
s_cmp_lg_u32 s3, 0
s_cbranch_scc1 K2_work
s_cmp_ge_u32 s{sH}, 32
s_cbranch_scc1 L_end
''')
C.emit_chain(a)
a('s_branch L_end')
a.label('K2_work')
a('@assume_drained')
a(f'''
s_sub_u32 s{sT0}, s3, 1
s_lshl_b32 s{sT0}, s{sT0}, 5
s_add_u32 s{sT0}, s{sT0}, s{sH}
s_cmp_ge_u32 s{sT0}, 64
s_cbranch_scc1 L_end
s_lshr_b32 s{sG}, s{sT0}, 1
s_and_b32 s{sCB}, s{sT0}, 1
''')
setup_lane(a); s5_params(a); s2_task(a)
a.label('L_end'); a('s_endpgm')
txt += kern(names[1], a)
a = Asm(); common(a, 'K3_end')
attn_setup(a)
for k in range(2):
    a(f's_lshl_b32 s{sT0}, s2, 2\ns_add_u32 s{sT0}, s{sT0}, s{sWV}\ns_add_u32 s{sT0}, s{sT0}, {1024*k}\ns_lshr_b32 s{sSEG}, s{sT0}, 5\ns_and_b32 s{sHD}, s{sT0}, 31')
    attn_loads_pre(a); attn_loads_post(a); attn_compute(a)
a('s_waitcnt vmcnt(0)')
a('s_cmp_ge_u32 s2, 64\ns_cbranch_scc1 K3_end')
a(f's_lshr_b32 s{sG}, s2, 1\ns_and_b32 s{sCB}, s2, 1'); s5_params(a); s3_task(a, 'S3')
a.label('K3_end'); a('s_endpgm')
txt += kern(names[2], a)
a = Asm(); common(a, 'K4_end')
a(f's_and_b32 s{sCB}, s2, 15\ns_lshr_b32 s{sUN}, s2, 4')
oproj_load_weights(a)
for k in range(8):
    oproj_unit_loads(a); oproj_unit_compute(a, k & 1, f'O{k}'); a(f's_add_u32 s{sUN}, s{sUN}, 16')
a('s_waitcnt vmcnt(0) lgkmcnt(0)\ns_barrier')
a('@assume_drained')
a('s_cmp_ge_u32 s2, 32\ns_cbranch_scc1 K4_end')
a(f's_lshr_b32 s{sG}, s2, 1\ns_and_b32 s{sCB}, s2, 1'); s4_task(a, 'S4')
a.label('K4_end'); a('s_endpgm')
txt += kern(names[3], a)
for n in names: txt += FOOTER.format(name=n)
hdr = open('concat_heads__memory_aug_recurrent_mem_tr__ssm_conv_s5__prompt.s.ref').read().split('; Override launch geometry')[0]
open('v0.s', 'w').write(hdr + txt)
print('written', len(txt))
```

```python
import re

REG_RE = re.compile(r'^(-?)(\|?)([vas])(?:(\d+)|\[(\d+):(\d+)\])(\|?)$')

def parse_reg(tok):
    t = tok.strip()
    t = re.sub(r'^(neg|abs)\((.*)\)$', r'\2', t)
    m = REG_RE.match(t)
    if m:
        f = m.group(3)
        if m.group(4) is not None:
            return [(f, int(m.group(4)))]
        return [(f, i) for i in range(int(m.group(5)), int(m.group(6)) + 1)]
    if t == 'vcc': return [('s', 106), ('s', 107)]
    if t == 'vcc_lo': return [('s', 106)]
    if t == 'vcc_hi': return [('s', 107)]
    if t == 'exec': return [('s', 126), ('s', 127)]
    if t == 'm0': return [('s', 124)]
    return None

def split_ops(s):
    ops, cur, depth = [], '', 0
    for ch in s:
        if ch in '[(': depth += 1
        if ch in '])': depth -= 1
        if ch == ',' and depth == 0:
            ops.append(cur.strip()); cur = ''
        else:
            cur += ch
    if cur.strip(): ops.append(cur.strip())
    return ops

TRANS = ('v_exp_f32', 'v_log_f32', 'v_rcp_f32', 'v_rsq_f32', 'v_sqrt_f32', 'v_sin_f32', 'v_cos_f32', 'v_rcp_iflag_f32')

class Ins:
    __slots__ = ('text', 'mn', 'ops', 'mods', 'rd', 'wr', 'kind', 'passes', 'srcC', 'srcAB', 'dreg', 'comment', 'lds_dma', 'width')
    def __init__(self, text):
        self.text = text
        t = text.split(';')[0].split('//')[0].strip()
        parts = t.split(None, 1)
        self.mn = parts[0]
        rest = parts[1] if len(parts) > 1 else ''
        ops = split_ops(rest)
        mods = []
        cl = []
        for o in ops:
            w = o.split()
            cl.append(w[0]); mods += w[1:]
        self.ops, self.mods = cl, mods
        self.rd, self.wr = [], []
        self.kind = None; self.passes = 0; self.srcC = []; self.srcAB = []; self.dreg = []; self.lds_dma = False; self.width = 0
        self.classify()
    def R(self, i):
        if i >= len(self.ops): return []
        return parse_reg(self.ops[i]) or []
    def classify(self):
        mn, n = self.mn, len(self.ops)
        allr = lambda a, b=None: [r for i in range(a, b if b is not None else n) for r in self.R(i)]
        if mn.startswith('v_mfma') or mn.startswith('v_smfmac'):
            self.kind = 'mfma'
            self.passes = 8 if '32x32' in mn else 4
            self.dreg = self.R(0); self.wr = list(self.dreg)
            if mn.startswith('v_smfmac'):
                self.srcC = list(self.dreg); self.srcAB = self.R(1) + self.R(2) + self.R(3)
            else:
                self.srcC = self.R(3); self.srcAB = self.R(1) + self.R(2)
            self.rd = self.srcAB + self.srcC
        elif mn.startswith('v_'):
            self.kind = 'valu'
            if mn.startswith('v_cmp'):
                self.wr = self.R(0); self.rd = allr(1)
                if mn.startswith('v_cmpx'): self.wr += [('s', 126), ('s', 127)]
            elif mn.startswith('v_permlane') and 'swap' in mn:
                self.wr = self.R(0) + self.R(1); self.rd = list(self.wr)
            elif mn.startswith(('v_add_co', 'v_sub_co', 'v_addc_co', 'v_subb_co', 'v_subrev_co')):
                self.wr = self.R(0) + self.R(1); self.rd = allr(2)
            elif mn.startswith(('v_readfirstlane', 'v_readlane')):
                self.wr = self.R(0); self.rd = allr(1)
            elif mn.startswith(('v_fmac', 'v_pk_fmac', 'v_writelane')):
                self.wr = self.R(0); self.rd = allr(0)
            elif mn.startswith('v_nop'):
                pass
            else:
                self.wr = self.R(0); self.rd = allr(1)
                if mn.startswith('v_cndmask') and n == 3: self.rd += [('s', 106), ('s', 107)]
            if any(m.startswith(('row_', 'quad_perm', 'wave_', 'row_bcast')) for m in self.mods):
                self.kind = 'valu'
        elif mn.startswith('ds_'):
            self.kind = 'ds'
            if mn.startswith(('ds_read', 'ds_bpermute', 'ds_permute', 'ds_swizzle')):
                self.wr = self.R(0); self.rd = allr(1)
            else:
                self.rd = allr(0)
        elif mn.startswith(('buffer_', 'global_')):
            self.kind = 'vmem'
            w = re.search(r'x(\d)$', mn)
            self.width = int(w.group(1)) if w else 1
            if mn.startswith('buffer_load') and 'lds' in self.mods:
                self.lds_dma = True; self.rd = allr(0) + [('s', 124)]
            elif mn.startswith('global_load_lds'):
                self.lds_dma = True; self.rd = allr(0) + [('s', 124)]
            elif '_load' in mn:
                self.wr = self.R(0); self.rd = allr(1)
            elif '_atomic' in mn:
                self.rd = allr(0)
                if 'sc0' in self.mods: self.wr = self.R(0) if mn.startswith('buffer') else []
                if 'sc0' in self.mods and mn.startswith('global'):
                    self.wr = self.R(0); self.rd = allr(1)
            elif mn in ('buffer_wbl2', 'buffer_inv'):
                pass
            else:
                self.rd = allr(0)
        elif mn.startswith('s_'):
            self.kind = 'salu'
            if mn.startswith(('s_load', 's_buffer_load')):
                self.kind = 'smem'; self.wr = self.R(0); self.rd = allr(1)
            elif mn in ('s_memtime', 's_memrealtime'):
                self.kind = 'smem'; self.wr = self.R(0)
            elif mn.startswith(('s_cmp', 's_bitcmp', 's_cbranch', 's_branch', 's_waitcnt', 's_barrier', 's_nop', 's_endpgm', 's_setprio', 's_sleep')):
                self.rd = allr(0)
                if mn in ('s_cbranch_vccz', 's_cbranch_vccnz'): self.rd += [('s', 106), ('s', 107)]
                if mn in ('s_cbranch_execz', 's_cbranch_execnz'): self.rd += [('s', 126), ('s', 127)]
            elif 'saveexec' in mn:
                self.wr = self.R(0) + [('s', 126), ('s', 127)]; self.rd = allr(1) + [('s', 126), ('s', 127)]
            else:
                self.wr = self.R(0); self.rd = allr(1)
                if mn.startswith(('s_addk', 's_mulk', 's_cmov')): self.rd += self.R(0)
        else:
            raise ValueError('unknown instr: ' + self.text)
    @property
    def is_dpp(self):
        return any(m.startswith(('row_', 'quad_perm', 'wave_')) for m in self.mods)
    @property
    def nstates(self):
        if self.mn == 's_nop': return int(self.ops[0], 0) + 1
        return 1

def need_states(p, c):
    n = 0
    pw = set(p.wr); cr = set(c.rd); cw = set(c.wr)
    vfile = lambda S: {r for r in S if r[0] in 'va'}
    sfile = lambda S: {r for r in S if r[0] == 's'}
    if p.kind == 'valu':
        vw = vfile(pw); sw = sfile(pw)
        if c.kind == 'mfma' and vw & cr: n = max(n, 2)
        if c.kind == 'valu':
            if vw & cr:
                if c.mn.startswith('v_permlane'): n = max(n, 2)
                if c.is_dpp: n = max(n, 2)
                if c.mn.startswith(('v_readlane', 'v_readfirstlane')): n = max(n, 1)
                if p.mn.replace('_e32', '').replace('_e64', '') in TRANS and c.mn.replace('_e32', '').replace('_e64', '') not in TRANS: n = max(n, 1)
                if any(m.startswith(('op_sel', 'dst_sel')) for m in p.mods): n = max(n, 1)
            if sw & cr:
                n = max(n, 4 if c.mn.startswith(('v_readlane', 'v_writelane')) else 2)
            if ('s', 126) in sw:
                n = max(n, 5 if c.is_dpp else (4 if c.mn.startswith(('v_readlane', 'v_readfirstlane', 'v_writelane', 'v_permlane')) else 0))
        if c.kind == 'mfma' and ('s', 126) in sw: n = max(n, 4)
        if c.kind == 'vmem' and sw & cr: n = max(n, 5)
        if c.kind in ('salu', 'smem') and sw & cr: n = max(n, 1)
    if p.kind == 'mfma':
        D = set(p.dreg)
        far = {4: 8, 8: 12}[p.passes]
        if c.kind == 'mfma':
            if D & set(c.srcAB): n = max(n, far)
            if D & set(c.srcC):
                if p.dreg == c.srcC and p.mn == c.mn: pass
                else: n = max(n, {4: 6, 8: 10}[p.passes])
            if D & set(c.dreg) and not (p.dreg == c.dreg):
                n = max(n, {4: 6, 8: 10}[p.passes])
            if p.dreg == c.dreg and not (D & set(c.srcC)):
                n = max(n, 0)
        elif c.kind == 'valu':
            if D & (cr | cw): n = max(n, far)
            if set(p.srcC) & cw: n = max(n, {4: 3, 8: 7}[p.passes])
        elif c.kind in ('vmem', 'ds'):
            if D & (cr | cw): n = max(n, far)
    if p.kind == 'vmem' and ('store' in p.mn or 'atomic' in p.mn) and p.width >= 3:
        data = set(p.R(0)) if p.mn.startswith('buffer') else set(p.R(1))
        if data & cw: n = max(n, 2 if c.kind == 'valu' else 1)
    if p.kind == 'salu' and ('s', 124) in pw:
        if c.lds_dma or c.mn.startswith('s_sendmsg'): n = max(n, 1)
    return n

class Asm:
    def __init__(self):
        self.time_model = True
        self.items = []
    def __call__(self, text):
        for line in text.split('\n'):
            s = line.strip()
            if not s or s.startswith(';'): continue
            if s.endswith(':'):
                self.items.append(('l', s[:-1]))
            elif s.startswith('.'):
                self.items.append(('r', s))
            elif s.startswith('@'):
                self.items.append(('d', s[1:]))
            else:
                self.items.append(('i', Ins(s)))
    def label(self, name): self.items.append(('l', name))
    def raw(self, text): self.items.append(('r', text))

    def insert_waits(self):
        out = []
        vm, lg = [], []
        marks = {}
        def wait(v=None, l=None):
            parts = []
            if v is not None: parts.append(f'vmcnt({min(v,63)})')
            if l is not None: parts.append(f'lgkmcnt({min(l,15)})')
            out.append(('i', Ins('s_waitcnt ' + ' '.join(parts))))
        def trim(q, k):
            return q[len(q) - k:] if (k and len(q) > k) else ([] if k == 0 else q)
        def apply_wait(ins):
            nonlocal vm, lg
            t = ins.text
            m = re.search(r'vmcnt\((\d+)\)', t)
            if m: vm = trim(vm, int(m.group(1)))
            m = re.search(r'lgkmcnt\((\d+)\)', t)
            if m:
                k = int(m.group(1))
                if k == 0 or not any(e[1] for e in lg): lg = trim(lg, k)
        def younger(q):
            d = {}
            for i, e in enumerate(q):
                for r in e[0]: d[r] = len(q) - 1 - i
            return d
        for it in self.items:
            if it[0] == 'd':
                d = it[1].split()
                if d[0] == 'assume_drained': vm, lg = [], []
                elif d[0] == 'assume_vm_empty': vm = []
                elif d[0] == 'assume_lg_empty': lg = []
                elif d[0] == 'wait_ds_writes':
                    idx = max([i for i, e in enumerate(lg) if e[2]], default=-1)
                    if idx >= 0:
                        n = len(lg) - 1 - idx
                        wait(None, n); lg = trim(lg, min(n, 15))
                elif d[0] == 'check_drained':
                    assert not any(e[0] for e in vm) and not any(e[0] for e in lg), f'pending loads at check_drained: vm={vm} lg={lg}'
                elif d[0] == 'loop_begin':
                    marks[d[1]] = (list(vm), list(lg))
                elif d[0] == 'loop_end':
                    v0, l0 = marks[d[1]]
                    for (qe, q0, nm) in ((vm, v0, 'vm'), (lg, l0, 'lgkm')):
                        ye, y0 = younger(qe), younger(q0)
                        for r, n in ye.items():
                            assert r in y0, f'loop {d[1]}: {nm} pending {r} at end but not at entry'
                            assert n >= y0[r], f'loop {d[1]}: {nm} pending {r}: younger at end {n} < at entry {y0[r]}'
                out.append(it); continue
            if it[0] != 'i':
                out.append(it); continue
            ins = it[1]
            if ins.mn == 's_waitcnt':
                apply_wait(ins); out.append(it); continue
            touch = set(ins.rd) | set(ins.wr)
            nv = nl = None
            for idx, q in enumerate(vm):
                if q[0] & touch: nv = len(vm) - 1 - idx
            for idx, q in enumerate(lg):
                if q[0] & touch: nl = len(lg) - 1 - idx
            if nl is not None and any(e[1] for e in lg): nl = 0
            if nv is not None or nl is not None:
                wait(nv, nl)
                if nv is not None: vm = trim(vm, min(nv, 63))
                if nl is not None: lg = trim(lg, min(nl, 15))
            if ins.kind == 'vmem' and ins.mn not in ('buffer_inv',):
                vm.append((set(ins.wr), False, False))
            elif ins.kind == 'ds':
                lg.append((set(ins.wr), False, ins.mn.startswith('ds_write')))
            elif ins.kind == 'smem':
                lg.append((set(ins.wr), True, False))
            out.append(it)
        self.items = out

    def fix_smem(self):
        pass

    def pad_hazards(self):
        items = self.items
        labels = {}
        def build_index():
            labels.clear()
            for i, it in enumerate(items):
                if it[0] == 'l': labels[it[1]] = i
        def required_nops(hist, ins):
            dist = 0; need = 0
            for k in range(len(hist) - 1, -1, -1):
                p = hist[k]
                n = need_states(p, ins)
                if n > 0:
                    d = dist
                    if p.kind == 'mfma' and self.time_model:
                        t = 0; free = p.passes
                        for q in hist[k+1:]:
                            if q.kind == 'mfma':
                                t = max(t + 1, free); free = t + q.passes
                            else:
                                t += q.nstates
                        tc = t + 1
                        if ins.kind == 'mfma': tc = max(tc, free)
                        d = max(d, tc - 1)
                    if n > d: need = max(need, n - d)
                dist += p.nstates
                if dist >= 24: break
            return need
        out = []; hist = []
        for it in items:
            if it[0] == 'i':
                ins = it[1]
                n = required_nops(hist, ins)
                while n > 0:
                    k = min(n, 16)
                    nop = Ins(f's_nop {k-1}')
                    out.append(('i', nop)); hist.append(nop); n -= k
                out.append(it); hist.append(ins)
                if ins.mn in ('s_branch', 's_endpgm'): hist = []
                hist = hist[-32:]
            else:
                out.append(it)
        self.items = items = out
        changed = True; guard = 0
        while changed:
            changed = False; guard += 1
            assert guard < 200
            build_index()
            for i, it in enumerate(items):
                if it[0] == 'i' and it[1].mn.startswith(('s_cbranch', 's_branch')):
                    tgt = it[1].ops[0]
                    if tgt not in labels: continue
                    hist = [x[1] for x in items[max(0, i - 40):i + 1] if x[0] == 'i']
                    j = labels[tgt] + 1
                    h = list(hist); seen = 0
                    while j < len(items) and seen < 24:
                        x = items[j]
                        if x[0] == 'i':
                            n = required_nops(h, x[1])
                            if n > 0:
                                items.insert(labels[tgt] + 1, ('i', Ins(f's_nop {min(n,16)-1}')))
                                changed = True
                                break
                            h.append(x[1]); seen += x[1].nstates
                            if x[1].mn in ('s_branch', 's_endpgm'): break
                        j += 1
                    if changed: break
    def text(self, compact=False):
        o = []
        for k, v in self.items:
            if k == 'i': o.append(('' if compact else '    ') + v.text)
            elif k == 'l': o.append(v + ':')
            elif k == 'r': o.append(v)
        return '\n'.join(o) + '\n'
    def finalize(self, compact=False):
        self.insert_waits()
        self.pad_hazards()
        return self.text(compact)
    def count(self):
        return sum(1 for k, _ in self.items if k == 'i')
```

```python
from asmlib import Asm
import layout as L

T, L16, AGP, QW, QR, OW, OR_, RSW, AGW, WL, IDX, RSR = range(12)
SEL = 12
AO = 16
X = 24
AQ, AK, AV = 40, 48, 56
POOL = 64
WKR = 128
WOR = 192
S_WS = 8
sH, sWV, sSTEP, sAGR, sAGWR, sAGRST = 16, 17, 18, 19, 20, 21
sRSW = 22
sONES = 24
sKX, sVX, sKM, sVM = 28, 29, 30, 31
sC = 36
sSPIN = 37
sT0, sT1, sT2, sT3 = 38, 39, 40, 41
sPW = 42
sMEMS = 46
sSAVE = 48
sPLO, sPHI = 50, 51
sDBG = 52
sLKX, sLVX = 33, 34
sKMO = 32
sRST = 26
sRSR = 60
STAMP0 = 70
sNONCE, sNRDY, sFCH = 69, 68, 47

CFG = dict(stamps=False, stamp_step=40, dbg_mems=True, nsteps=64, noreset=False)
STAMPS = []
HOOK = {}

def vr(a, n=1): return f'v{a}' if n == 1 else f'v[{a}:{a+n-1}]'
def ar(a, n=1): return f'a{a}' if n == 1 else f'a[{a}:{a+n-1}]'
def sr(a, n=1): return f's{a}' if n == 1 else f's[{a}:{a+n-1}]'

def wq(sg, t): return ar((sg*2+t)*8, 8)
def wv(sg, t): return ar(128+(sg*2+t)*8, 8)
def wk(sg, t):
    return vr(POOL+(sg*2+t)*8, 8) if sg < 4 else vr(WKR+((sg-4)*2+t)*8, 8)
WO_SLOT = {0: 48, 4: 56, 1: 24, 5: 32, 2: 40, 6: 0, 3: 8, 7: 16}
def wo(ko, t):
    return vr(POOL+WO_SLOT[ko*4+t], 8) if t < 4 else vr(WOR+(ko*4+t-4)*8, 8)
def oacc(t):
    return 40+4*t if t < 6 else X+4*(t-6)

WS = sr(S_WS, 4)

def srd(a, dst, argoff, nbytes):
    a(f'''
    s_load_dwordx2 {sr(dst,2)}, s[0:1], {argoff}
    s_waitcnt lgkmcnt(0)
    s_and_b32 {sr(dst+1)}, {sr(dst+1)}, 0xffff
    s_mov_b32 {sr(dst+2)}, {nbytes}
    s_mov_b32 {sr(dst+3)}, 0x20000
    ''')

def lane(a, dst):
    a(f'v_lshrrev_b32 v{dst}, 4, v{L16}')

def stamp(a, name):
    if not CFG['stamps']: return
    if CFG.get('only') and name not in CFG['only']: return
    i = len(STAMPS); STAMPS.append(name)
    assert STAMP0+1+2*i <= 101
    a.raw(f'    {"s_memrealtime" if CFG.get("rt") else "s_memtime"} s[{STAMP0+2*i}:{STAMP0+1+2*i}]')

def dump_stamps(a):
    if not CFG['stamps']: return
    n = len(STAMPS)
    a(f'''
    s_cmp_lg_u32 s{sSTEP}, {CFG['stamp_step']}
    s_cbranch_scc1 C_nostamp
    s_waitcnt lgkmcnt(0)
    s_lshl_b32 s{sT0}, s{sH}, 2
    s_add_u32 s{sT0}, s{sT0}, s{sWV}
    s_lshl_b32 s{sT0}, s{sT0}, 7
    s_add_u32 s{sT0}, s{sT0}, {L.FLAGS + 0x10000}
    v_mov_b32 v{X}, 0
    ''')
    for i in range(n):
        a(f'v_mov_b32 v{T}, s{STAMP0+2*i}')
        a(f'buffer_store_dword v{T}, v{X}, {WS}, s{sT0} offen offset:{4*i}')
    a.label('C_nostamp')

DUMPS = []
def dump(a, name, regs):
    if not CFG.get('dump'): return
    a(f'''
    s_lshl_b32 s{sT2}, s{sH}, 2
    s_add_u32 s{sT2}, s{sT2}, s{sWV}
    s_lshl_b32 s{sT2}, s{sT2}, 14
    s_add_u32 s{sT2}, s{sT2}, {L.FLAGS + 0x100000}
    ''')
    for r in regs:
        i = len(DUMPS); DUMPS.append(f'{name}{r}')
        a(f's_add_u32 s{sT3}, s{sT2}, {i*256}')
        a(f'buffer_store_dword v{r}, v{RSW}, {WS}, s{sT3} offen')

def emit_setup(a):
    T2 = X
    a(f'''
    v_and_b32 v{T2}, 63, v0
    v_lshlrev_b32 v{L16}, 4, v{T2}
    s_lshl_b32 s{sT0}, s{sWV}, 11
    v_add_u32 v{AGP}, s{sT0}, v{L16}
    ''')
    a(f'''
    v_lshrrev_b32 v{T}, 4, v{T2}
    v_mul_u32_u24 v{QW}, {2*L.QROW}, v{T}
    v_and_b32 v{T}, 15, v{T2}
    v_lshl_add_u32 v{QW}, v{T}, 3, v{QW}
    s_lshr_b32 s{sT0}, s{sWV}, 1
    s_lshl_b32 s{sT0}, s{sT0}, 7
    s_and_b32 s{sT1}, s{sWV}, 1
    s_lshl_b32 s{sT1}, s{sT1}, 2
    s_add_u32 s{sT0}, s{sT0}, s{sT1}
    v_add_u32 v{QW}, s{sT0}, v{QW}
    ''')
    a(f'''
    v_and_b32 v{T}, 7, v{T2}
    v_mul_u32_u24 v{QR}, {L.QROW}, v{T}
    v_lshrrev_b32 v{T}, 4, v{T2}
    v_lshl_add_u32 v{QR}, v{T}, 5, v{QR}
    ''')
    a(f'''
    s_add_u32 s{sT1}, s{sT0}, {L.L_O}
    v_add_u32 v{OW}, s{sT1}, v{QR}
    ''')
    a(f'''
    v_bfe_u32 v{T}, v{T2}, 2, 2
    v_lshlrev_b32 v{T}, 1, v{T}
    v_and_b32 v{OR_}, 1, v{T2}
    v_add_u32 v{T}, v{T}, v{OR_}
    v_mul_u32_u24 v{OR_}, {L.QROW}, v{T}
    v_lshrrev_b32 v{T}, 4, v{T2}
    v_lshl_add_u32 v{OR_}, v{T}, 5, v{OR_}
    v_bfe_u32 v{T}, v{T2}, 1, 1
    v_lshl_add_u32 v{OR_}, v{T}, 4, v{OR_}
    ''')
    a(f'''
    v_lshlrev_b32 v{RSW}, 2, v{T2}
    v_lshrrev_b32 v{T}, 4, v{T2}
    v_mul_u32_u24 v{RSR}, {L.RSH}, v{T}
    v_and_b32 v{T}, 15, v{T2}
    v_lshl_add_u32 v{RSR}, v{T}, 4, v{RSR}
    ''')
    a(f'''
    v_lshrrev_b32 v{T}, 4, v{T2}
    v_lshlrev_b32 v{AGW}, 6, v{T}
    v_bfe_u32 v{T}, v{T2}, 2, 1
    v_lshl_add_u32 v{AGW}, v{T}, 5, v{AGW}
    v_and_b32 v{T}, 1, v{T2}
    v_lshl_add_u32 v{AGW}, v{T}, 4, v{AGW}
    v_bfe_u32 v{T}, v{T2}, 1, 1
    v_lshl_add_u32 v{AGW}, v{T}, 3, v{AGW}
    ''')
    a(f'''
    s_lshl_b32 s{sT0}, s{sWV}, 15
    s_add_u32 s{sT0}, s{sT0}, {L.L_W}
    v_add_u32 v{WL}, s{sT0}, v{L16}
    ''')
    a(f'''
    v_bfe_u32 v{T}, v{T2}, 1, 1
    v_mov_b32 v{IDX}, 0x44444444
    v_cmp_eq_u32 vcc, 1, v{T}
    v_mov_b32 v{T}, 0xeeeeeeee
    v_cndmask_b32 v{IDX}, v{IDX}, v{T}, vcc
    ''')
    a(f'v_and_b32 v{T}, 7, v{T2}')
    for c in range(4):
        a(f'''
        v_mov_b32 v{SEL+c}, 0
        v_cmp_eq_u32 vcc, {2*c}, v{T}
        v_mov_b32 v{X+1}, 0x3f80
        v_cndmask_b32 v{SEL+c}, v{SEL+c}, v{X+1}, vcc
        v_cmp_eq_u32 vcc, {2*c+1}, v{T}
        v_mov_b32 v{X+1}, 0x3f800000
        v_cndmask_b32 v{SEL+c}, v{SEL+c}, v{X+1}, vcc
        ''')
    a(f'''
    s_mov_b32 s{sC}, 0x3e0293ee
    s_mov_b32 s{sONES}, 0x3f803f80
    s_mov_b32 s{sONES+1}, 0x3f803f80
    s_mov_b32 s{sSPIN}, 0x80000
    s_mov_b32 s{sPLO}, 0x05040100
    s_mov_b32 s{sPHI}, 0x07060302
    ''')

def emit_weights(a):
    VA, VB, T2 = 16, 17, 19
    TA, TB = 18, 52
    RAW = 64
    lane(a, T2)
    a(f'''
    v_bfe_u32 v{T}, v{T2}, 4, 1
    v_lshlrev_b32 v{T}, 3, v{T}
    v_lshrrev_b32 v{VA}, 5, v{T2}
    v_add_u32 v{T}, v{T}, v{VA}
    v_lshlrev_b32 v{T}, 13, v{T}
    v_and_b32 v{VA}, 15, v{T2}
    v_lshl_add_u32 v{VA}, v{VA}, 3, v{T}
    s_lshl_b32 s{sT0}, s{sH}, 8
    s_lshr_b32 s{sT1}, s{sWV}, 1
    s_lshl_b32 s{sT1}, s{sT1}, 7
    s_add_u32 s{sT0}, s{sT0}, s{sT1}
    s_and_b32 s{sT1}, s{sWV}, 1
    s_lshl_b32 s{sT1}, s{sT1}, 2
    s_add_u32 s{sT0}, s{sT0}, s{sT1}
    v_add_u32 v{VA}, s{sT0}, v{VA}
    ''')
    for p in range(4):
        a(f'''
        s_xor_b32 s{sPW+p}, s{sWV}, {p}
        s_lshl_b32 s{sPW+p}, s{sPW+p}, 20
        ''')
    a(f'''
    v_lshrrev_b32 v{T}, 5, v{T2}
    v_lshlrev_b32 v{T}, 4, v{T}
    v_bfe_u32 v{VB}, v{T2}, 4, 1
    v_lshl_add_u32 v{T}, v{VB}, 2, v{T}
    v_lshlrev_b32 v{T}, 10, v{T}
    v_and_b32 v{VB}, 15, v{T2}
    v_lshl_add_u32 v{VB}, v{VB}, 4, v{T}
    s_lshl_b32 s{sT0}, s{sH}, 17
    s_lshl_b32 s{sT1}, s{sWV}, 8
    s_add_u32 s{sT0}, s{sT0}, s{sT1}
    v_add_u32 v{VB}, s{sT0}, v{VB}
    ''')
    FR = 20
    groups = [(mat, sg, q0) for mat in ('k', 'q', 'v') for sg in range(8) for q0 in range(0, 8, 2)]
    NG = 16
    SRDW = {'k': sr(12, 4), 'q': sr(60, 4), 'v': sr(64, 4), 'o': sr(68, 4)}
    def issue(gi):
        mat, sg, q0 = groups[gi]
        base = RAW + (gi % NG)*4
        for k, qv in enumerate((q0, q0+1)):
            dconst = 64*((qv >> 1) & 1) + 16*(qv & 1) + 4*(sg & 1) + 2*(qv >> 2)
            for e in range(2):
                row = dconst + 32*e
                a(f'''
                s_add_u32 s{sT0}, s{sPW+(sg>>1)}, {row*8192}
                buffer_load_dword v{base+2*k+e}, v{VA}, {SRDW[mat]}, s{sT0} offen nt
                ''')
    def process(gi):
        mat, sg, q0 = groups[gi]
        base = RAW + (gi % NG)*4
        for k, qv in enumerate((q0, q0+1)):
            r0, r1 = base+2*k, base+2*k+1
            for t, sel in ((0, sPLO), (1, sPHI)):
                if mat == 'q' or mat == 'v':
                    dst = (0 if mat == 'q' else 128) + (sg*2+t)*8 + qv
                    tmp = TA if t == 0 else TB
                    a(f'v_perm_b32 v{tmp}, v{r1}, v{r0}, s{sel}')
                    a(f'v_accvgpr_write_b32 a{dst}, v{tmp}')
                elif sg >= 4:
                    a(f'v_perm_b32 v{WKR+((sg-4)*2+t)*8+qv}, v{r1}, v{r0}, s{sel}')
                else:
                    a(f'v_perm_b32 v{FR+t*8+qv}, v{r1}, v{r0}, s{sel}')
        if mat == 'k' and sg < 4 and q0 == 6:
            for t in range(2):
                f = sg*2+t
                a(f'ds_write_b128 v{WL}, {vr(FR+t*8,4)} offset:{f*2048}')
                a(f'ds_write_b128 v{WL}, {vr(FR+t*8+4,4)} offset:{f*2048+1024}')
    srd(a, 12, L.ARG['A_Wk'], 4194304)
    srd(a, 60, L.ARG['A_Wq'], 4194304)
    srd(a, 64, L.ARG['A_Wv'], 4194304)
    srd(a, 68, L.ARG['A_Wo'], 4194304)
    AHEAD = 15
    for gi in range(AHEAD): issue(gi)
    for gi in range(len(groups)):
        process(gi)
        if gi + AHEAD < len(groups): issue(gi + AHEAD)
    items = [(ko, qv) for ko in range(2) for qv in range(8)]
    FO = 20
    def issue_o(i):
        ko, qv = items[i]
        base = RAW + (i % 8)*8
        e0 = 64*ko + 32*(qv >> 2) + 8*(qv & 1) + 2*((qv >> 1) & 1)
        for e in range(2):
            a(f'''
            s_mov_b32 s{sT0}, {(e0+e)*1024}
            buffer_load_dwordx4 {vr(base+4*e,4)}, v{VB}, {SRDW['o']}, s{sT0} offen nt
            ''')
    def process_o(i):
        ko, qv = items[i]
        base = RAW + (i % 8)*8
        for c in range(4):
            for hi, sel in ((0, sPLO), (1, sPHI)):
                t = 2*c + hi
                dst = FO + t*8 + qv if t < 4 else WOR + (ko*4+t-4)*8 + qv
                a(f'v_perm_b32 v{dst}, v{base+4+c}, v{base+c}, s{sel}')
        if qv == 7:
            for t in range(4):
                f = ko*4+t
                a(f'ds_write_b128 v{WL}, {vr(FO+t*8,4)} offset:{16384+f*2048}')
                a(f'ds_write_b128 v{WL}, {vr(FO+t*8+4,4)} offset:{16384+f*2048+1024}')
    for i in range(7): issue_o(i)
    for i in range(len(items)):
        process_o(i)
        if i + 7 < len(items): issue_o(i + 7)
    a('s_waitcnt vmcnt(0) lgkmcnt(0)')

def poll_loop(a, name, loads, checks):
    a.label(f'{name}')
    for l in loads: a(l)
    a('s_waitcnt vmcnt(0)')
    c = list(checks)
    if len(c) == 2:
        a(f'v_max_u32 v{T}, v{c[0]}, v{c[1]}')
    else:
        a(f'v_max3_u32 v{T}, v{c[0]}, v{c[1]}, v{c[2]}')
        c = c[3:]
        while len(c) >= 2:
            a(f'v_max3_u32 v{T}, v{T}, v{c[0]}, v{c[1]}'); c = c[2:]
        if c: a(f'v_max_u32 v{T}, v{T}, v{c[0]}')
    a(f'''
    v_cmp_eq_u32 vcc, -1, v{T}
    s_cbranch_vccz {name}_ok
    s_cmp_eq_u32 s{sSPIN}, 0
    s_cbranch_scc1 {name}_ok
    s_sub_u32 s{sSPIN}, s{sSPIN}, 1
    s_branch {name}
    ''')
    a.label(f'{name}_ok')

def smf(a, acc, A, B):
    a(f'v_smfmac_f32_16x16x64_bf16 {vr(acc,4)}, {vr(A,4)}, {B}, v{IDX}')
def mf(a, D, A, B, C):
    a(f'v_mfma_f32_16x16x32_bf16 {vr(D,4)}, {vr(A,4)}, {vr(B,4)}, {C if C == "0" else vr(C,4)}')
def rd128(a, dst, addr, off):
    a(f'ds_read_b128 {vr(dst,4)}, v{addr} offset:{off}')

def zero(a, r0, n):
    for r in range(r0, r0+n, 2):
        a(f'v_mov_b64 {vr(r,2)}, 0')

def fin_qk(a, acc, ldsoff):
    a(f'v_pk_add_f32 {vr(acc,2)}, {vr(acc,2)}, {vr(acc+2,2)}')
    a(f'v_pk_add_f32 {vr(acc+4,2)}, {vr(acc+4,2)}, {vr(acc+6,2)}')
    a(f'v_cvt_pk_bf16_f32 v{acc}, v{acc}, v{acc+4}')
    a(f'v_cvt_pk_bf16_f32 v{acc+1}, v{acc+1}, v{acc+5}')
    a(f'ds_write_b32 v{QW}, v{acc} offset:{ldsoff}')
    a(f'ds_write_b32 v{QW}, v{acc+1} offset:{ldsoff+L.QROW}')

def prefetch_wk(a, fr=range(8)):
    for f in fr:
        rd128(a, POOL+f*8, WL, f*2048)
        rd128(a, POOL+f*8+4, WL, f*2048+1024)

def prefetch_wo(a, f):
    rd128(a, POOL+WO_SLOT[f], WL, 16384+f*2048)
    rd128(a, POOL+WO_SLOT[f]+4, WL, 16384+f*2048+1024)

def dma8(a, ldsbase, soff):
    for half in range(2):
        a(f's_mov_b32 m0, {ldsbase + half*4096}')
        if half:
            a(f's_add_u32 s{sT0}, s{soff}, 4096')
        so = f's{sT0}' if half else f's{soff}'
        for k in range(4):
            off = f' offset:{k*1024}' if k else ''
            a(f'buffer_load_dwordx4 v{L16}, {WS}, {so} offen{off} lds')

def dma2(a, ldsbase_s, soff):
    if CFG.get('nodma'): soff = sAGR
    a(f's_mov_b32 m0, s{ldsbase_s}')
    a(f'buffer_load_dwordx4 v{L16}, {WS}, s{soff} offen lds')
    a(f'buffer_load_dwordx4 v{L16}, {WS}, s{soff} offen offset:1024 lds')

def fin_out(a, t):
    b = oacc(t)
    a(f'v_pk_add_f32 {vr(b,2)}, {vr(b,2)}, {vr(b+2,2)}')
    a(f'v_cvt_pk_bf16_f32 v{b}, v{b}, v{b+1}')
    a(f'buffer_store_dword v{b}, v{RSW}, {WS}, s{sRSW} offen offset:{t*256}')

def barrier(a, name):
    a('@wait_ds_writes')
    a('s_barrier')
    stamp(a, name)

def spin_fail(a, back, ok):
    a(f'''
    s_cmp_eq_u32 s{sSPIN}, 0
    s_cbranch_scc1 {ok}
    s_sub_u32 s{sSPIN}, s{sSPIN}, 1
    s_branch {back}
    ''')

def kv_wait(a, tag, sneed, v1, v2):
    a.label(tag)
    a(f'''
    v_lshrrev_b32 v{v1}, 2, v{L16}
    v_and_b32 v{v1}, 60, v{v1}
    s_lshl_b32 s{sT1}, s{sH}, 6
    s_add_u32 s{sT1}, s{sT1}, {L.F_KV}
    buffer_load_dword v{v2}, v{v1}, {WS}, s{sT1} offen sc1
    s_waitcnt vmcnt(0)
    v_cmp_ne_u32 vcc, s{sNONCE}, v{v2}
    s_nop 1
    s_or_b32 s{sT1}, vcc_lo, 0x10000
    s_ff1_i32_b32 s{sNRDY}, s{sT1}
    s_cmp_lt_u32 s{sneed}, s{sNRDY}
    s_cbranch_scc1 {tag}_ok
    s_cmp_eq_u32 s{sSPIN}, 0
    s_cbranch_scc1 {tag}_ok
    s_sub_u32 s{sSPIN}, s{sSPIN}, 1
    s_sleep 8
    s_branch {tag}
    ''')
    a.label(f'{tag}_ok')

def get_nonce(a, tag, v1, v2, make=False):
    a(f'v_mov_b32 v{v1}, {L.DBG_NONCE}')
    a(f's_mov_b32 s{sT3}, 0x40000')
    a.label(tag)
    a(f'''
    global_load_dword v{v2}, v{v1}, {sr(sDBG,2)} sc1
    s_waitcnt vmcnt(0)
    v_readfirstlane_b32 s{sNONCE}, v{v2}
    s_cmp_lg_u32 s{sNONCE}, 0
    s_cbranch_scc1 {tag}_ok
    s_sub_u32 s{sT3}, s{sT3}, 1
    s_cbranch_scc1 {tag}_ok
    s_sleep 4
    s_branch {tag}
    ''')
    a.label(f'{tag}_ok')

def emit_step(a):
    dbg_mems = CFG['dbg_mems']
    a('@loop_begin chain')
    a.label('C_step')
    stamp(a, 'top')
    def pkadd(r): a(f'v_pk_add_f32 {vr(r,2)}, {vr(r,2)}, {vr(r+2,2)}')
    def add(r): a(f'v_add_f32 v{r}, v{r}, v{r+2}')
    def cvt(d, x, y): a(f'v_cvt_pk_bf16_f32 v{d}, v{x}, v{y}')
    def wr32(r, off): a(f'ds_write_b32 v{QW}, v{r} offset:{off}')
    def rdkx(f): rd128(a, POOL+32+4*f, L16, L.L_KX+f*1024)
    def rdq(ks): rd128(a, X+4*ks, QR, L.L_Q + 128*(ks >> 1) + 16*(ks & 1))
    def rdkm(ks): rd128(a, POOL+32+4*ks, OR_, L.L_K + 128*(ks >> 1) + 16*(ks & 1))
    def rdwo(f, h): rd128(a, POOL+WO_SLOT[f]+4*h, WL, 16384+f*2048+1024*h)
    def SX(tile, ks): mf(a, AQ+4*tile, POOL+32+4*(tile*4+ks), X+4*ks, '0' if ks == 0 else AQ+4*tile)
    def agl(base):
        a(f'buffer_load_dwordx4 {vr(base,4)}, v{AGP}, {WS}, s{sAGR} offen sc1')
        a(f'buffer_load_dwordx4 {vr(base+4,4)}, v{AGP}, {WS}, s{sAGR} offen offset:1024 sc1')
    def agchk(base, ok):
        a(f'v_max3_u32 v{T}, v{base}, v{base+2}, v{base+4}')
        a(f'v_max_u32 v{T}, v{T}, v{base+6}')
        a(f'v_cmp_eq_u32 vcc, -1, v{T}')
        a(f's_cbranch_vccz {ok}')
    for i in range(CFG.get('ag_delay', 0)): a('s_nop 15')
    if CFG.get('ag_sets', 2) == 2:
        agl(AO)
        for i in range(CFG.get('ag_gap', 2)): a('s_nop 15')
        agl(X)
        a.label('C_ag')
        a('s_waitcnt vmcnt(2)')
        agchk(AO, 'C_agA')
        agl(AO)
        a('s_waitcnt vmcnt(2)')
        agchk(X, 'C_agB')
        agl(X)
    else:
        if CFG.get('diag'):
            stamp(a, 'ag_i0'); agl(AO); a('s_waitcnt vmcnt(0)'); stamp(a, 'ag_r0'); agl(AO); a('s_waitcnt vmcnt(0)'); stamp(a, 'ag_r1')
        a.label('C_ag')
        agl(AO)
        a('s_waitcnt vmcnt(0)')
        agchk(AO, 'C_agA')
        a('s_branch C_agX')
        a('s_branch C_agB')
        a.label('C_agX')
    a(f'''
    s_cmp_eq_u32 s{sSPIN}, 0
    s_cbranch_scc1 C_agA
    s_sub_u32 s{sSPIN}, s{sSPIN}, 1
    s_branch C_ag
    ''')
    def prefix(A0, tag):
        Ar = lambda sg: A0+4*sg
        a(f'ds_write_b128 v{AGP}, {vr(A0,4)} offset:{L.L_MEM}')
        a(f'ds_write_b128 v{AGP}, {vr(A0+4,4)} offset:{L.L_MEM+1024}')
        smf(a, AQ, Ar(0), wq(0, 0)); smf(a, AQ+4, Ar(0), wq(0, 1)); smf(a, AQ, Ar(1), wq(1, 0)); smf(a, AQ+4, Ar(1), wq(1, 1))
        smf(a, AK, Ar(0), wk(0, 0)); a(f'v_xor_b32 v{T}, {1<<11}, v{AGP}')
        smf(a, AK+4, Ar(0), wk(0, 1))
        a('@wait_ds_writes')
        a('s_barrier')
        if tag == 'A': stamp(a, 'B1')
        rdA = lambda sg: rd128(a, POOL+(sg-2)*4, T, L.L_MEM + (sg & 1)*1024)
        smf(a, AK, Ar(1), wk(1, 0)); rdA(2)
        smf(a, AK+4, Ar(1), wk(1, 1)); rdA(3); a(f'v_xor_b32 v{T}, {2<<11}, v{AGP}')
        smf(a, AV, Ar(0), wv(0, 0)); rdA(4)
        smf(a, AV+4, Ar(0), wv(0, 1)); rdA(5); a(f'v_xor_b32 v{T}, {3<<11}, v{AGP}')
        smf(a, AV, Ar(1), wv(1, 0)); rdA(6)
        smf(a, AV+4, Ar(1), wv(1, 1)); rdA(7)
    a.label('C_agB')
    a('@assume_vm_empty')
    prefix(X, 'B')
    a('s_branch C_agJ')
    a.label('C_agA')
    stamp(a, 'ag_ok')
    prefix(AO, 'A')
    a.label('C_agJ')
    if CFG.get('skel'):
        a('s_waitcnt vmcnt(0) lgkmcnt(0)')
        for t in range(8): a(f'v_mov_b32 v{oacc(t)}, 0x3c003c00')
        for i in range(CFG['skel']): a('s_nop 15')
        stamp(a, 'B4')
        a('s_branch C_skel')
    Areg = lambda sg: POOL+(sg-2)*4
    Q = lambda sg, t: smf(a, AQ+4*t, Areg(sg), wq(sg, t))
    K = lambda sg, t: smf(a, AK+4*t, Areg(sg), wk(sg, t))
    V = lambda sg, t: smf(a, AV+4*t, Areg(sg), wv(sg, t))
    stamp(a, 'j0')
    def rst(i):
        if i < 2: a(f'buffer_store_dwordx4 {vr(X+12,4)}, v{RSR}, {WS}, s{sRST+i} offen')
        else: a(f'buffer_store_dwordx2 {vr(X+12,2)}, v{AGW}, {WS}, s{sAGRST} offen')
    def dma1(ldsbase_s, soff, k):
        if CFG.get('nodma'): soff = sAGR
        if k == 0: a(f's_mov_b32 m0, s{ldsbase_s}')
        a(f'buffer_load_dwordx4 v{L16}, {WS}, s{soff} offen' + (' offset:1024' if k else '') + ' lds')
    Q(2, 0); rdwo(1, 0)
    Q(2, 1); rdwo(1, 1)
    Q(3, 0); Q(3, 1)
    a('s_waitcnt vmcnt(0)')
    if CFG.get('flags'):
        a(f'''
        s_cmp_lg_u32 s{sWV}, 1
        s_cbranch_scc1 C_nofl
        s_cmp_eq_u32 s{sSTEP}, 0
        s_cbranch_scc1 C_nofl
        s_mov_b64 exec, 1
        v_mov_b32 v{T}, s{sNONCE}
        v_mov_b32 v{X+8}, 0
        buffer_store_dword v{T}, v{X+8}, {WS}, s{sFCH} offen sc1
        s_mov_b64 exec, -1
        s_add_u32 s{sFCH}, s{sFCH}, 128
        ''')
        a.label('C_nofl')
    stamp(a, 'j1')
    Q(4, 0); a(f'v_mov_b32 v{X+12}, -1')
    Q(4, 1); a(f'v_mov_b32 v{X+13}, -1')
    Q(5, 0); a(f'v_mov_b32 v{X+14}, -1')
    Q(5, 1); a(f'v_mov_b32 v{X+15}, -1')
    Q(6, 0); rd128(a, AO, AGP, L.L_VX)
    Q(6, 1); rd128(a, AO+4, AGP, L.L_VX+1024)
    Q(7, 0); rst(0)
    Q(7, 1)
    stamp(a, 'j3')
    K(2, 0)
    K(2, 1); add(AQ)
    K(3, 0); rst(1); add(AQ+1)
    K(3, 1); rdkx(0); add(AQ+4)
    K(4, 0); rdkx(1); add(AQ+5)
    K(4, 1); rdkx(2); cvt(AQ, AQ, AQ+4)
    K(5, 0); rdkx(3); cvt(AQ+1, AQ+1, AQ+5)
    K(5, 1); wr32(AQ, L.L_Q); wr32(AQ+1, L.L_Q+L.QROW)
    K(6, 0); rdkx(4)
    K(6, 1); rdkx(5)
    K(7, 0); rdkx(6); rst(2)
    K(7, 1); rdkx(7)
    stamp(a, 'j5')
    V(2, 0)
    V(2, 1); add(AK)
    V(3, 0); add(AK+1)
    V(3, 1); add(AK+4)
    V(4, 0); add(AK+5)
    V(4, 1); cvt(AK, AK, AK+4)
    V(5, 0); cvt(AK+1, AK+1, AK+5)
    V(5, 1); wr32(AK, L.L_K); wr32(AK+1, L.L_K+L.QROW)
    V(6, 0)
    V(6, 1)
    barrier(a, 'B2')
    V(7, 0); rdq(0); rdq(1)
    V(7, 1); rdq(2); rdq(3)
    if CFG.get('flags'):
        a(f'''
        s_add_u32 s{sT0}, s{sSTEP}, 1
        s_lshr_b32 s{sT0}, s{sT0}, 2
        s_min_u32 s{sT0}, s{sT0}, 15
        s_cmp_lt_u32 s{sT0}, s{sNRDY}
        s_cbranch_scc1 C_grpok
        ''')
        kv_wait(a, 'C_kvw', sT0, AK+6, AK+7)
        a.label('C_grpok')
    m, m2 = AK+4, AK+5
    KMR = AK
    stamp(a, 'j6')
    SX(0, 0); a(f'v_add_u32 v{T}, s{sKMO}, v{OR_}')
    SX(0, 1); dma1(sLVX, sVX, 0)
    SX(0, 2)
    SX(0, 3); rdkm(0)
    SX(1, 0); rdkm(1); dma1(sLVX, sVX, 1)
    SX(1, 1); rdkm(2)
    SX(1, 2); rdkm(3)
    SX(1, 3); dma1(sLKX, sKX, 0)
    def SM(ks): mf(a, AK, POOL+32+4*ks, X+4*ks, '0' if ks == 0 else AK)
    stamp(a, 'j8')
    SM(0); rdwo(0, 0); a(f'v_max3_f32 v{m}, v{AQ}, v{AQ+1}, v{AQ+2}')
    SM(1); rdwo(0, 1); a(f'v_max3_f32 v{m2}, v{AQ+3}, v{AQ+4}, v{AQ+5}')
    SM(2); dma1(sLKX, sKX, 1); a(f'v_max3_f32 v{m}, v{m}, v{AQ+6}, v{AQ+7}')
    SM(3)
    if not CFG.get('nopub'): rd128(a, POOL+56, T, L.L_K)
    a(f'v_max_f32 v{m}, v{m}, v{m2}')
    stamp(a, 'sm_issued')
    a(f'v_max3_f32 v{m}, v{m}, v{AK}, v{AK+1}')
    a(f'v_mov_b32 v{m2}, v{m}')
    if not CFG.get('nopub'): a(f'buffer_store_dwordx4 {vr(POOL+56,4)}, v{L16}, {WS}, s{sKM} offen sc1')
    a(f'v_permlane32_swap_b32 v{m}, v{m2}')
    a(f'v_max_f32 v{m}, v{m}, v{m2}')
    a(f'v_mov_b32 v{m2}, v{m}')
    rdwo(4, 0); rdwo(4, 1)
    a(f'v_permlane16_swap_b32 v{m}, v{m2}')
    a(f'v_max_f32 v{m}, v{m}, v{m2}')
    a(f'v_mul_f32 v{m}, s{sC}, v{m}')
    stamp(a, 'max_done')
    dump(a, 'S', [AQ+i for i in range(8)] + [AK, AK+1, AK+4])
    S = [AQ+i for i in range(8)] + [AK, AK+1]
    for i, r in enumerate(S):
        a(f'v_fma_f32 v{r}, v{r}, s{sC}, -v{m}')
    for i, r in enumerate(S):
        a(f'v_exp_f32 v{r}, v{r}')
    stamp(a, 'exp_done')
    cvt(AK+4, AQ, AQ+1); cvt(AK+5, AQ+2, AQ+3); cvt(AK+6, AQ+4, AQ+5); cvt(AK+7, AQ+6, AQ+7)
    a(f'v_mov_b32 v{X+4}, s{sONES}'); a(f'v_mov_b32 v{X+5}, s{sONES}')
    a(f'v_mov_b32 v{X+6}, s{sONES}'); a(f'v_mov_b32 v{X+7}, s{sONES}')
    mf(a, AQ, AO, AK+4, '0'); rdwo(5, 0)
    cvt(AK+3, AK, AK+1); cvt(AK, AK, AK+1)
    mf(a, AQ+4, AO+4, AK+4, '0'); rdwo(5, 1)
    add(AV); add(AV+1)
    mf(a, X, X+4, AK+4, '0'); rdwo(2, 0)
    add(AV+4); add(AV+5)
    a(f'v_mov_b32 v{AK+1}, 0')
    a(f'v_mov_b32 v{AK+2}, 0')
    cvt(AV, AV, AV+1); cvt(AV+1, AV+4, AV+5)
    a(f'v_mfma_f32_16x16x16_bf16 {vr(X,4)}, {vr(X+4,2)}, {vr(AK,2)}, {vr(X,4)}'); rdwo(2, 1)
    a(f'v_mfma_f32_16x16x16_bf16 {vr(AQ,4)}, {vr(AV,2)}, {vr(AK,2)}, {vr(AQ,4)}'); rdwo(6, 0)
    a(f'v_mfma_f32_16x16x16_bf16 {vr(AQ+4,4)}, {vr(AV,2)}, {vr(AK+2,2)}, {vr(AQ+4,4)}'); rdwo(6, 1)
    stamp(a, 'pv_issued')
    rdwo(3, 0); rdwo(3, 1); rdwo(7, 0); rdwo(7, 1)
    if not CFG.get('nopub'):
        a(f'v_lshrrev_b32 v{T}, 1, v{L16}')
        a(f'buffer_store_dwordx2 {vr(AV,2)}, v{T}, {WS}, s{sVM} offen sc1')
    dump(a, 'pv', [AQ+i for i in range(8)] + [X] + [AK+i for i in range(8)] + [AV, AV+1] + [AO+i for i in range(8)])
    a(f'v_rcp_f32 v{X}, v{X}')
    for i in range(4): a(f'v_pk_mul_f32 {vr(AQ+2*i,2)}, {vr(AQ+2*i,2)}, {vr(X,2)} op_sel_hi:[1,0]')
    for i in range(4): cvt(AQ+i, AQ+i, AQ+4+i)
    a(f'ds_write2_b32 v{OW}, v{AQ}, v{AQ+1} offset0:0 offset1:2')
    a(f'ds_write2_b32 v{OW}, v{AQ+2}, v{AQ+3} offset0:4 offset1:6')
    zero(a, 44, 20); zero(a, X, 8); zero(a, 40, 4)
    a(f's_waitcnt vmcnt({4 if CFG.get("nopub") else CFG.get("b4cnt", 6)})')
    barrier(a, 'B4')
    for ko in range(2):
        rd128(a, AO+4*ko, OR_, L.L_O+128*ko)
    order = [4, 5, 6, 7, 0, 1, 2, 3]
    def st(t): a(f'buffer_store_dword v{oacc(t)}, v{RSW}, {WS}, s{sRSW} offen offset:{t*256}')
    for k, t in enumerate(order):
        smf(a, oacc(t), AO, wo(0, t))
        if k >= 3: st(order[k-3])
        if k >= 1: add(oacc(order[k-1]))
        smf(a, oacc(t), AO+4, wo(1, t))
        if k >= 1: add(oacc(order[k-1])+1)
        if k >= 2: cvt(oacc(order[k-2]), oacc(order[k-2]), oacc(order[k-2])+1)
    if CFG.get('skel'):
        a('s_branch C_skel2')
        a.label('C_skel')
        for t in range(8): st(t)
        a('s_branch C_skel3')
        a.label('C_skel2')
    st(order[5])
    cvt(oacc(order[6]), oacc(order[6]), oacc(order[6])+1)
    add(oacc(order[7])); add(oacc(order[7])+1)
    st(order[6])
    cvt(oacc(order[7]), oacc(order[7]), oacc(order[7])+1)
    st(order[7])
    if CFG.get('skel'): a.label('C_skel3')
    stamp(a, 'out_stored')
    a('@assume_lg_empty')
    prefetch_wk(a, range(4, 8))
    a(f'''
    s_cmp_lg_u32 s{sWV}, 0
    s_cbranch_scc1 C_nors
    ''')
    RA = [oacc(t) for t in range(8)]; RB = [POOL+4*t for t in range(8)]
    DA, DB = X+8, X+12
    def rsl(R, t): a(f'buffer_load_dwordx4 {vr(R[t],4)}, v{RSR}, {WS}, s{sRSR+t} offen sc1')
    two = CFG.get('rs_sets', 2) == 2
    def sweep(R, D, ok):
        for t in range(8):
            a(f's_waitcnt vmcnt({(15 if two else 7) - t})')
            mf(a, D, R[t], SEL, '0' if t == 0 else D)
            if t == 0: a(f'v_mov_b32 v{T}, v{R[0]}')
            else: a(f'v_max_u32 v{T}, v{T}, v{R[t]}')
        a(f'v_cmp_eq_u32 vcc, -1, v{T}')
        a(f's_cbranch_vccz {ok}')
        for t in range(8): rsl(R, t)
    for i in range(CFG.get('rs_delay', 0)): a('s_nop 15')
    if CFG.get('diag'):
        stamp(a, 'rs_i0'); a('s_waitcnt vmcnt(0)'); stamp(a, 'st_ack')
        for t in range(8): rsl(RA, t)
        a('s_waitcnt vmcnt(7)'); stamp(a, 'rs_f0'); a('s_waitcnt vmcnt(0)'); stamp(a, 'rs_r0')
    for t in range(8): rsl(RA, t)
    if two:
        for i in range(CFG.get('rs_gap', 0)): a('s_nop 15')
        for t in range(8): rsl(RB, t)
    a.label('C_rs')
    a('@assume_vm_empty')
    sweep(RA, DA, 'C_rsA')
    a('@assume_vm_empty')
    if two: sweep(RB, DB, 'C_rsB')
    a(f'''
    s_cmp_eq_u32 s{sSPIN}, 0
    s_cbranch_scc1 C_rsA
    s_sub_u32 s{sSPIN}, s{sSPIN}, 1
    s_branch C_rs
    ''')
    if not two: a('s_branch C_rsB')
    D = DA
    a.label('C_rsB')
    a('@assume_vm_empty')
    a('s_nop 3')
    a(f'v_cvt_pk_bf16_f32 v{D}, v{DB}, v{DB+1}')
    a(f'v_cvt_pk_bf16_f32 v{D+1}, v{DB+2}, v{DB+3}')
    a('s_branch C_rsJ')
    a.label('C_rsA')
    a(f'v_cvt_pk_bf16_f32 v{D}, v{D}, v{D+1}')
    a(f'v_cvt_pk_bf16_f32 v{D+1}, v{D+2}, v{D+3}')
    a.label('C_rsJ')
    stamp(a, 'rs_ok')
    a(f'buffer_store_dwordx2 {vr(D,2)}, v{AGW}, {WS}, s{sAGWR} offen')
    stamp(a, 'ag_pub')
    a('s_barrier')
    a('s_waitcnt vmcnt(1)')
    if dbg_mems:
        a(f'buffer_store_dwordx2 {vr(D,2)}, v{AGW}, {WS}, s{sMEMS} offen')
    prefetch_wk(a, range(0, 4))
    zero(a, 40, 24)
    a('s_branch C_rsdone')
    a.label('C_nors')
    a('@assume_lg_empty')
    prefetch_wk(a, range(0, 4))
    zero(a, 40, 24)
    a('s_barrier')
    a.label('C_rsdone')
    a(f'''
    s_xor_b32 s{sAGR}, s{sAGR}, 0x2000
    s_xor_b32 s{sAGWR}, s{sAGWR}, 0x2000
    s_xor_b32 s{sAGRST}, s{sAGRST}, 0x2000
    s_xor_b32 s{sRSW}, s{sRSW}, {L.RS_SLOT}
    ''')
    for t in range(8): a(f's_xor_b32 s{sRSR+t}, s{sRSR+t}, {L.RS_SLOT}')
    a(f's_xor_b32 s{sRST}, s{sRST}, {L.RS_SLOT}')
    a(f's_xor_b32 s{sRST+1}, s{sRST+1}, {L.RS_SLOT}')
    a(f'''
    s_add_u32 s{sKX}, s{sKX}, 262144
    s_add_u32 s{sVX}, s{sVX}, 262144
    s_add_u32 s{sKM}, s{sKM}, 131072
    s_add_u32 s{sVM}, s{sVM}, 65536
    s_add_u32 s{sMEMS}, s{sMEMS}, 8192
    s_add_u32 s{sSTEP}, s{sSTEP}, 1
    ''')
    stamp(a, 'end')
    if CFG.get('calib'):
        a('s_waitcnt lgkmcnt(0)')
        stamp(a, 'c0')
        for i in range(16): smf(a, X+8, AO, wq(i % 8, i & 1))
        stamp(a, 'c1')
        for i in range(16): smf(a, X+8+4*(i&1), AO+4*(i&1), wv(i % 8, i & 1))
        stamp(a, 'c2')
        for i in range(16): a(f'v_add_f32 v{X+(i%8)}, v{X+(i%8)}, v{T}')
        stamp(a, 'c3')
    dump_stamps(a)
    a(f's_cmp_lt_u32 s{sSTEP}, {CFG["nsteps"]}')
    a('@loop_end chain')
    a('s_cbranch_scc1 C_step')

def emit_chain(a):
    dbg_mems = CFG['dbg_mems']
    T2 = X
    emit_setup(a)
    a(f'''
    s_mov_b32 s{sSTEP}, 0
    s_mov_b32 s{sAGR}, {L.AG}
    s_lshl_b32 s{sT0}, s{sH}, 8
    s_add_u32 s{sAGRST}, s{sT0}, {L.AG}
    s_add_u32 s{sAGWR}, s{sT0}, {L.AG + 0x2000}
    s_add_u32 s{sMEMS}, s{sT0}, {L.MEMS + 8192}
    s_mul_i32 s{sT1}, s{sWV}, {L.RSW_STRIDE}
    s_mul_i32 s{sT0}, s{sH}, {L.RSH}
    s_add_u32 s{sT1}, s{sT1}, s{sT0}
    s_add_u32 s{sRSW}, s{sT1}, {L.RS}
    s_lshl_b32 s{sT0}, s{sH}, 13
    s_lshl_b32 s{sT1}, s{sWV}, 11
    s_add_u32 s{sT0}, s{sT0}, s{sT1}
    s_add_u32 s{sKX}, s{sT0}, {L.KX}
    s_add_u32 s{sVX}, s{sT0}, {L.VX}
    s_add_u32 s{sLKX}, s{sT1}, {L.L_KX}
    s_add_u32 s{sLVX}, s{sT1}, {L.L_VX}
    s_lshl_b32 s{sT0}, s{sH}, 12
    s_lshl_b32 s{sT1}, s{sWV}, 10
    s_add_u32 s{sT0}, s{sT0}, s{sT1}
    s_add_u32 s{sKM}, s{sT0}, {L.KM}
    s_lshr_b32 s{sKMO}, s{sWV}, 1
    s_lshl_b32 s{sKMO}, s{sKMO}, 7
    s_and_b32 s{sT1}, s{sWV}, 1
    s_lshl_b32 s{sT1}, s{sT1}, 4
    s_add_u32 s{sKMO}, s{sKMO}, s{sT1}
    s_lshl_b32 s{sT0}, s{sH}, 11
    s_lshl_b32 s{sT1}, s{sWV}, 9
    s_add_u32 s{sT0}, s{sT0}, s{sT1}
    s_add_u32 s{sVM}, s{sT0}, {L.VM}
    ''')
    def rsr_setup(dst):
        a(f'''
        s_lshr_b32 s{sT0}, s{sH}, 3
        s_mul_i32 s{sT0}, s{sT0}, {L.RSW_STRIDE}
        s_and_b32 s{sT1}, s{sH}, 7
        s_lshl_b32 s{sT1}, s{sT1}, 8
        s_add_u32 s{sT0}, s{sT0}, s{sT1}
        ''')
        for t in range(8): a(f's_add_u32 s{dst+t}, s{sT0}, {L.RS + t*4*L.RSH}')
    a(f'''
    s_cmp_lg_u32 s{sWV}, 0
    s_cbranch_scc1 C_noinit
    ''')
    if CFG.get('flags'):
        a(f'''
        s_cmp_lg_u32 s{sH}, 0
        s_cbranch_scc1 C_nononce
        s_memrealtime {sr(sSAVE,2)}
        s_waitcnt lgkmcnt(0)
        s_or_b32 s{sT0}, s{sSAVE}, 1
        v_mov_b32 v{T}, {L.DBG_NONCE}
        v_mov_b32 v{T2}, s{sT0}
        global_store_dword v{T}, v{T2}, {sr(sDBG,2)} sc1
        ''')
        a.label('C_nononce')
    rsr_setup(sRSR)
    for i in range(4): a(f'v_mov_b32 v{X+12+i}, -1')
    for slot in range(2):
        for t in range(8):
            a(f's_add_u32 s{sT0}, s{sRSR+t}, {slot*L.RS_SLOT}')
            a(f'buffer_store_dwordx4 {vr(X+12,4)}, v{RSR}, {WS}, s{sT0} offen')
    a(f'buffer_store_dwordx2 {vr(X+12,2)}, v{AGW}, {WS}, s{sAGRST} offen')
    a(f'buffer_store_dwordx2 {vr(X+12,2)}, v{AGW}, {WS}, s{sAGWR} offen')
    a(f'''
    s_waitcnt vmcnt(0)
    v_mov_b32 v{T}, 32
    v_mov_b32 v{T2}, 1
    s_mov_b64 {sr(sSAVE,2)}, exec
    s_mov_b64 exec, 1
    global_atomic_add v{T}, v{T2}, {sr(sDBG,2)}
    s_mov_b64 exec, {sr(sSAVE,2)}
    ''')
    a.label('C_noinit')
    emit_weights(a)
    rsr_setup(sRSR)
    a(f'''
    s_mul_i32 s{sT0}, s{sWV}, {8*L.RSH}
    s_add_u32 s{sRST}, s{sRSR}, s{sT0}
    s_xor_b32 s{sRST}, s{sRST}, {L.RS_SLOT}
    s_add_u32 s{sRST+1}, s{sRST}, {4*L.RSH}
    ''')
    if 'tstamp' in HOOK: HOOK['tstamp'](a, 2, (24, 25))
    if CFG.get('flags'):
        get_nonce(a, 'C_nonce', X, X+1)
        a(f'''
        s_mov_b32 s{sNRDY}, 0
        s_mov_b32 s{sT0}, 0
        s_lshl_b32 s{sFCH}, s{sH}, 2
        s_add_u32 s{sFCH}, s{sFCH}, {L.F_CH}
        ''')
        kv_wait(a, 'C_kv0', sT0, X, X+1)
    dma2(a, sLKX, sKX)
    dma2(a, sLVX, sVX)
    a(f'''
    s_add_u32 s{sKX}, s{sKX}, 262144
    s_add_u32 s{sVX}, s{sVX}, 262144
    ''')
    a(f'''
    s_cmp_lg_u32 s{sWV}, 0
    s_cbranch_scc1 C_nomem0
    ''')
    a.label('C_initwait')
    a(f'''
    v_mov_b32 v{T}, 32
    global_load_dword v{T2}, v{T}, {sr(sDBG,2)} sc1
    s_waitcnt vmcnt(0)
    v_cmp_gt_u32 vcc, 32, v{T2}
    s_cbranch_vccz C_initok
    s_cmp_eq_u32 s{sSPIN}, 0
    s_cbranch_scc1 C_initok
    s_sub_u32 s{sSPIN}, s{sSPIN}, 1
    s_branch C_initwait
    ''')
    a.label('C_initok')
    srd(a, 12, L.ARG['A_mem0'], 8192)
    lane(a, T2)
    a(f'''
    v_lshrrev_b32 v{T}, 4, v{T2}
    v_lshlrev_b32 v{T}, 1, v{T}
    v_and_b32 v{X+1}, 1, v{T2}
    v_add_u32 v{T}, v{T}, v{X+1}
    v_lshlrev_b32 v{T}, 10, v{T}
    v_bfe_u32 v{X+1}, v{T2}, 1, 2
    v_lshl_add_u32 v{T}, v{X+1}, 4, v{T}
    s_lshr_b32 s{sT0}, s{sH}, 3
    s_lshl_b32 s{sT0}, s{sT0}, 8
    s_and_b32 s{sT1}, s{sH}, 7
    s_lshl_b32 s{sT1}, s{sT1}, 1
    s_add_u32 s{sT0}, s{sT0}, s{sT1}
    ''')
    for i in range(4):
        a(f'buffer_load_ushort v{X+i}, v{T}, {sr(12,4)}, s{sT0} offen offset:{64*i}')
    a(f'''
    v_lshl_or_b32 v{X}, v{X+1}, 16, v{X}
    v_lshl_or_b32 v{X+1}, v{X+3}, 16, v{X+2}
    buffer_store_dwordx2 {vr(X,2)}, v{AGW}, {WS}, s{sAGRST} offen
    ''')
    if dbg_mems:
        a(f'''
        s_sub_u32 s{sT0}, s{sMEMS}, 8192
        buffer_store_dwordx2 {vr(X,2)}, v{AGW}, {WS}, s{sT0} offen
        ''')
    a.label('C_nomem0')
    a(f'''
    s_lshl_b32 s{sT0}, s{sH}, 8
    s_add_u32 s{sT0}, s{sT0}, {L.FLAGS + 0x20000}
    s_cmp_eq_u32 s{sWV}, 0
    s_cselect_b32 s{sAGRST}, s{sAGWR}, s{sT0}
    ''')
    a('s_waitcnt vmcnt(0) lgkmcnt(0)')
    a('s_barrier')
    a('@assume_drained')
    if 'tstamp' in HOOK: HOOK['tstamp'](a, 1, (24, 25))
    prefetch_wk(a, range(4, 8))
    a('s_waitcnt lgkmcnt(0)')
    prefetch_wk(a, range(0, 4))
    zero(a, 40, 24)
    emit_step(a)
    if CFG.get('flags'):
        a(f'''
        s_waitcnt vmcnt(0)
        s_barrier
        s_cmp_lg_u32 s{sWV}, 1
        s_cbranch_scc1 C_nofl3
        s_mov_b64 exec, 1
        v_mov_b32 v{T}, s{sNONCE}
        v_mov_b32 v{X}, 0
        buffer_store_dword v{T}, v{X}, {WS}, s{sFCH} offen sc1
        s_mov_b64 exec, -1
        ''')
        a.label('C_nofl3')
    if CFG['stamps']:
        a(f'''
        s_lshl_b32 s{sT0}, s{sH}, 2
        s_add_u32 s{sT0}, s{sT0}, s{sWV}
        s_lshl_b32 s{sT0}, s{sT0}, 7
        s_add_u32 s{sT0}, s{sT0}, {L.FLAGS + 0x10000}
        v_mov_b32 v{X}, 0
        v_mov_b32 v{T}, s{sSPIN}
        buffer_store_dword v{T}, v{X}, {WS}, s{sT0} offen offset:124
        ''')

HEADER = '''; @launch grid=(256,1,1) block=(256,1,1) lds=163840
.amdgcn_target "amdgcn-amd-amdhsa--gfx950"
.text
.globl {name}
.p2align 8
.type {name},@function
{name}:
'''
FOOTER = '''
.section .rodata,"a"
.p2align 6
.amdhsa_kernel {name}
  .amdhsa_next_free_vgpr 512
  .amdhsa_next_free_sgpr 102
  .amdhsa_accum_offset 256
  .amdhsa_group_segment_fixed_size 0
  .amdhsa_kernarg_size 152
  .amdhsa_user_sgpr_count 2
  .amdhsa_user_sgpr_kernarg_segment_ptr 1
  .amdhsa_system_sgpr_workgroup_id_x 1
.end_amdhsa_kernel
'''
NAME = 'concat_heads__memory_aug_recurrent_mem_tr__ssm_conv_s5__prompt_kernel'

def emit_elect(a):
    a(f'''
    s_cmp_ge_u32 s2, 256
    s_cbranch_scc1 L_end
    s_load_dwordx2 {sr(sDBG,2)}, s[0:1], {L.ARG['dbg']}
    s_getreg_b32 s3, hwreg(HW_REG_XCC_ID)
    s_and_b32 s3, s3, 7
    s_waitcnt lgkmcnt(0)
    ''')
    srd(a, S_WS, L.ARG['ws'], L.WS_BYTES)
    a(f'''
    v_lshrrev_b32 v1, 6, v0
    s_nop 0
    v_readfirstlane_b32 s{sWV}, v1
    v_cmp_eq_u32 vcc, 0, v0
    s_and_saveexec_b64 {sr(sSAVE,2)}, vcc
    s_cbranch_execz L_noticket
    s_lshl_b32 s{sT0}, s3, 2
    v_mov_b32 v1, s{sT0}
    v_mov_b32 v2, 1
    global_atomic_add v3, v1, v2, {sr(sDBG,2)} sc0
    s_waitcnt vmcnt(0)
    v_mov_b32 v1, 0
    ds_write_b32 v1, v3
    s_waitcnt lgkmcnt(0)
    ''')
    a.label('L_noticket')
    a(f'''
    s_mov_b64 exec, {sr(sSAVE,2)}
    s_barrier
    v_mov_b32 v1, 0
    ds_read_b32 v3, v1
    s_waitcnt lgkmcnt(0)
    v_readfirstlane_b32 s{sH}, v3
    s_barrier
    ''')

if __name__ == '__main__':
    import sys
    for arg in sys.argv[1:]:
        if arg == 'stamps': CFG['stamps'] = True
        elif arg.startswith('only='): CFG['only'] = arg[5:].split(',')
        elif '=' in arg:
            k, v = arg.split('='); CFG[k] = int(v)
    a = Asm()
    emit_elect(a)
    a(f'''
    s_cmp_lg_u32 s3, 0
    s_cbranch_scc1 L_end
    s_cmp_ge_u32 s{sH}, 32
    s_cbranch_scc1 L_end
    ''')
    emit_chain(a)
    a.label('L_end')
    a('s_endpgm')
    body = a.finalize()
    open('chain_test.s', 'w').write(HEADER.format(name=NAME) + body + FOOTER.format(name=NAME))
    print('instructions:', a.count(), ','.join(STAMPS), DUMPS)
```

```python
from asmlib import Asm
import layout as L
from gen_chain import vr, ar, sr, srd, WS, S_WS, sWV, sDBG, sT0, sT1, sT2, sT3, sPLO, sPHI

sTK = 16
sXW = 3
S_X = 12
S_M = 20
S_M2 = 24
S_OUT = 28
sG, sHD, sWO = 32, 33, 34
sDST = 35
sA, sB, sC_, sD = 42, 43, 44, 45
vL16, vXA, vWA, vT, vT2, vT3 = 1, 2, 3, 4, 5, 6
EP = 16

WST = dict(on=False, n=0)
def wstamp(a, i):
    if WST['on']: a.raw(f'    s_memtime s[{70+2*i}:{71+2*i}]')
def wdump(a, tag):
    if not WST['on']: return
    k = WST['n']; WST['n'] += 1
    a(f'''
    s_waitcnt lgkmcnt(0)
    s_lshl_b32 s{sT0}, s2, 2
    s_add_u32 s{sT0}, s{sT0}, s{sWV}
    s_lshl_b32 s{sT0}, s{sT0}, 7
    s_add_u32 s{sT0}, s{sT0}, {L.FLAGS + 0x40000 + k*32}
    v_mov_b32 v{vT2}, 0
    ''')
    for i in range(5):
        a(f'v_mov_b32 v{vT}, s{70+2*i}')
        a(f'buffer_store_dword v{vT}, v{vT2}, {WS}, s{sT0} offen offset:{4*i}')

def setup_lane(a):
    a(f'''
    v_and_b32 v{vT}, 63, v0
    v_lshlrev_b32 v{vL16}, 4, v{vT}
    s_mov_b32 s{sPLO}, 0x05040100
    s_mov_b32 s{sPHI}, 0x07060302
    ''')

XROW = 1040
def load_xtile(a, tok0_s, koff_bytes=0, row_bytes=1024):
    a(f'''
    s_lshl_b32 s{sT0}, s{sWV}, 5
    s_add_u32 s{sT1}, s{sT0}, s{tok0_s}
    s_mul_i32 s{sT1}, s{sT1}, {row_bytes}
    s_add_u32 s{sT1}, s{sT1}, {koff_bytes}
    s_mul_i32 s{sT0}, s{sT0}, {XROW}
    ''')
    for k in range(32):
        a(f's_add_u32 m0, s{sT0}, {k*XROW}')
        a(f's_add_u32 s{sT2}, s{sT1}, {k*row_bytes}')
        a(f'buffer_load_dwordx4 v{vL16}, {sr(S_X,4)}, s{sT2} offen lds')

def xtile_wait(a):
    a('s_waitcnt vmcnt(0)')
    a('s_barrier')

ACC = 128
NRAW = 5
WRAW = 16
WF = 96
vXR0, vXR1 = 8, 9
def accr(r, t): return ACC + (r*4+t)*4

def gemm128x64(a, nks, issue_w, conv_w, transposed, zero_acc=True, direct=False, pre_wait=None):
    raw = lambda ks: WRAW + (ks % NRAW)*16
    wf = (lambda ks: raw(ks)) if direct else (lambda ks: WF + (ks & 1)*16)
    xf = lambda ks: (ks & 1)*32
    a(f'''
    v_lshrrev_b32 v{vT}, 4, v{vL16}
    v_and_b32 v{vT2}, 15, v{vT}
    v_mul_u32_u24 v{vXR0}, {XROW}, v{vT2}
    v_lshrrev_b32 v{vT}, 4, v{vT}
    v_lshl_add_u32 v{vXR0}, v{vT}, 4, v{vXR0}
    v_add_u32 v{vXR1}, {64*XROW}, v{vXR0}
    ''')
    def xreads(ks): return [f'ds_read_b128 {ar(xf(ks)+4*r,4)}, v{vXR0 if r < 4 else vXR1} offset:{(r & 3)*16*XROW + ks*64}' for r in range(8)]
    AH = NRAW - 1
    for k0 in range(min(AH, nks)):
        for l in issue_w(k0, raw(k0)): a(l)
    if pre_wait: pre_wait(a)
    for l in xreads(0): a(l)
    for l in conv_w(raw(0), wf(0)): a(l)
    for ks in range(nks):
        ld = issue_w(ks+AH, raw(ks+AH)) if ks+AH < nks else []
        xr = xreads(ks+1) if ks+1 < nks else []
        cv = conv_w(raw(ks+1), wf(ks+1)) if ks+1 < nks else []
        chunks = []
        for l in ld:
            if l.startswith('s_') or not chunks: chunks.append([l])
            else: chunks[-1].append(l)
        k = 0
        for r in range(8):
            for t in range(4):
                acc = vr(accr(r, t), 4)
                A, B = ar(xf(ks)+4*r, 4), vr(wf(ks)+4*t, 4)
                if transposed: A, B = B, A
                c = '0' if (ks == 0 and zero_acc) else acc
                a(f'v_mfma_f32_16x16x32_bf16 {acc}, {A}, {B}, {c}')
                if k % 4 == 1 and xr: a(xr.pop(0))
                if k % 4 == 3 and chunks:
                    for l in chunks.pop(0): a(l)
                if k >= 8 and k % 4 in (0, 2) or k >= 24:
                    if cv: a(cv.pop(0))
                    if cv and k % 4 == 0: a(cv.pop(0))
                k += 1
        for c_ in chunks:
            for l in c_: a(l)
        for l in xr + cv: a(l)

def w_ncontig(srd_reg):
    def issue(ks, raw):
        out = []
        for j in range(8):
            out.append(f's_add_u32 s{sT0}, s{sWO}, {(32*ks+j)*8192}')
            out.append(f'buffer_load_dwordx2 {vr(raw+2*j,2)}, v{vWA}, {sr(srd_reg,4)}, s{sT0} offen')
        return out
    def conv(raw, wf):
        out = []
        for t in range(4):
            for q in range(4):
                r0, r1 = raw + 2*(2*q) + (t >> 1), raw + 2*(2*q+1) + (t >> 1)
                out.append(f'v_perm_b32 v{wf+4*t+q}, v{r1}, v{r0}, s{sPHI if t & 1 else sPLO}')
        return out
    return issue, conv

def epi_kq(a, base_s):
    for r in range(8):
        for u in range(2):
            b = EP + ((r*2+u) % 4)*4
            for dq in range(4):
                i = 2*u + (dq >> 1); t = 2*(dq & 1)
                a(f'v_cvt_pk_bf16_f32 v{b+dq}, v{accr(r,t)+i}, v{accr(r,t+1)+i}')
            a(f's_add_u32 s{sT0}, s{base_s}, {(r >> 1)*262144 + (r & 1)*4096 + u*1024}')
            a(f'buffer_store_dwordx4 {vr(b,4)}, v{vL16}, {WS}, s{sT0} offen sc1')

def epi_v(a, base_s):
    n = 0
    for sg in range(4):
        for t in range(4):
            b = EP + (n % 4)*4; n += 1
            for dq in range(4):
                r = 2*sg + (dq >> 1); i = 2*(dq & 1)
                a(f'v_cvt_pk_bf16_f32 v{b+dq}, v{accr(r,t)+i}, v{accr(r,t)+i+1}')
            a(f's_add_u32 s{sT0}, s{base_s}, {sg*262144 + t*1024}')
            a(f'buffer_store_dwordx4 {vr(b,4)}, v{vL16}, {WS}, s{sT0} offen sc1')

def emit_p_task(a, tag, isq):
    wstamp(a, 0)
    a(f's_lshl_b32 s{sA}, s{sG}, 7')
    load_xtile(a, sA)
    wstamp(a, 1)
    a(f'''
    v_and_b32 v{vT}, 63, v0
    v_lshrrev_b32 v{vT2}, 4, v{vT}
    v_lshlrev_b32 v{vWA}, 16, v{vT2}
    v_and_b32 v{vT2}, 15, v{vT}
    v_lshl_add_u32 v{vWA}, v{vT2}, 3, v{vWA}
    s_and_b32 s{sB}, s{sWV}, 1
    s_lshr_b32 s{sC_}, s{sWV}, 1
    ''')
    if isq:
        a(f'''
        s_lshl_b32 s{sD}, s{sHD}, 1
        s_add_u32 s{sD}, s{sD}, s{sC_}
        ''')
    else:
        a(f's_mov_b32 s{sD}, s{sHD}')
    a(f'''
    s_lshl_b32 s{sWO}, s{sD}, 8
    s_lshl_b32 s{sT0}, s{sB}, 7
    s_add_u32 s{sWO}, s{sWO}, s{sT0}
    s_lshl_b32 s{sDST}, s{sG}, 20
    s_lshl_b32 s{sT0}, s{sD}, 13
    s_add_u32 s{sDST}, s{sDST}, s{sT0}
    ''')
    if isq:
        srd(a, S_M, L.ARG['A_Wq'], 4194304)
        a(f'''
        s_lshl_b32 s{sT0}, s{sB}, 11
        s_add_u32 s{sDST}, s{sDST}, s{sT0}
        s_add_u32 s{sDST}, s{sDST}, {L.QX}
        ''')
        iss, cv = w_ncontig(S_M)
        gemm128x64(a, 16, iss, cv, True, pre_wait=xtile_wait)
        epi_kq(a, sDST)
    else:
        a(f'''
        s_cmp_eq_u32 s{sC_}, 1
        s_cbranch_scc1 {tag}_v
        ''')
        srd(a, S_M, L.ARG['A_Wk'], 4194304)
        a(f'''
        s_lshl_b32 s{sT0}, s{sB}, 11
        s_add_u32 s{sDST}, s{sDST}, s{sT0}
        s_add_u32 s{sDST}, s{sDST}, {L.KX}
        ''')
        iss, cv = w_ncontig(S_M)
        gemm128x64(a, 16, iss, cv, True, pre_wait=xtile_wait)
        wstamp(a, 2)
        epi_kq(a, sDST)
        a(f's_branch {tag}_done')
        a.label(f'{tag}_v')
        a('@assume_drained')
        srd(a, S_M, L.ARG['A_Wv'], 4194304)
        a(f'''
        s_lshl_b32 s{sT0}, s{sB}, 12
        s_add_u32 s{sDST}, s{sDST}, s{sT0}
        s_add_u32 s{sDST}, s{sDST}, {L.VX}
        ''')
        gemm128x64(a, 16, iss, cv, False, pre_wait=xtile_wait)
        epi_v(a, sDST)
        a.label(f'{tag}_done')
    wstamp(a, 3)
    a('s_waitcnt vmcnt(0) lgkmcnt(0)')
    a('s_barrier')
    wstamp(a, 4)
    wdump(a, tag)
    a('@assume_drained')

if __name__ == '__main__':
    import sys
    from gen_chain import HEADER, FOOTER, NAME, emit_elect, sH
    WST['on'] = 'stamps' in sys.argv
    a = Asm()
    emit_elect(a)
    setup_lane(a)
    srd(a, S_X, L.ARG['A_x'], 2097152)
    for rnd in range(2):
        a(f'''
        s_add_u32 s{sT0}, s2, {256*rnd}
        s_lshr_b32 s{sG}, s{sT0}, 5
        s_and_b32 s{sHD}, s{sT0}, 31
        ''')
        emit_p_task(a, f'P{rnd}', False)
    a(f'''
    s_lshr_b32 s{sG}, s2, 4
    s_and_b32 s{sHD}, s2, 15
    ''')
    emit_p_task(a, 'PQ', True)
    a.label('L_end')
    a('s_endpgm')
    body = a.finalize()
    open('p_test.s', 'w').write(HEADER.format(name=NAME) + body + FOOTER.format(name=NAME))
    print('instructions', a.count())

sSEG = 46
sMK = 54
sCC = 62
QF, KF, KMF, VF, VMF = 64, 96, 128, 144, 176
SX0, SX1, SM_, PX, PB0, PB1, ONE, TM = 184, 188, 192, 196, 200, 202, 204, 208

def attn_setup(a):
    a(f'''
    v_and_b32 v{vT}, 63, v0
    v_and_b32 v{vT2}, 15, v{vT}
    v_lshrrev_b32 v{vT}, 4, v{vT}
    v_lshlrev_b32 v{vT}, 2, v{vT}
    s_mov_b32 s{sCC}, 0x3e0293ee
    ''')
    for i in range(4):
        a(f'v_add_u32 v{vT3}, {i}, v{vT}')
        a(f'v_cmp_le_u32 {sr(sMK+2*i,2)}, v{vT3}, v{vT2}')
    for i in range(4): a(f'v_mov_b32 v{ONE+i}, 0x3f803f80')

def attn_loads_pre(a):
    a(f'''
    s_lshl_b32 s{sA}, s{sSEG}, 5
    s_add_u32 s{sA}, s{sA}, s{sHD}
    s_lshl_b32 s{sB}, s{sA}, 13
    ''')
    for nm, reg, base in (('q', QF, L.QX), ('k', KF, L.KX), ('v', VF, L.VX)):
        a(f's_add_u32 s{sT0}, s{sB}, {base}')
        a(f's_add_u32 s{sT1}, s{sB}, {base+4096}')
        for f in range(8):
            a(f'buffer_load_dwordx4 {vr(reg+4*f,4)}, v{vL16}, {WS}, s{sT0 if f < 4 else sT1} offen offset:{(f&3)*1024}')

def attn_loads_post(a):
    a(f'''
    s_lshl_b32 s{sT0}, s{sA}, 12
    s_add_u32 s{sT0}, s{sT0}, {L.KM}
    s_lshl_b32 s{sT1}, s{sA}, 11
    s_add_u32 s{sT1}, s{sT1}, {L.VM}
    v_lshrrev_b32 v{vT}, 1, v{vL16}
    ''')
    for ks in range(4):
        a(f'buffer_load_dwordx4 {vr(KMF+4*ks,4)}, v{vL16}, {WS}, s{sT0} offen offset:{ks*1024}')
    for w in range(4):
        a(f'buffer_load_dwordx2 {vr(VMF+2*w,2)}, v{vT}, {WS}, s{sT1} offen offset:{w*512}')

def attn_compute(a):
    M = 'v_mfma_f32_16x16x32_bf16'; M16 = 'v_mfma_f32_16x16x16_bf16'
    for u in range(2):
        for ks in range(4):
            c = '0' if ks == 0 else vr(SX0, 4)
            a(f'{M} {vr(SX0,4)}, {vr(KF+4*ks,4)}, {vr(QF+16*u+4*ks,4)}, {c}')
            if u == 1:
                c = '0' if ks == 0 else vr(SX1, 4)
                a(f'{M} {vr(SX1,4)}, {vr(KF+16+4*ks,4)}, {vr(QF+16*u+4*ks,4)}, {c}')
        for ks in range(4):
            c = '0' if ks == 0 else vr(SM_, 4)
            a(f'{M} {vr(SM_,4)}, {vr(KMF+4*ks,4)}, {vr(QF+16*u+4*ks,4)}, {c}')
        dg = SX0 if u == 0 else SX1
        a(f'v_mov_b32 v{TM}, 0xf149f2ca')
        for i in range(4):
            a(f'v_cndmask_b32 v{dg+i}, v{TM}, v{dg+i}, {sr(sMK+2*i,2)}')
        S = [SX0+i for i in range(4)] + ([SX1+i for i in range(4)] if u == 1 else []) + [SM_, SM_+1]
        m, m2 = TM, TM+1
        a(f'v_max3_f32 v{m}, v{S[0]}, v{S[1]}, v{S[2]}')
        rest = S[3:]
        while len(rest) >= 2:
            a(f'v_max3_f32 v{m}, v{m}, v{rest[0]}, v{rest[1]}'); rest = rest[2:]
        if rest: a(f'v_max_f32 v{m}, v{m}, v{rest[0]}')
        a(f'''
        v_mov_b32 v{m2}, v{m}
        v_permlane32_swap_b32 v{m}, v{m2}
        v_max_f32 v{m}, v{m}, v{m2}
        v_mov_b32 v{m2}, v{m}
        v_permlane16_swap_b32 v{m}, v{m2}
        v_max_f32 v{m}, v{m}, v{m2}
        v_mul_f32 v{m}, s{sCC}, v{m}
        ''')
        for r in S: a(f'v_fma_f32 v{r}, v{r}, s{sCC}, -v{m}')
        for r in S: a(f'v_exp_f32 v{r}, v{r}')
        a(f'v_cvt_pk_bf16_f32 v{PX}, v{SX0}, v{SX0+1}')
        a(f'v_cvt_pk_bf16_f32 v{PX+1}, v{SX0+2}, v{SX0+3}')
        if u == 1:
            a(f'v_cvt_pk_bf16_f32 v{PX+2}, v{SX1}, v{SX1+1}')
            a(f'v_cvt_pk_bf16_f32 v{PX+3}, v{SX1+2}, v{SX1+3}')
        else:
            a(f'v_mov_b32 v{PX+2}, 0'); a(f'v_mov_b32 v{PX+3}, 0')
        a(f'v_cvt_pk_bf16_f32 v{PB0}, v{SM_}, v{SM_+1}')
        a(f'v_mov_b32 v{PB0+1}, 0')
        a(f'v_mov_b32 v{PB1}, 0')
        a(f'v_mov_b32 v{PB1+1}, v{PB0}')
        for f in range(8):
            a(f'{M} {ar(4*f,4)}, {vr(VF+4*f,4)}, {vr(PX,4)}, 0')
        a(f'{M} {ar(32,4)}, {vr(ONE,4)}, {vr(PX,4)}, 0')
        for f in range(8):
            hf, t = f >> 2, f & 3
            w = 2*hf + (t >> 1)
            a(f'{M16} {ar(4*f,4)}, {vr(VMF+2*w,2)}, {vr(PB1 if t & 1 else PB0,2)}, {ar(4*f,4)}')
        a(f'{M16} {ar(32,4)}, {vr(ONE,2)}, {vr(PB0,2)}, {ar(32,4)}')
        a(f'v_accvgpr_read_b32 v{TM}, a32')
        a(f'v_rcp_f32 v{TM}, v{TM}')
        a(f'''
        s_lshl_b32 s{sT0}, s{sA}, 13
        s_add_u32 s{sT0}, s{sT0}, {L.OX + u*4096}
        ''')
        n = 0
        for hf in range(2):
            for up in range(2):
                b = TM + 4 + (n % 2)*8; n += 1
                for dq in range(4):
                    i = 2*up + (dq >> 1); t = 2*(dq & 1)
                    a(f'v_accvgpr_read_b32 v{b+4}, a{(4*hf+t)*4+i}')
                    a(f'v_accvgpr_read_b32 v{b+5}, a{(4*hf+t+1)*4+i}')
                    a(f'v_mul_f32 v{b+4}, v{b+4}, v{TM}')
                    a(f'v_mul_f32 v{b+5}, v{b+5}, v{TM}')
                    a(f'v_cvt_pk_bf16_f32 v{b+dq}, v{b+4}, v{b+5}')
                a(f'buffer_store_dwordx4 {vr(b,4)}, v{vL16}, {WS}, s{sT0} offen offset:{(2*hf+up)*1024} sc1')

def gen_attn_test():
    from gen_chain import HEADER, FOOTER, NAME, emit_elect
    a = Asm()
    emit_elect(a)
    setup_lane(a)
    attn_setup(a)
    for k in range(2):
        a(f'''
        s_lshl_b32 s{sT0}, s2, 2
        s_add_u32 s{sT0}, s{sT0}, s{sWV}
        s_add_u32 s{sT0}, s{sT0}, {1024*k}
        s_lshr_b32 s{sSEG}, s{sT0}, 5
        s_and_b32 s{sHD}, s{sT0}, 31
        ''')
        attn_loads_pre(a); attn_loads_post(a); attn_compute(a)
    a('s_waitcnt vmcnt(0)')
    a.label('L_end')
    a('s_endpgm')
    body = a.finalize()
    open('a_test.s', 'w').write(HEADER.format(name=NAME) + body + FOOTER.format(name=NAME))
    print('attn instructions', a.count())
gen_attn_test() if __name__ == '__main__' else None

sCB, sUN = 47, 48
OF = 64
OACC = 192
OTM = 200

def oproj_load_weights(a):
    srd(a, S_M, L.ARG['A_Wo'], 4194304)
    a(f'''
    v_and_b32 v{vT}, 63, v0
    v_lshrrev_b32 v{vT2}, 4, v{vT}
    v_lshlrev_b32 v{vWA}, 14, v{vT2}
    v_and_b32 v{vT2}, 15, v{vT}
    v_lshl_add_u32 v{vWA}, v{vT2}, 2, v{vWA}
    s_lshl_b32 s{sWO}, s{sWV}, 20
    s_lshl_b32 s{sT0}, s{sCB}, 6
    s_add_u32 s{sWO}, s{sWO}, s{sT0}
    ''')
    groups = [(hh, ks) for hh in range(8) for ks in range(4)]
    RAW = 64; NB = 7
    def issue(gi):
        hh, ks = groups[gi]
        for j in range(8):
            e = 64*(ks >> 1) + 8*(ks & 1) + j
            a(f's_add_u32 s{sT0}, s{sWO}, {hh*131072 + e*1024}')
            a(f'buffer_load_dword v{RAW+(gi % NB)*8+j}, v{vWA}, {sr(S_M,4)}, s{sT0} offen')
    def proc(gi):
        hh, ks = groups[gi]
        b = RAW+(gi % NB)*8
        for t in range(2):
            for q in range(4):
                a(f'v_perm_b32 v{vT+(q&1)}, v{b+2*q+1}, v{b+2*q}, s{sPHI if t else sPLO}')
                a(f'v_accvgpr_write_b32 a{((hh*4+ks)*2+t)*4+q}, v{vT+(q&1)}')
    for gi in range(NB-1): issue(gi)
    for gi in range(32):
        proc(gi)
        if gi+NB-1 < 32: issue(gi+NB-1)

def oproj_unit_loads(a):
    a(f'''
    s_lshr_b32 s{sT0}, s{sUN}, 1
    s_lshl_b32 s{sT0}, s{sT0}, 18
    s_and_b32 s{sT1}, s{sUN}, 1
    s_lshl_b32 s{sT1}, s{sT1}, 12
    s_add_u32 s{sT0}, s{sT0}, s{sT1}
    s_lshl_b32 s{sT1}, s{sWV}, 16
    s_add_u32 s{sT0}, s{sT0}, s{sT1}
    s_add_u32 s{sA}, s{sT0}, {L.OX}
    ''')
    for hh in range(8):
        a(f's_add_u32 s{sT0}, s{sA}, {hh*8192}')
        for ks in range(4):
            a(f'buffer_load_dwordx4 {vr(OF+(hh*4+ks)*4,4)}, v{vL16}, {WS}, s{sT0} offen offset:{ks*1024}')

def oproj_unit_compute(a, par, tag):
    M = 'v_mfma_f32_16x16x32_bf16'
    for f in range(32):
        for t in range(2):
            c = '0' if f == 0 else vr(OACC+4*t, 4)
            a(f'{M} {vr(OACC+4*t,4)}, {ar((f*2+t)*4,4)}, {vr(OF+4*f,4)}, {c}')
    lds = par*8192
    a(f'''
    s_lshl_b32 s{sT0}, s{sWV}, 11
    v_lshlrev_b32 v{vT}, 1, v{vL16}
    v_add_u32 v{vT}, s{sT0}, v{vT}
    ds_write_b128 v{vT}, {vr(OACC,4)} offset:{lds}
    ds_write_b128 v{vT}, {vr(OACC+4,4)} offset:{lds+16}
    s_waitcnt lgkmcnt(0)
    s_barrier
    s_cmp_lg_u32 s{sWV}, 0
    s_cbranch_scc1 {tag}_skip
    v_lshlrev_b32 v{vT}, 1, v{vL16}
    ''')
    for w in range(1, 4):
        a(f'ds_read_b128 {vr(OTM+8*(w-1),4)}, v{vT} offset:{lds+w*2048}')
        a(f'ds_read_b128 {vr(OTM+8*(w-1)+4,4)}, v{vT} offset:{lds+w*2048+16}')
    for w in range(1, 4):
        for i in range(8): a(f'v_add_f32 v{OACC+i}, v{OACC+i}, v{OTM+8*(w-1)+i}')
    for i in range(4):
        a(f'v_cvt_pk_bf16_f32 v{OTM+i}, v{OACC+i}, v{OACC+4+i}')
    for i in range(4):
        a(f'v_lshlrev_b32 v{OTM+8+2*i}, 16, v{OTM+i}')
        a(f'v_and_b32 v{OTM+9+2*i}, 0xffff0000, v{OTM+i}')
    a(f'''
    v_lshrrev_b32 v{vT}, 4, v{vL16}
    v_and_b32 v{vT2}, 15, v{vT}
    v_lshlrev_b32 v{vT2}, 12, v{vT2}
    v_lshrrev_b32 v{vT}, 4, v{vT}
    v_lshl_add_u32 v{vT2}, v{vT}, 5, v{vT2}
    s_lshl_b32 s{sT0}, s{sUN}, 16
    s_lshl_b32 s{sT1}, s{sCB}, 7
    s_add_u32 s{sT0}, s{sT0}, s{sT1}
    buffer_store_dwordx4 {vr(OTM+8,4)}, v{vT2}, {sr(S_OUT,4)}, s{sT0} offen
    buffer_store_dwordx4 {vr(OTM+12,4)}, v{vT2}, {sr(S_OUT,4)}, s{sT0} offen offset:16
    ''')
    a.label(f'{tag}_skip')
    a('@assume_lg_empty')

def gen_o_test():
    from gen_chain import HEADER, FOOTER, NAME, emit_elect
    a = Asm()
    emit_elect(a)
    setup_lane(a)
    srd(a, S_OUT, L.ARG['out'], 2048*1024*4)
    a(f'''
    s_and_b32 s{sCB}, s2, 15
    s_lshr_b32 s{sUN}, s2, 4
    ''')
    oproj_load_weights(a)
    for k in range(8):
        oproj_unit_loads(a)
        oproj_unit_compute(a, k & 1, f'O{k}')
        a(f's_add_u32 s{sUN}, s{sUN}, 16')
    a('s_waitcnt vmcnt(0)')
    a.label('L_end')
    a('s_endpgm')
    body = a.finalize()
    open('o_test.s', 'w').write(HEADER.format(name=NAME) + body + FOOTER.format(name=NAME))
    print('oproj instructions', a.count())
gen_o_test() if __name__ == '__main__' else None

S_BX = 12
def s1_task(a, tag):
    srd(a, S_X, L.ARG['B_x'], 2097152)
    srd(a, S_M, L.ARG['B_B_re'], 524288)
    srd(a, S_M2, L.ARG['B_B_im'], 524288)
    a(f's_lshl_b32 s{sA}, s{sG}, 7')
    load_xtile(a, sA)
    a(f'''
    v_lshrrev_b32 v{vT}, 4, v{vL16}
    v_and_b32 v{vT2}, 15, v{vT}
    v_lshlrev_b32 v{vWA}, 10, v{vT2}
    v_lshrrev_b32 v{vT}, 4, v{vT}
    v_lshl_add_u32 v{vWA}, v{vT}, 4, v{vWA}
    s_lshl_b32 s{sWO}, s{sCB}, 7
    s_lshl_b32 s{sT0}, s{sWV}, 5
    s_add_u32 s{sB}, s{sWO}, s{sT0}
    s_lshl_b32 s{sWO}, s{sB}, 10
    ''')
    def issue(ks, raw):
        out = []
        for t in range(4):
            pb, c = t >> 1, t & 1
            out.append(f's_add_u32 s{sT0}, s{sWO}, {pb*16*1024 + ks*64}')
            out.append(f'buffer_load_dwordx4 {vr(raw+4*t,4)}, v{vWA}, {sr(S_M2 if c else S_M,4)}, s{sT0} offen')
        return out
    gemm128x64(a, 16, issue, lambda raw, wf: [], True, direct=True, pre_wait=xtile_wait)
    a(f'''
    v_lshrrev_b32 v{vT}, 4, v{vL16}
    v_and_b32 v{vT2}, 15, v{vT}
    v_lshlrev_b32 v{vT2}, 12, v{vT2}
    v_lshrrev_b32 v{vT}, 4, v{vT}
    v_lshl_add_u32 v{vT2}, v{vT}, 5, v{vT2}
    s_lshl_b32 s{sDST}, s{sG}, 19
    s_lshl_b32 s{sT0}, s{sB}, 3
    s_add_u32 s{sDST}, s{sDST}, s{sT0}
    s_add_u32 s{sDST}, s{sDST}, {L.UB}
    ''')
    n = 0
    for r in range(8):
        for pb in range(2):
            b = EP + (n % 4)*8; n += 1
            for i in range(4):
                a(f'v_mov_b32 v{b+2*i}, v{accr(r,2*pb)+i}')
                a(f'v_mov_b32 v{b+2*i+1}, v{accr(r,2*pb+1)+i}')
            a(f's_add_u32 s{sT0}, s{sDST}, {r*16*4096 + pb*128}')
            a(f'buffer_store_dwordx4 {vr(b,4)}, v{vT2}, {WS}, s{sT0} offen sc1')
            a(f'buffer_store_dwordx4 {vr(b+4,4)}, v{vT2}, {WS}, s{sT0} offen offset:16 sc1')
    a('s_waitcnt vmcnt(0) lgkmcnt(0)')
    a('s_barrier')
    a('@assume_drained')

LR, LI, CR, CI, PR, PI, GR, GI, TA_, TB_, TC_, TD_ = range(8, 20)
vP8 = 20
UREG = 64
def s5_params(a):
    srd(a, S_M, L.ARG['B_Lambda_re'], 1024)
    srd(a, S_M2, L.ARG['B_Lambda_im'], 1024)
    srd(a, S_X, L.ARG['B_log_dt'], 1024)
    a(f'''
    s_lshl_b32 s{sT0}, s{sCB}, 8
    v_add_u32 v{vT}, s{sT0}, v0
    v_lshlrev_b32 v{vP8}, 3, v{vT}
    v_lshlrev_b32 v{vT}, 1, v{vT}
    buffer_load_ushort v{TA_}, v{vT}, {sr(S_M,4)}, 0 offen
    buffer_load_ushort v{TB_}, v{vT}, {sr(S_M2,4)}, 0 offen
    buffer_load_ushort v{TC_}, v{vT}, {sr(S_X,4)}, 0 offen
    v_lshlrev_b32 v{TA_}, 16, v{TA_}
    v_lshlrev_b32 v{TB_}, 16, v{TB_}
    v_lshlrev_b32 v{TC_}, 16, v{TC_}
    v_mul_f32 v{TC_}, 0x3fb8aa3b, v{TC_}
    v_exp_f32 v{TC_}, v{TC_}
    s_nop 0
    v_cvt_pk_bf16_f32 v{TC_}, v{TC_}, v{TC_}
    v_lshlrev_b32 v{TC_}, 16, v{TC_}
    v_mul_f32 v{TD_}, v{TC_}, v{TA_}
    v_mul_f32 v{GR}, v{TC_}, v{TB_}
    v_mul_f32 v{TD_}, 0x3fb8aa3b, v{TD_}
    v_exp_f32 v{TD_}, v{TD_}
    v_mul_f32 v{GR}, 0.15915494, v{GR}
    v_rndne_f32 v{GI}, v{GR}
    v_sub_f32 v{GR}, v{GR}, v{GI}
    v_cos_f32 v{LR}, v{GR}
    v_sin_f32 v{LI}, v{GR}
    s_nop 0
    v_mul_f32 v{LR}, v{LR}, v{TD_}
    v_mul_f32 v{LI}, v{LI}, v{TD_}
    v_add_f32 v{GR}, -1.0, v{LR}
    v_mul_f32 v{GI}, v{TA_}, v{TA_}
    v_fma_f32 v{GI}, v{TB_}, v{TB_}, v{GI}
    v_rcp_f32 v{GI}, v{GI}
    v_mul_f32 v{CR}, v{GR}, v{TA_}
    v_fma_f32 v{CR}, v{LI}, v{TB_}, v{CR}
    v_mul_f32 v{CI}, v{LI}, v{TA_}
    v_fma_f32 v{CI}, -v{GR}, v{TB_}, v{CI}
    v_mul_f32 v{CR}, v{CR}, v{GI}
    v_mul_f32 v{CI}, v{CI}, v{GI}
    v_mov_b32 v{PR}, v{LR}
    v_mov_b32 v{PI}, v{LI}
    ''')
    for k in range(6):
        a(f'''
        v_mul_f32 v{TA_}, v{PI}, v{PI}
        v_mul_f32 v{TB_}, v{PR}, v{PI}
        v_fma_f32 v{PR}, v{PR}, v{PR}, -v{TA_}
        v_add_f32 v{PI}, v{TB_}, v{TB_}
        ''')

def cstep(a, xr, xi, ur, ui):
    a(f'''
    v_fma_f32 v{TA_}, -v{xi}, v{GI}, v{ur}
    v_fma_f32 v{TB_}, v{xi}, v{GR}, v{ui}
    v_fma_f32 v{GR}, v{xr}, v{GR}, v{TA_}
    v_fma_f32 v{GI}, v{xr}, v{GI}, v{TB_}
    ''')

def u_loads(a, half):
    a(f'''
    s_lshl_b32 s{sA}, s{sG}, 18
    s_add_u32 s{sA}, s{sA}, {L.UB + half*32*4096}
    ''')
    for k in range(32):
        a(f's_add_u32 s{sT0}, s{sA}, {k*4096}')
        a(f'buffer_load_dwordx2 {vr(UREG+half*64+2*k,2)}, v{vP8}, {WS}, s{sT0} offen')

def s2_task(a):
    u_loads(a, 0)
    s5_params_done = True
    a(f'v_mov_b32 v{GR}, 0'); a(f'v_mov_b32 v{GI}, 0')
    for k in range(32):
        cstep(a, LR, LI, UREG+2*k, UREG+2*k+1)
        if k == 0: u_loads(a, 1)
    for k in range(32): cstep(a, LR, LI, UREG+64+2*k, UREG+64+2*k+1)
    a(f'''
    s_lshl_b32 s{sT0}, s{sG}, 12
    s_add_u32 s{sT0}, s{sT0}, {L.EB}
    v_mov_b32 v{TC_}, v{GR}
    v_mov_b32 v{TD_}, v{GI}
    buffer_store_dwordx2 {vr(TC_,2)}, v{vP8}, {WS}, s{sT0} offen sc1
    s_waitcnt vmcnt(0)
    ''')

def s3_task(a, tag):
    EREG = 192
    for c in range(31):
        a(f'buffer_load_dwordx2 {vr(EREG+2*c,2)}, v{vP8}, {WS}, s{sD} offen offset:{(c*4096) % 4096}') if False else None
    a(f's_mov_b32 s{sD}, {L.EB}')
    for c in range(31):
        a(f's_add_u32 s{sT0}, s{sD}, {c*4096}')
        a(f'buffer_load_dwordx2 {vr(EREG+2*c,2)}, v{vP8}, {WS}, s{sT0} offen')
    u_loads(a, 0)
    a(f'v_mov_b32 v{GR}, 0'); a(f'v_mov_b32 v{GI}, 0')
    a('s_waitcnt vmcnt(32)')
    for c in range(31):
        a(f's_cmp_le_u32 s{sG}, {c}')
        a(f's_cbranch_scc1 {tag}_carry')
        cstep(a, PR, PI, EREG+2*c, EREG+2*c+1)
    a.label(f'{tag}_carry')
    a(f'''
    v_lshrrev_b32 v{vT}, 1, v{vP8}
    s_lshl_b32 s{sB}, s{sG}, 17
    s_add_u32 s{sB}, s{sB}, {L.HB}
    ''')
    for half in range(2):
        for k in range(32):
            cstep(a, LR, LI, UREG+half*64+2*k, UREG+half*64+2*k+1)
            if half == 0 and k == 0: u_loads(a, 1)
            a(f'''
            v_mul_f32 v{TC_}, v{CR}, v{GR}
            v_mul_f32 v{TD_}, v{CR}, v{GI}
            v_fma_f32 v{TC_}, -v{CI}, v{GI}, v{TC_}
            v_fma_f32 v{TD_}, v{CI}, v{GR}, v{TD_}
            v_cvt_pk_bf16_f32 v{vT2}, v{TC_}, -v{TD_}
            s_add_u32 s{sT0}, s{sB}, {(half*32+k)*2048}
            buffer_store_dword v{vT2}, v{vT}, {WS}, s{sT0} offen sc1
            ''')
    a('s_waitcnt vmcnt(0)')

def s4_task(a, tag):
    a(f'''
    s_add_u32 s{S_X}, s{S_WS}, {L.HB}
    s_addc_u32 s{S_X+1}, s{S_WS+1}, 0
    s_mov_b32 s{S_X+2}, {2048*2048}
    s_mov_b32 s{S_X+3}, 0x20000
    ''')
    srd(a, S_M, L.ARG['B_C_re'], 524288)
    srd(a, S_M2, L.ARG['B_C_im'], 524288)
    a(f'''
    v_lshrrev_b32 v{vT}, 4, v{vL16}
    v_and_b32 v{vT2}, 15, v{vT}
    v_lshlrev_b32 v{vWA}, 10, v{vT2}
    v_lshrrev_b32 v{vT}, 4, v{vT}
    v_lshl_add_u32 v{vWA}, v{vT}, 3, v{vWA}
    s_lshl_b32 s{sB}, s{sCB}, 8
    s_lshl_b32 s{sT0}, s{sWV}, 6
    s_add_u32 s{sB}, s{sB}, s{sT0}
    s_lshl_b32 s{sWO}, s{sB}, 10
    ''')
    def mk_issue(kh):
        def issue(ks, raw):
            out = []
            for t in range(4):
                out.append(f's_add_u32 s{sT0}, s{sWO}, {t*16*1024 + (kh*16+ks)*32}')
                out.append(f'buffer_load_dwordx2 {vr(raw+4*t,2)}, v{vWA}, {sr(S_M,4)}, s{sT0} offen')
                out.append(f'buffer_load_dwordx2 {vr(raw+4*t+2,2)}, v{vWA}, {sr(S_M2,4)}, s{sT0} offen')
            return out
        return issue
    def conv(raw, wf):
        out = []
        for t in range(4):
            for q in range(4):
                out.append(f'v_perm_b32 v{wf+4*t+q}, v{raw+4*t+2+(q>>1)}, v{raw+4*t+(q>>1)}, s{sPHI if q & 1 else sPLO}')
        return out
    for kh in range(2):
        a(f's_lshl_b32 s{sA}, s{sG}, 7')
        if kh: a('s_barrier')
        load_xtile(a, sA, koff_bytes=kh*1024, row_bytes=2048)
        gemm128x64(a, 16, mk_issue(kh), conv, True, zero_acc=(kh == 0), pre_wait=xtile_wait)
        a('s_waitcnt vmcnt(0) lgkmcnt(0)')
    srd(a, S_X, L.ARG['B_x'], 2097152)
    srd(a, S_M, L.ARG['B_Dskip'], 1024)
    a(f'''
    v_lshrrev_b32 v{vT}, 4, v{vL16}
    v_and_b32 v{vT2}, 15, v{vT}
    v_lshrrev_b32 v{vT}, 4, v{vT}
    v_lshlrev_b32 v{vXA}, 10, v{vT2}
    v_lshl_add_u32 v{vXA}, v{vT}, 3, v{vXA}
    v_lshlrev_b32 v{vWA}, 12, v{vT2}
    v_lshl_add_u32 v{vWA}, v{vT}, 4, v{vWA}
    v_lshlrev_b32 v{vT3}, 3, v{vT}
    s_lshl_b32 s{sA}, s{sG}, 7
    s_lshl_b32 s{sC_}, s{sA}, 10
    s_lshl_b32 s{sT0}, s{sB}, 1
    s_add_u32 s{sC_}, s{sC_}, s{sT0}
    s_lshl_b32 s{sD}, s{sA}, 12
    s_lshl_b32 s{sT0}, s{sB}, 2
    s_add_u32 s{sD}, s{sD}, s{sT0}
    s_add_u32 s{sD}, s{sD}, 2048
    s_lshl_b32 s{sWO}, s{sB}, 1
    ''')
    DS_ = 48
    for t in range(4):
        a(f's_add_u32 s{sT0}, s{sWO}, {t*32}')
        a(f'buffer_load_dwordx2 {vr(120+2*t,2)}, v{vT3}, {sr(S_M,4)}, s{sT0} offen')
    for t in range(4):
        for q in range(2):
            a(f'v_lshlrev_b32 v{DS_+4*t+2*q}, 16, v{120+2*t+q}')
            a(f'v_and_b32 v{DS_+4*t+2*q+1}, 0xffff0000, v{120+2*t+q}')
    XR = 64
    def xl(hf):
        for r in range(4*hf, 4*hf+4):
            for t in range(4):
                a(f's_add_u32 s{sT0}, s{sC_}, {r*16*1024 + t*32}')
                a(f'buffer_load_dwordx2 {vr(XR+hf*32+((r & 3)*4+t)*2,2)}, v{vXA}, {sr(S_X,4)}, s{sT0} offen')
    xl(0)
    n = 0
    for r in range(8):
        if r == 1:
            pass
        for t in range(4):
            b = EP + (n % 4)*8; n += 1
            x0 = XR+(r >> 2)*32+((r & 3)*4+t)*2 if False else XR + ((r >> 2) & 1)*0 + ((r & 3)*4+t)*2
            if r == 4 and t == 0:
                for rr in range(4, 8):
                    for tt in range(4):
                        a(f's_add_u32 s{sT0}, s{sC_}, {rr*16*1024 + tt*32}')
                        a(f'buffer_load_dwordx2 {vr(XR+((rr & 3)*4+tt)*2,2)}, v{vXA}, {sr(S_X,4)}, s{sT0} offen')
            for q in range(2):
                a(f'v_lshlrev_b32 v{b+4+2*q}, 16, v{x0+q}')
                a(f'v_and_b32 v{b+5+2*q}, 0xffff0000, v{x0+q}')
            for i in range(4): a(f'v_mul_f32 v{b+4+i}, v{b+4+i}, v{DS_+4*t+i}')
            for q in range(2): a(f'v_cvt_pk_bf16_f32 v{x0+q}, v{b+4+2*q}, v{b+5+2*q}')
            for q in range(2):
                a(f'v_lshlrev_b32 v{b+4+2*q}, 16, v{x0+q}')
                a(f'v_and_b32 v{b+5+2*q}, 0xffff0000, v{x0+q}')
            for i in range(4):
                a(f'v_fma_f32 v{b+i}, v{accr(r,t)+i}, 2.0, v{b+4+i}')
            a(f's_add_u32 s{sT0}, s{sD}, {r*16*4096 + t*64}')
            a(f'buffer_store_dwordx4 {vr(b,4)}, v{vWA}, {sr(S_OUT,4)}, s{sT0} offen')
    a('s_waitcnt vmcnt(0) lgkmcnt(0)')
    a('s_barrier')
    a('@assume_drained')

def gen_s5_test():
    from gen_chain import FOOTER, NAME, emit_elect
    names = ['s5a_kernel', 's5b_kernel', 's5c_kernel', 's5d_kernel']
    txt = ''.join(f'; @launch kernel={n} grid=(256,1,1) block=(256,1,1) lds=163840\n' for n in names)
    txt += '.amdgcn_target "amdgcn-amd-amdhsa--gfx950"\n.text\n'
    for idx, n in enumerate(names):
        a = Asm()
        a(f'''
        s_cmp_ge_u32 s2, {64 if idx < 3 else 32}
        s_cbranch_scc1 L_end{idx}
        v_lshrrev_b32 v1, 6, v0
        s_nop 0
        v_readfirstlane_b32 s{sWV}, v1
        ''')
        srd(a, S_WS, L.ARG['ws'], L.WS_BYTES)
        srd(a, S_OUT, L.ARG['out'], 2048*1024*4)
        setup_lane(a)
        if idx == 0:
            a(f's_lshr_b32 s{sG}, s2, 2\ns_and_b32 s{sCB}, s2, 3'); s1_task(a, 'S1')
        elif idx == 1:
            a(f's_lshr_b32 s{sG}, s2, 1\ns_and_b32 s{sCB}, s2, 1'); s5_params(a); s2_task(a)
        elif idx == 2:
            a(f's_lshr_b32 s{sG}, s2, 1\ns_and_b32 s{sCB}, s2, 1'); s5_params(a); s3_task(a, 'S3')
        else:
            a(f's_lshr_b32 s{sG}, s2, 1\ns_and_b32 s{sCB}, s2, 1'); s4_task(a, 'S4')
        a.label(f'L_end{idx}')
        a('s_endpgm')
        txt += f'.globl {n}\n.p2align 8\n.type {n},@function\n{n}:\n' + a.finalize()
    for n in names: txt += FOOTER.format(name=n)
    open('s5_test.s', 'w').write(txt)
    print('s5 test written')
gen_s5_test() if __name__ == '__main__' else None
```

```python
KX   = 0x0000000
VX   = 0x1000000
QX   = 0x2000000
OX   = 0x3000000
KM   = 0x4000000
VM   = 0x4800000
RS   = 0x4C00000
RSH  = 2304
RSW_STRIDE = 32*2304
RS_SLOT = 0x80000
AG   = 0x4D80000
MEMS = 0x4E00000
FLAGS= 0x4F00000
UB   = 0x5400000
HB   = 0x5C00000
EB   = 0x6000000
WS_BYTES = 0x10000000
ARG = dict(A_x=0, A_mem0=8, A_Wq=16, A_Wk=24, A_Wv=32, A_Wo=40, A_seg_len=48, B_x=56, B_Lambda_re=64, B_Lambda_im=72,
           B_B_re=80, B_B_im=88, B_C_re=96, B_C_im=104, B_log_dt=112, B_Dskip=120, out=128, dbg=136, ws=144)
L_MEM = 0
L_KX  = 8192
L_VX  = 16384
L_Q   = 24576
L_K   = 24576 + 2176
L_O   = 24576 + 2*2176
L_W   = 32768
QROW  = 272

F_KV = FLAGS + 0x0000
F_Q  = FLAGS + 0x1000
F_CH = FLAGS + 0x2000
F_A  = FLAGS + 0x4000
F_S1 = FLAGS + 0x6000
F_S2 = FLAGS + 0x6400
F_S3 = FLAGS + 0x6800
DBG_NONCE = 64
```

```python
import sys
from asmlib import Asm
import layout as L
import gen_chain as C
from gen_chain import srd, sr, vr, sWV, sH, S_WS, WS, FOOTER, HEADER, NAME, emit_elect, sDBG, sNONCE, sSAVE, get_nonce, sT0, sT1, sT2, sT3
import gen_work as W
from gen_work import *

sXW, sTKT, sRND, sIDX, sSPINW, sKIND = 49, 16, 63, 64, 65, 66
sFL = 67

PROF = dict(on=False)
def tstamp(a, slot, vtmp=(4, 5)):
    if not PROF['on']: return
    lab = f'TS{tstamp.n}'; tstamp.n += 1
    a(f'''
    s_cmp_lg_u32 s{sWV}, 0
    s_cbranch_scc1 {lab}
    s_memrealtime s[98:99]
    s_waitcnt lgkmcnt(0)
    s_lshl_b32 s99, s2, 6
    s_add_u32 s99, s99, {L.FLAGS + 0x50000 + slot*4}
    v_mov_b32 v{vtmp[0]}, s98
    v_mov_b32 v{vtmp[1]}, 0
    buffer_store_dword v{vtmp[0]}, v{vtmp[1]}, {WS}, s99 offen
    ''')
    a.label(lab)
tstamp.n = 0

def set_flag_wg(a, off_s):
    a(f'''
    s_waitcnt vmcnt(0) lgkmcnt(0)
    s_barrier
    s_cmp_lg_u32 s{sWV}, 0
    ''')
    lab = f'SF{set_flag_wg.n}'; set_flag_wg.n += 1
    a(f's_cbranch_scc1 {lab}')
    set_flag_wave(a, off_s, drained=True)
    a.label(lab)
set_flag_wg.n = 0

def set_flag_wave(a, off_s, drained=False):
    if not drained: a('s_waitcnt vmcnt(0)')
    a(f'''
    s_mov_b64 exec, 1
    v_mov_b32 v{vT}, s{sNONCE}
    v_mov_b32 v{vT2}, 0
    buffer_store_dword v{vT}, v{vT2}, {WS}, s{off_s} offen sc1
    s_mov_b64 exec, -1
    ''')

SLEEP = dict(mul=1)
def wait_flags(a, off_s, n, sleep=8):
    sleep = min(127, sleep*SLEEP['mul'])
    lab = f'WF{wait_flags.n}'; wait_flags.n += 1
    a(f'''
    v_lshrrev_b32 v{vT}, 2, v{vL16}
    v_min_u32 v{vT}, {4*(n-1)}, v{vT}
    ''')
    a.label(lab)
    a(f'''
    buffer_load_dword v{vT2}, v{vT}, {WS}, s{off_s} offen sc1
    s_waitcnt vmcnt(0)
    v_cmp_ne_u32 vcc, s{sNONCE}, v{vT2}
    s_cbranch_vccz {lab}_ok
    s_cmp_eq_u32 s{sSPINW}, 0
    s_cbranch_scc1 {lab}_ok
    s_sub_u32 s{sSPINW}, s{sSPINW}, 1
    s_sleep {sleep}
    s_branch {lab}
    ''')
    a.label(f'{lab}_ok')
    a('@assume_vm_empty')
wait_flags.n = 0

def p_loop(a):
    a(f's_mov_b32 s{sRND}, 0')
    a.label('P_round')
    a(f'''
    s_mul_i32 s{sA}, s{sRND}, 7
    s_add_u32 s{sA}, s{sA}, s{sXW}
    s_cmp_ge_u32 s{sA}, 24
    s_cbranch_scc1 P_end
    s_cmp_ge_u32 s{sA}, 16
    s_cselect_b32 s{sKIND}, 1, 0
    s_cbranch_scc1 P_isq
    s_lshr_b32 s{sB}, s{sA}, 2
    s_and_b32 s{sC_}, s{sA}, 3
    s_branch P_dec
    ''')
    a.label('P_isq')
    a(f'''
    s_sub_u32 s{sA}, s{sA}, 16
    s_lshr_b32 s{sB}, s{sA}, 1
    s_and_b32 s{sC_}, s{sA}, 1
    ''')
    a.label('P_dec')
    a(f'''
    s_lshl_b32 s{sG}, s{sB}, 2
    s_lshr_b32 s{sT0}, s{sTKT}, 3
    s_add_u32 s{sG}, s{sG}, s{sT0}
    s_lshl_b32 s{sHD}, s{sC_}, 3
    s_and_b32 s{sT0}, s{sTKT}, 7
    s_add_u32 s{sHD}, s{sHD}, s{sT0}
    s_lshl_b32 s{sA}, s{sG}, 7
    ''')
    srd(a, S_X, L.ARG['A_x'], 2097152)
    load_xtile(a, sA)
    a(f'''
    v_lshrrev_b32 v{vT}, 4, v{vL16}
    v_lshrrev_b32 v{vT2}, 4, v{vT}
    v_lshlrev_b32 v{vWA}, 16, v{vT2}
    v_and_b32 v{vT2}, 15, v{vT}
    v_lshl_add_u32 v{vWA}, v{vT2}, 3, v{vWA}
    s_and_b32 s{sB}, s{sWV}, 1
    s_lshr_b32 s{sC_}, s{sWV}, 1
    s_lshl_b32 s{sD}, s{sHD}, 1
    s_add_u32 s{sD}, s{sD}, s{sC_}
    s_cmp_eq_u32 s{sKIND}, 1
    s_cselect_b32 s{sD}, s{sD}, s{sHD}
    s_lshl_b32 s{sWO}, s{sD}, 8
    s_lshl_b32 s{sT0}, s{sB}, 7
    s_add_u32 s{sWO}, s{sWO}, s{sT0}
    s_lshl_b32 s{sDST}, s{sG}, 20
    s_lshl_b32 s{sT0}, s{sD}, 13
    s_add_u32 s{sDST}, s{sDST}, s{sT0}
    ''')
    a(f'''
    s_cmp_eq_u32 s{sKIND}, 1
    s_cbranch_scc1 P_mq
    s_cmp_eq_u32 s{sC_}, 1
    s_cbranch_scc1 P_v
    ''')
    srd(a, S_M, L.ARG['A_Wk'], 4194304)
    a(f's_add_u32 s{sDST}, s{sDST}, {L.KX}')
    a('s_branch P_t')
    a.label('P_mq')
    srd(a, S_M, L.ARG['A_Wq'], 4194304)
    a(f's_add_u32 s{sDST}, s{sDST}, {L.QX}')
    a.label('P_t')
    a(f'''
    s_lshl_b32 s{sT0}, s{sB}, 11
    s_add_u32 s{sDST}, s{sDST}, s{sT0}
    ''')
    iss, cv = w_ncontig(S_M)
    gemm128x64(a, 16, iss, cv, True, pre_wait=xtile_wait)
    epi_kq(a, sDST)
    a('s_branch P_done')
    a.label('P_v')
    a('@assume_drained')
    srd(a, S_M, L.ARG['A_Wv'], 4194304)
    a(f'''
    s_lshl_b32 s{sT0}, s{sB}, 12
    s_add_u32 s{sDST}, s{sDST}, s{sT0}
    s_add_u32 s{sDST}, s{sDST}, {L.VX}
    ''')
    gemm128x64(a, 16, iss, cv, False, pre_wait=xtile_wait)
    epi_v(a, sDST)
    a.label('P_done')
    a(f'''
    s_cmp_lg_u32 s{sRND}, 0
    s_cbranch_scc1 P_hasn
    ''')
    get_nonce(a, 'W_nonce', vT, vT2)
    a.label('P_hasn')
    a(f'''
    s_lshl_b32 s{sFL}, s{sHD}, 6
    s_lshl_b32 s{sT0}, s{sG}, 2
    s_add_u32 s{sFL}, s{sFL}, s{sT0}
    s_lshl_b32 s{sT0}, s{sKIND}, 12
    s_add_u32 s{sFL}, s{sFL}, s{sT0}
    s_add_u32 s{sFL}, s{sFL}, {L.F_KV}
    ''')
    set_flag_wg(a, sFL)
    a(f'''
    s_add_u32 s{sRND}, s{sRND}, 1
    s_branch P_round
    ''')
    a.label('P_end')
    a('@assume_drained')

def a_role(a, nsets):
    attn_setup(a)
    a(f'''
    s_and_b32 s{sHD}, s{sIDX}, 7
    s_lshl_b32 s{sHD}, s{sHD}, 2
    s_add_u32 s{sHD}, s{sHD}, s{sWV}
    s_lshr_b32 s{sSEG}, s{sIDX}, 3
    ''')
    a.label('A_loop')
    a(f'''
    s_lshr_b32 s{sT2}, s{sSEG}, 2
    s_lshl_b32 s{sT2}, s{sT2}, 2
    s_lshl_b32 s{sFL}, s{sHD}, 6
    s_add_u32 s{sFL}, s{sFL}, s{sT2}
    s_add_u32 s{sFL}, s{sFL}, {L.F_KV}
    ''')
    wait_flags(a, sFL, 1)
    a(f'''
    s_lshr_b32 s{sT2}, s{sSEG}, 2
    s_lshl_b32 s{sT2}, s{sT2}, 2
    s_lshr_b32 s{sFL}, s{sHD}, 1
    s_lshl_b32 s{sFL}, s{sFL}, 6
    s_add_u32 s{sFL}, s{sFL}, s{sT2}
    s_add_u32 s{sFL}, s{sFL}, {L.F_Q}
    ''')
    wait_flags(a, sFL, 1)
    attn_loads_pre(a)
    a(f'''
    s_lshl_b32 s{sFL}, s{sSEG}, 7
    s_lshl_b32 s{sT2}, s{sHD}, 2
    s_add_u32 s{sFL}, s{sFL}, s{sT2}
    s_add_u32 s{sFL}, s{sFL}, {L.F_CH}
    ''')
    wait_flags(a, sFL, 1, sleep=2)
    attn_loads_post(a)
    attn_compute(a)
    a(f's_add_u32 s{sFL}, s{sFL}, {L.F_A - L.F_CH}')
    set_flag_wave(a, sFL)
    a(f'''
    s_add_u32 s{sSEG}, s{sSEG}, {nsets}
    s_cmp_lt_u32 s{sSEG}, 64
    s_cbranch_scc1 A_loop
    ''')

def o_role(a, nsets):
    a(f'''
    s_and_b32 s{sCB}, s{sIDX}, 15
    s_lshr_b32 s{sUN}, s{sIDX}, 4
    s_mov_b32 s{sKIND}, 0
    ''')
    oproj_load_weights(a)
    a('s_waitcnt vmcnt(0)')
    tstamp(a, 2)
    a.label('O_loop')
    a('@assume_drained')
    for par in range(2):
        a(f'''
        s_lshr_b32 s{sFL}, s{sUN}, 1
        s_lshl_b32 s{sFL}, s{sFL}, 7
        s_add_u32 s{sFL}, s{sFL}, {L.F_A}
        ''')
        wait_flags(a, sFL, 32, sleep=2)
        oproj_unit_loads(a)
        oproj_unit_compute(a, par, f'OU{par}')
        a(f'''
        s_add_u32 s{sUN}, s{sUN}, {nsets}
        s_cmp_ge_u32 s{sUN}, 128
        s_cbranch_scc1 O_end
        ''')
    a('s_branch O_loop')
    a.label('O_end')
    a('s_waitcnt vmcnt(0)')

def s5_role(a):
    a(f's_lshr_b32 s{sG}, s{sIDX}, 2\ns_and_b32 s{sCB}, s{sIDX}, 3')
    s1_task(a, 'S1')
    a(f'''
    s_lshl_b32 s{sFL}, s{sIDX}, 2
    s_add_u32 s{sFL}, s{sFL}, {L.F_S1}
    ''')
    set_flag_wg(a, sFL)
    a(f'''
    s_lshr_b32 s{sG}, s{sIDX}, 1
    s_and_b32 s{sCB}, s{sIDX}, 1
    ''')
    s5_params(a)
    a(f'''
    s_lshr_b32 s{sFL}, s{sG}, 1
    s_lshl_b32 s{sFL}, s{sFL}, 4
    s_add_u32 s{sFL}, s{sFL}, {L.F_S1}
    ''')
    wait_flags(a, sFL, 4)
    s2_task(a)
    a(f'''
    s_lshl_b32 s{sFL}, s{sIDX}, 2
    s_add_u32 s{sFL}, s{sFL}, {L.F_S2}
    ''')
    set_flag_wg(a, sFL)
    a(f's_mov_b32 s{sFL}, {L.F_S2}')
    wait_flags(a, sFL, 64)
    tstamp(a, 2)
    s3_task(a, 'S3')
    a(f'''
    s_lshl_b32 s{sFL}, s{sIDX}, 2
    s_add_u32 s{sFL}, s{sFL}, {L.F_S3}
    ''')
    set_flag_wg(a, sFL)
    a(f'''
    s_cmp_ge_u32 s{sIDX}, 32
    s_cbranch_scc1 S5_end
    s_lshr_b32 s{sG}, s{sIDX}, 1
    s_and_b32 s{sCB}, s{sIDX}, 1
    s_lshl_b32 s{sFL}, s{sG}, 4
    s_add_u32 s{sFL}, s{sFL}, {L.F_S3}
    ''')
    wait_flags(a, sFL, 4)
    s4_task(a, 'S4')
    a.label('S5_end')

def build(cfg):
    C.CFG.update(dbg_mems=False, rs_gap=1, rs_delay=1, flags=1)
    C.CFG.update(cfg)
    a = Asm()
    emit_elect(a)
    if PROF['on']:
        a(f'''
        s_lshl_b32 s99, s2, 6
        s_add_u32 s99, s99, {L.FLAGS + 0x50000}
        v_mov_b32 v4, s3
        v_mov_b32 v5, 0
        buffer_store_dword v4, v5, {WS}, s99 offen offset:16
        v_mov_b32 v4, s{sH}
        buffer_store_dword v4, v5, {WS}, s99 offen offset:20
        ''')
    a(f'''
    s_cmp_lg_u32 s3, 0
    s_cbranch_scc1 W_start
    s_cmp_ge_u32 s{sH}, 32
    s_cbranch_scc1 L_end
    ''')
    C.HOOK['tstamp'] = tstamp
    tstamp(a, 0, (24, 25))
    a(f'v_mov_b32 v24, s3') if False else None
    C.emit_chain(a)
    tstamp(a, 3, (24, 25))
    a('s_branch L_end')
    a.label('W_start')
    a('@assume_drained')
    a(f'''
    s_sub_u32 s{sXW}, s3, 1
    s_mov_b32 s{sSPINW}, 0x100000
    s_cmp_ge_u32 s{sTKT}, 32
    s_cbranch_scc1 L_end
    ''')
    srd(a, S_OUT, L.ARG['out'], 2048*1024*4)
    setup_lane(a)
    tstamp(a, 0)
    p_loop(a)
    tstamp(a, 1)
    a(f'''
    s_cmp_eq_u32 s{sXW}, 0
    s_cbranch_scc1 R_a
    s_cmp_eq_u32 s{sXW}, 3
    s_cbranch_scc1 R_s5
    s_cmp_eq_u32 s{sXW}, 4
    s_cbranch_scc1 R_s5
    s_cmp_ge_u32 s{sXW}, 5
    s_cselect_b32 s{sT0}, 3, 1
    s_sub_u32 s{sT0}, s{sXW}, s{sT0}
    s_lshl_b32 s{sIDX}, s{sT0}, 5
    s_add_u32 s{sIDX}, s{sIDX}, s{sTKT}
    ''')
    if not cfg.get('no_o'): o_role(a, 8)
    tstamp(a, 3)
    a('s_branch L_end')
    a.label('R_a')
    a('@assume_drained')
    a(f's_mov_b32 s{sIDX}, s{sTKT}')
    if not cfg.get('no_a'): a_role(a, 4)
    tstamp(a, 3)
    a('s_branch L_end')
    a.label('R_s5')
    a('@assume_drained')
    a(f'''
    s_sub_u32 s{sT0}, s{sXW}, 3
    s_lshl_b32 s{sIDX}, s{sT0}, 5
    s_add_u32 s{sIDX}, s{sIDX}, s{sTKT}
    ''')
    if not cfg.get('no_s5'): s5_role(a)
    tstamp(a, 3)
    a.label('L_end')
    a('s_endpgm')
    body = a.finalize(compact=True)
    hdr = open('concat_heads__memory_aug_recurrent_mem_tr__ssm_conv_s5__prompt.s.ref').read().split('; Override launch geometry')[0]
    return hdr + HEADER.format(name=NAME) + body + FOOTER.format(name=NAME), a.count()

if __name__ == '__main__':
    cfg = {}
    for arg in sys.argv[1:]:
        k, v = arg.split('='); cfg[k] = int(v)
    PROF['on'] = bool(cfg.get('prof'))
    SLEEP['mul'] = cfg.get('sleepmul', 1)
    txt, n = build(cfg)
    open('main.s', 'w').write(txt)
    print('instructions', n, 'bytes', len(txt))
```

```python
import re

REG_RE = re.compile(r'^(-?)(\|?)([vas])(?:(\d+)|\[(\d+):(\d+)\])(\|?)$')

def parse_reg(tok):
    t = tok.strip()
    t = re.sub(r'^(neg|abs)\((.*)\)$', r'\2', t)
    m = REG_RE.match(t)
    if m:
        f = m.group(3)
        if m.group(4) is not None:
            return [(f, int(m.group(4)))]
        return [(f, i) for i in range(int(m.group(5)), int(m.group(6)) + 1)]
    if t == 'vcc': return [('s', 106), ('s', 107)]
    if t == 'vcc_lo': return [('s', 106)]
    if t == 'vcc_hi': return [('s', 107)]
    if t == 'exec': return [('s', 126), ('s', 127)]
    if t == 'm0': return [('s', 124)]
    return None

def split_ops(s):
    ops, cur, depth = [], '', 0
    for ch in s:
        if ch in '[(': depth += 1
        if ch in '])': depth -= 1
        if ch == ',' and depth == 0:
            ops.append(cur.strip()); cur = ''
        else:
            cur += ch
    if cur.strip(): ops.append(cur.strip())
    return ops

TRANS = ('v_exp_f32', 'v_log_f32', 'v_rcp_f32', 'v_rsq_f32', 'v_sqrt_f32', 'v_sin_f32', 'v_cos_f32', 'v_rcp_iflag_f32')

class Ins:
    __slots__ = ('text', 'mn', 'ops', 'mods', 'rd', 'wr', 'kind', 'passes', 'srcC', 'srcAB', 'dreg', 'comment', 'lds_dma', 'width')
    def __init__(self, text):
        self.text = text
        t = text.split(';')[0].split('//')[0].strip()
        parts = t.split(None, 1)
        self.mn = parts[0]
        rest = parts[1] if len(parts) > 1 else ''
        ops = split_ops(rest)
        mods = []
        cl = []
        for o in ops:
            w = o.split()
            cl.append(w[0]); mods += w[1:]
        self.ops, self.mods = cl, mods
        self.rd, self.wr = [], []
        self.kind = None; self.passes = 0; self.srcC = []; self.srcAB = []; self.dreg = []; self.lds_dma = False; self.width = 0
        self.classify()
    def R(self, i):
        if i >= len(self.ops): return []
        return parse_reg(self.ops[i]) or []
    def classify(self):
        mn, n = self.mn, len(self.ops)
        allr = lambda a, b=None: [r for i in range(a, b if b is not None else n) for r in self.R(i)]
        if mn.startswith('v_mfma') or mn.startswith('v_smfmac'):
            self.kind = 'mfma'
            self.passes = 8 if '32x32' in mn else 4
            self.dreg = self.R(0); self.wr = list(self.dreg)
            if mn.startswith('v_smfmac'):
                self.srcC = list(self.dreg); self.srcAB = self.R(1) + self.R(2) + self.R(3)
            else:
                self.srcC = self.R(3); self.srcAB = self.R(1) + self.R(2)
            self.rd = self.srcAB + self.srcC
        elif mn.startswith('v_'):
            self.kind = 'valu'
            if mn.startswith('v_cmp'):
                self.wr = self.R(0); self.rd = allr(1)
                if mn.startswith('v_cmpx'): self.wr += [('s', 126), ('s', 127)]
            elif mn.startswith('v_permlane') and 'swap' in mn:
                self.wr = self.R(0) + self.R(1); self.rd = list(self.wr)
            elif mn.startswith(('v_add_co', 'v_sub_co', 'v_addc_co', 'v_subb_co', 'v_subrev_co')):
                self.wr = self.R(0) + self.R(1); self.rd = allr(2)
            elif mn.startswith(('v_readfirstlane', 'v_readlane')):
                self.wr = self.R(0); self.rd = allr(1)
            elif mn.startswith(('v_fmac', 'v_pk_fmac', 'v_writelane')):
                self.wr = self.R(0); self.rd = allr(0)
            elif mn.startswith('v_nop'):
                pass
            else:
                self.wr = self.R(0); self.rd = allr(1)
                if mn.startswith('v_cndmask') and n == 3: self.rd += [('s', 106), ('s', 107)]
            if any(m.startswith(('row_', 'quad_perm', 'wave_', 'row_bcast')) for m in self.mods):
                self.kind = 'valu'
        elif mn.startswith('ds_'):
            self.kind = 'ds'
            if mn.startswith(('ds_read', 'ds_bpermute', 'ds_permute', 'ds_swizzle')):
                self.wr = self.R(0); self.rd = allr(1)
            else:
                self.rd = allr(0)
        elif mn.startswith(('buffer_', 'global_')):
            self.kind = 'vmem'
            w = re.search(r'x(\d)$', mn)
            self.width = int(w.group(1)) if w else 1
            if mn.startswith('buffer_load') and 'lds' in self.mods:
                self.lds_dma = True; self.rd = allr(0) + [('s', 124)]
            elif mn.startswith('global_load_lds'):
                self.lds_dma = True; self.rd = allr(0) + [('s', 124)]
            elif '_load' in mn:
                self.wr = self.R(0); self.rd = allr(1)
            elif '_atomic' in mn:
                self.rd = allr(0)
                if 'sc0' in self.mods: self.wr = self.R(0) if mn.startswith('buffer') else []
                if 'sc0' in self.mods and mn.startswith('global'):
                    self.wr = self.R(0); self.rd = allr(1)
            elif mn in ('buffer_wbl2', 'buffer_inv'):
                pass
            else:
                self.rd = allr(0)
        elif mn.startswith('s_'):
            self.kind = 'salu'
            if mn.startswith(('s_load', 's_buffer_load')):
                self.kind = 'smem'; self.wr = self.R(0); self.rd = allr(1)
            elif mn in ('s_memtime', 's_memrealtime'):
                self.kind = 'smem'; self.wr = self.R(0)
            elif mn.startswith(('s_cmp', 's_bitcmp', 's_cbranch', 's_branch', 's_waitcnt', 's_barrier', 's_nop', 's_endpgm', 's_setprio', 's_sleep')):
                self.rd = allr(0)
                if mn in ('s_cbranch_vccz', 's_cbranch_vccnz'): self.rd += [('s', 106), ('s', 107)]
                if mn in ('s_cbranch_execz', 's_cbranch_execnz'): self.rd += [('s', 126), ('s', 127)]
            elif 'saveexec' in mn:
                self.wr = self.R(0) + [('s', 126), ('s', 127)]; self.rd = allr(1) + [('s', 126), ('s', 127)]
            else:
                self.wr = self.R(0); self.rd = allr(1)
                if mn.startswith(('s_addk', 's_mulk', 's_cmov')): self.rd += self.R(0)
        else:
            raise ValueError('unknown instr: ' + self.text)
    @property
    def is_dpp(self):
        return any(m.startswith(('row_', 'quad_perm', 'wave_')) for m in self.mods)
    @property
    def nstates(self):
        if self.mn == 's_nop': return int(self.ops[0], 0) + 1
        return 1

def need_states(p, c):
    n = 0
    pw = set(p.wr); cr = set(c.rd); cw = set(c.wr)
    vfile = lambda S: {r for r in S if r[0] in 'va'}
    sfile = lambda S: {r for r in S if r[0] == 's'}
    if p.kind == 'valu':
        vw = vfile(pw); sw = sfile(pw)
        if c.kind == 'mfma' and vw & cr: n = max(n, 2)
        if c.kind == 'valu':
            if vw & cr:
                if c.mn.startswith('v_permlane'): n = max(n, 2)
                if c.is_dpp: n = max(n, 2)
                if c.mn.startswith(('v_readlane', 'v_readfirstlane')): n = max(n, 1)
                if p.mn.replace('_e32', '').replace('_e64', '') in TRANS and c.mn.replace('_e32', '').replace('_e64', '') not in TRANS: n = max(n, 1)
                if any(m.startswith(('op_sel', 'dst_sel')) for m in p.mods): n = max(n, 1)
            if sw & cr:
                n = max(n, 4 if c.mn.startswith(('v_readlane', 'v_writelane')) else 2)
            if ('s', 126) in sw:
                n = max(n, 5 if c.is_dpp else (4 if c.mn.startswith(('v_readlane', 'v_readfirstlane', 'v_writelane', 'v_permlane')) else 0))
        if c.kind == 'mfma' and ('s', 126) in sw: n = max(n, 4)
        if c.kind == 'vmem' and sw & cr: n = max(n, 5)
        if c.kind in ('salu', 'smem') and sw & cr: n = max(n, 1)
    if p.kind == 'mfma':
        D = set(p.dreg)
        far = {4: 8, 8: 12}[p.passes]
        if c.kind == 'mfma':
            if D & set(c.srcAB): n = max(n, far)
            if D & set(c.srcC):
                if p.dreg == c.srcC and p.mn == c.mn: pass
                else: n = max(n, {4: 6, 8: 10}[p.passes])
            if D & set(c.dreg) and not (p.dreg == c.dreg):
                n = max(n, {4: 6, 8: 10}[p.passes])
            if p.dreg == c.dreg and not (D & set(c.srcC)):
                n = max(n, 0)
        elif c.kind == 'valu':
            if D & (cr | cw): n = max(n, far)
            if set(p.srcC) & cw: n = max(n, {4: 3, 8: 7}[p.passes])
        elif c.kind in ('vmem', 'ds'):
            if D & (cr | cw): n = max(n, far)
    if p.kind == 'vmem' and ('store' in p.mn or 'atomic' in p.mn) and p.width >= 3:
        data = set(p.R(0)) if p.mn.startswith('buffer') else set(p.R(1))
        if data & cw: n = max(n, 2 if c.kind == 'valu' else 1)
    if p.kind == 'salu' and ('s', 124) in pw:
        if c.lds_dma or c.mn.startswith('s_sendmsg'): n = max(n, 1)
    return n

class Asm:
    def __init__(self):
        self.time_model = True
        self.items = []
    def __call__(self, text):
        for line in text.split('\n'):
            s = line.strip()
            if not s or s.startswith(';'): continue
            if s.endswith(':'):
                self.items.append(('l', s[:-1]))
            elif s.startswith('.'):
                self.items.append(('r', s))
            elif s.startswith('@'):
                self.items.append(('d', s[1:]))
            else:
                self.items.append(('i', Ins(s)))
    def label(self, name): self.items.append(('l', name))
    def raw(self, text): self.items.append(('r', text))

    def insert_waits(self):
        out = []
        vm, lg = [], []
        marks = {}
        def wait(v=None, l=None):
            parts = []
            if v is not None: parts.append(f'vmcnt({min(v,63)})')
            if l is not None: parts.append(f'lgkmcnt({min(l,15)})')
            out.append(('i', Ins('s_waitcnt ' + ' '.join(parts))))
        def trim(q, k):
            return q[len(q) - k:] if (k and len(q) > k) else ([] if k == 0 else q)
        def apply_wait(ins):
            nonlocal vm, lg
            t = ins.text
            m = re.search(r'vmcnt\((\d+)\)', t)
            if m: vm = trim(vm, int(m.group(1)))
            m = re.search(r'lgkmcnt\((\d+)\)', t)
            if m:
                k = int(m.group(1))
                if k == 0 or not any(e[1] for e in lg): lg = trim(lg, k)
        def younger(q):
            d = {}
            for i, e in enumerate(q):
                for r in e[0]: d[r] = len(q) - 1 - i
            return d
        for it in self.items:
            if it[0] == 'd':
                d = it[1].split()
                if d[0] == 'assume_drained': vm, lg = [], []
                elif d[0] == 'assume_vm_empty': vm = []
                elif d[0] == 'assume_lg_empty': lg = []
                elif d[0] == 'vm_set':
                    n = int(d[1]); regs = set()
                    for tok in d[2:]: regs |= set(parse_reg(tok))
                    vm = [(set(regs), False, False) for _ in range(n)]
                elif d[0] == 'wait_ds_writes':
                    idx = max([i for i, e in enumerate(lg) if e[2]], default=-1)
                    if idx >= 0:
                        n = len(lg) - 1 - idx
                        wait(None, n); lg = trim(lg, min(n, 15))
                elif d[0] == 'check_drained':
                    assert not any(e[0] for e in vm) and not any(e[0] for e in lg), f'pending loads at check_drained: vm={vm} lg={lg}'
                elif d[0] == 'loop_begin':
                    marks[d[1]] = (list(vm), list(lg))
                elif d[0] == 'loop_end':
                    v0, l0 = marks[d[1]]
                    for (qe, q0, nm) in ((vm, v0, 'vm'), (lg, l0, 'lgkm')):
                        ye, y0 = younger(qe), younger(q0)
                        for r, n in ye.items():
                            assert r in y0, f'loop {d[1]}: {nm} pending {r} at end but not at entry'
                            assert n >= y0[r], f'loop {d[1]}: {nm} pending {r}: younger at end {n} < at entry {y0[r]}'
                out.append(it); continue
            if it[0] != 'i':
                out.append(it); continue
            ins = it[1]
            if ins.mn == 's_waitcnt':
                apply_wait(ins); out.append(it); continue
            touch = set(ins.rd) | set(ins.wr)
            nv = nl = None
            for idx, q in enumerate(vm):
                if q[0] & touch: nv = len(vm) - 1 - idx
            for idx, q in enumerate(lg):
                if q[0] & touch: nl = len(lg) - 1 - idx
            if nl is not None and any(e[1] for e in lg): nl = 0
            if nv is not None or nl is not None:
                wait(nv, nl)
                if nv is not None: vm = trim(vm, min(nv, 63))
                if nl is not None: lg = trim(lg, min(nl, 15))
            if ins.kind == 'vmem' and ins.mn not in ('buffer_inv',):
                vm.append((set(ins.wr), False, False))
            elif ins.kind == 'ds':
                lg.append((set(ins.wr), False, ins.mn.startswith('ds_write')))
            elif ins.kind == 'smem':
                lg.append((set(ins.wr), True, False))
            out.append(it)
        self.items = out

    def fix_smem(self):
        pass

    def pad_hazards(self):
        items = self.items
        labels = {}
        def build_index():
            labels.clear()
            for i, it in enumerate(items):
                if it[0] == 'l': labels[it[1]] = i
        def required_nops(hist, ins):
            dist = 0; need = 0
            for k in range(len(hist) - 1, -1, -1):
                p = hist[k]
                n = need_states(p, ins)
                if n > 0:
                    d = dist
                    if p.kind == 'mfma' and self.time_model:
                        t = 0; free = p.passes
                        for q in hist[k+1:]:
                            if q.kind == 'mfma':
                                t = max(t + 1, free); free = t + q.passes
                            else:
                                t += q.nstates
                        tc = t + 1
                        if ins.kind == 'mfma': tc = max(tc, free)
                        d = max(d, tc - 1)
                    if n > d: need = max(need, n - d)
                dist += p.nstates
                if dist >= 24: break
            return need
        out = []; hist = []
        for it in items:
            if it[0] == 'i':
                ins = it[1]
                n = required_nops(hist, ins)
                while n > 0:
                    k = min(n, 16)
                    nop = Ins(f's_nop {k-1}')
                    out.append(('i', nop)); hist.append(nop); n -= k
                out.append(it); hist.append(ins)
                if ins.mn in ('s_branch', 's_endpgm'): hist = []
                hist = hist[-32:]
            else:
                out.append(it)
        self.items = items = out
        changed = True; guard = 0
        while changed:
            changed = False; guard += 1
            assert guard < 200
            build_index()
            for i, it in enumerate(items):
                if it[0] == 'i' and it[1].mn.startswith(('s_cbranch', 's_branch')):
                    tgt = it[1].ops[0]
                    if tgt not in labels: continue
                    hist = [x[1] for x in items[max(0, i - 40):i + 1] if x[0] == 'i']
                    j = labels[tgt] + 1
                    h = list(hist); seen = 0
                    while j < len(items) and seen < 24:
                        x = items[j]
                        if x[0] == 'i':
                            n = required_nops(h, x[1])
                            if n > 0:
                                items.insert(labels[tgt] + 1, ('i', Ins(f's_nop {min(n,16)-1}')))
                                changed = True
                                break
                            h.append(x[1]); seen += x[1].nstates
                            if x[1].mn in ('s_branch', 's_endpgm'): break
                        j += 1
                    if changed: break
    def text(self, compact=False):
        o = []
        for k, v in self.items:
            if k == 'i': o.append(('' if compact else '    ') + v.text)
            elif k == 'l': o.append(v + ':')
            elif k == 'r': o.append(v)
        return '\n'.join(o) + '\n'
    def finalize(self, compact=False):
        self.insert_waits()
        self.pad_hazards()
        return self.text(compact)
    def count(self):
        return sum(1 for k, _ in self.items if k == 'i')
```

```python
from asmlib import Asm
import layout as L

T, L16, AGP, QW, QR, OW, OR_, RSW, AGW, WL, IDX, RSR = range(12)
SEL = 12
AO = 16
X = 24
AQ, AK, AV = 40, 48, 56
POOL = 64
WKR = 128
WOR = 192
S_WS = 8
sH, sWV, sSTEP, sAGR, sAGWR, sAGRST = 16, 17, 18, 19, 20, 21
sRSW = 22
sONES = 24
sKX, sVX, sKM, sVM = 28, 29, 30, 31
sC = 36
sSPIN = 37
sT0, sT1, sT2, sT3 = 38, 39, 40, 41
sPW = 42
sMEMS = 46
sSAVE = 48
sPLO, sPHI = 50, 51
sDBG = 52
sLKX, sLVX = 33, 34
sKMO = 32
sRST = 57
sRSR = 60
STAMP0 = 70
sNONCE, sNRDY, sFCH = 69, 68, 47
sPF = 54

CFG = dict(stamps=False, stamp_step=40, dbg_mems=True, nsteps=64, noreset=False)
STAMPS = []
HOOK = {}

def vr(a, n=1): return f'v{a}' if n == 1 else f'v[{a}:{a+n-1}]'
def ar(a, n=1): return f'a{a}' if n == 1 else f'a[{a}:{a+n-1}]'
def sr(a, n=1): return f's{a}' if n == 1 else f's[{a}:{a+n-1}]'

def wq(sg, t): return ar((sg*2+t)*8, 8)
def wv(sg, t): return ar(128+(sg*2+t)*8, 8)
def wk(sg, t):
    return vr(POOL+(sg*2+t)*8, 8) if sg < 4 else vr(WKR+((sg-4)*2+t)*8, 8)
WO_SLOT = {0: 48, 4: 56, 1: 24, 5: 32, 2: 40, 6: 0, 3: 8, 7: 16}
KMB = POOL
def wo(ko, t):
    return vr(POOL+WO_SLOT[ko*4+t], 8) if t < 4 else vr(WOR+(ko*4+t-4)*8, 8)
def oacc(t):
    return 40+4*t if t < 6 else X+4*(t-6)

WS = sr(S_WS, 4)

def srd(a, dst, argoff, nbytes):
    a(f'''
    s_load_dwordx2 {sr(dst,2)}, s[0:1], {argoff}
    s_waitcnt lgkmcnt(0)
    s_and_b32 {sr(dst+1)}, {sr(dst+1)}, 0xffff
    s_mov_b32 {sr(dst+2)}, {nbytes}
    s_mov_b32 {sr(dst+3)}, 0x20000
    ''')

def lane(a, dst):
    a(f'v_lshrrev_b32 v{dst}, 4, v{L16}')

def stamp(a, name):
    if not CFG['stamps']: return
    if CFG.get('only') and name not in CFG['only']: return
    if name not in STAMPS: STAMPS.append(name)
    i = STAMPS.index(name)
    assert STAMP0+1+2*i <= 101
    a.raw(f'    {"s_memrealtime" if CFG.get("rt") else "s_memtime"} s[{STAMP0+2*i}:{STAMP0+1+2*i}]')

def dump_stamps(a, w):
    if not CFG['stamps']: return
    n = 14
    a(f'''
    s_cmp_lg_u32 s{sSTEP}, {CFG['stamp_step']}
    s_cbranch_scc1 C_nostamp{w}
    s_waitcnt lgkmcnt(0)
    s_lshl_b32 s{sT0}, s{sH}, 2
    s_add_u32 s{sT0}, s{sT0}, s{sWV}
    s_lshl_b32 s{sT0}, s{sT0}, 7
    s_add_u32 s{sT0}, s{sT0}, {L.FLAGS + 0x10000}
    v_mov_b32 v{X}, 0
    ''')
    for i in range(n):
        a(f'v_mov_b32 v{T}, s{STAMP0+2*i}')
        a(f'buffer_store_dword v{T}, v{X}, {WS}, s{sT0} offen offset:{4*i}')
    a.label(f'C_nostamp{w}')

DUMPS = []
def dump(a, name, regs):
    if not CFG.get('dump'): return
    a(f'''
    s_lshl_b32 s{sT2}, s{sH}, 2
    s_add_u32 s{sT2}, s{sT2}, s{sWV}
    s_lshl_b32 s{sT2}, s{sT2}, 14
    s_add_u32 s{sT2}, s{sT2}, {L.FLAGS + 0x100000}
    ''')
    for r in regs:
        i = len(DUMPS); DUMPS.append(f'{name}{r}')
        a(f's_add_u32 s{sT3}, s{sT2}, {i*256}')
        a(f'buffer_store_dword v{r}, v{RSW}, {WS}, s{sT3} offen')

def emit_setup(a):
    T2 = X
    a(f'''
    v_and_b32 v{T2}, 63, v0
    v_lshlrev_b32 v{L16}, 4, v{T2}
    s_lshl_b32 s{sT0}, s{sWV}, 11
    v_add_u32 v{AGP}, s{sT0}, v{L16}
    ''')
    a(f'''
    v_lshrrev_b32 v{T}, 4, v{T2}
    v_mul_u32_u24 v{QW}, {2*L.QROW}, v{T}
    v_and_b32 v{T}, 15, v{T2}
    v_lshl_add_u32 v{QW}, v{T}, 3, v{QW}
    s_lshr_b32 s{sT0}, s{sWV}, 1
    s_lshl_b32 s{sT0}, s{sT0}, 7
    s_and_b32 s{sT1}, s{sWV}, 1
    s_lshl_b32 s{sT1}, s{sT1}, 2
    s_add_u32 s{sT0}, s{sT0}, s{sT1}
    v_add_u32 v{QW}, s{sT0}, v{QW}
    ''')
    a(f'''
    v_and_b32 v{T}, 7, v{T2}
    v_mul_u32_u24 v{QR}, {L.QROW}, v{T}
    v_lshrrev_b32 v{T}, 4, v{T2}
    v_lshl_add_u32 v{QR}, v{T}, 5, v{QR}
    ''')
    a(f'''
    s_add_u32 s{sT1}, s{sT0}, {L.L_O}
    v_add_u32 v{OW}, s{sT1}, v{QR}
    ''')
    a(f'''
    v_bfe_u32 v{T}, v{T2}, 2, 2
    v_lshlrev_b32 v{T}, 1, v{T}
    v_and_b32 v{OR_}, 1, v{T2}
    v_add_u32 v{T}, v{T}, v{OR_}
    v_mul_u32_u24 v{OR_}, {L.QROW}, v{T}
    v_lshrrev_b32 v{T}, 4, v{T2}
    v_lshl_add_u32 v{OR_}, v{T}, 5, v{OR_}
    v_bfe_u32 v{T}, v{T2}, 1, 1
    v_lshl_add_u32 v{OR_}, v{T}, 4, v{OR_}
    ''')
    a(f'''
    v_lshlrev_b32 v{RSW}, 2, v{T2}
    v_lshrrev_b32 v{T}, 4, v{T2}
    v_mul_u32_u24 v{RSR}, {L.RSH}, v{T}
    v_and_b32 v{T}, 15, v{T2}
    v_lshl_add_u32 v{RSR}, v{T}, 4, v{RSR}
    ''')
    a(f'''
    v_lshrrev_b32 v{T}, 4, v{T2}
    v_lshlrev_b32 v{AGW}, 6, v{T}
    v_bfe_u32 v{T}, v{T2}, 2, 1
    v_lshl_add_u32 v{AGW}, v{T}, 5, v{AGW}
    v_and_b32 v{T}, 1, v{T2}
    v_lshl_add_u32 v{AGW}, v{T}, 4, v{AGW}
    v_bfe_u32 v{T}, v{T2}, 1, 1
    v_lshl_add_u32 v{AGW}, v{T}, 3, v{AGW}
    ''')
    a(f'''
    s_lshl_b32 s{sT0}, s{sWV}, 15
    s_add_u32 s{sT0}, s{sT0}, {L.L_W}
    v_add_u32 v{WL}, s{sT0}, v{L16}
    ''')
    a(f'''
    v_bfe_u32 v{T}, v{T2}, 1, 1
    v_mov_b32 v{IDX}, 0x44444444
    v_cmp_eq_u32 vcc, 1, v{T}
    v_mov_b32 v{T}, 0xeeeeeeee
    v_cndmask_b32 v{IDX}, v{IDX}, v{T}, vcc
    ''')
    a(f'v_and_b32 v{T}, 7, v{T2}')
    for c in range(4):
        a(f'''
        v_mov_b32 v{SEL+c}, 0
        v_cmp_eq_u32 vcc, {2*c}, v{T}
        v_mov_b32 v{X+1}, 0x3f80
        v_cndmask_b32 v{SEL+c}, v{SEL+c}, v{X+1}, vcc
        v_cmp_eq_u32 vcc, {2*c+1}, v{T}
        v_mov_b32 v{X+1}, 0x3f800000
        v_cndmask_b32 v{SEL+c}, v{SEL+c}, v{X+1}, vcc
        ''')
    a(f'''
    s_mov_b32 s{sC}, 0x3e0293ee
    s_mov_b32 s{sONES}, 0x3f803f80
    s_mov_b32 s{sONES+1}, 0x3f803f80
    s_mov_b32 s{sSPIN}, 0x80000
    s_mov_b32 s{sPLO}, 0x05040100
    s_mov_b32 s{sPHI}, 0x07060302
    ''')

def emit_weights(a):
    VD, VB0, T2 = 16, 17, 21
    RAW = 64
    SRDW = {'q': sr(60, 4), 'v': sr(64, 4), 'k': sr(12, 4), 'o': sr(68, 4)}
    srd(a, 12, L.ARG['A_Wk'], 4194304)
    srd(a, 60, L.ARG['A_Wq'], 4194304)
    srd(a, 64, L.ARG['A_Wv'], 4194304)
    srd(a, 68, L.ARG['A_Wo'], 4194304)
    lane(a, T2)
    a(f"""
    v_lshrrev_b32 v{T}, 3, v{T2}
    v_lshlrev_b32 v{VD}, 13, v{T}
    v_and_b32 v{T}, 7, v{T2}
    v_lshl_add_u32 v{VD}, v{T}, 4, v{VD}
    s_lshr_b32 s{sPW}, s{sWV}, 1
    s_and_b32 s{sPW+1}, s{sWV}, 1
    """)
    for j in range(2):
        a(f"""
        s_xor_b32 s{sT0}, s{sPW}, {j}
        s_lshl_b32 s{sT0}, s{sT0}, 21
        s_lshl_b32 s{sT1}, s{sPW+1}, 20
        s_add_u32 s{sT0}, s{sT0}, s{sT1}
        s_lshl_b32 s{sT1}, s{sH}, 8
        s_add_u32 s{sT0}, s{sT0}, s{sT1}
        s_lshl_b32 s{sT1}, s{sPW}, 7
        s_add_u32 s{72+j}, s{sT0}, s{sT1}
        s_lshl_b32 s{sT0}, s{sPW}, 15
        s_lshl_b32 s{sT1}, s{sPW+1}, 14
        s_add_u32 s{sT0}, s{sT0}, s{sT1}
        s_add_u32 s{74+j}, s{sT0}, {L.L_W + j*65536}
        """)
    a(f"""
    v_bfe_u32 v{T}, v{T2}, 4, 1
    v_lshlrev_b32 v{T}, 3, v{T}
    v_lshrrev_b32 v{VB0}, 5, v{T2}
    v_add_u32 v{T}, v{T}, v{VB0}
    v_lshlrev_b32 v{T}, 7, v{T}
    v_and_b32 v{VB0}, 15, v{T2}
    v_lshl_add_u32 v{T}, v{VB0}, 3, v{T}
    s_lshl_b32 s{sT0}, s{sPW}, 15
    s_lshl_b32 s{sT1}, s{sPW+1}, 2
    s_add_u32 s{sT0}, s{sT0}, s{sT1}
    s_add_u32 s{sT0}, s{sT0}, {L.L_W}
    v_add_u32 v{T}, s{sT0}, v{T}
    """)
    for j in range(2):
        for p in range(2):
            a(f"""
            s_xor_b32 s{sT0}, s{sPW+1}, {p}
            s_lshl_b32 s{sT0}, s{sT0}, 14
            s_add_u32 s{sT0}, s{sT0}, {j*65536}
            v_add_u32 v{VB0+2*j+p}, s{sT0}, v{T}
            """)
    steps = [(m, j) for m in ('q', 'v', 'k') for j in range(2)]
    def issue(i):
        m, j = steps[i]
        for k in range(16):
            a(f's_add_u32 m0, s{74+j}, {k*1024}')
            a(f's_add_u32 s{sT0}, s{72+j}, {k*8*8192}')
            a(f'buffer_load_dwordx4 v{VD}, {SRDW[m]}, s{sT0} offen nt lds')
    TA, TB = 22, 23
    RW = 24
    def consume(i):
        m, j = steps[i]
        items = [(p, sp, qv) for p in range(2) for sp in range(2) for qv in range(8)]
        def rd(n):
            p, sp, qv = items[n]
            for e in range(2):
                row = 64*((qv >> 1) & 1) + 16*(qv & 1) + 4*sp + 2*(qv >> 2) + 32*e
                a(f'ds_read_b32 v{RW+(n % 6)*2+e}, v{VB0+2*j+p} offset:{row*128}')
        for n in range(5): rd(n)
        for n, (p, sp, qv) in enumerate(items):
            sg = 4*j + 2*p + sp
            r0, r1 = RW+(n % 6)*2, RW+(n % 6)*2+1
            for t, sel in ((0, sPLO), (1, sPHI)):
                if m in 'qv':
                    dst = (0 if m == 'q' else 128) + (sg*2+t)*8 + qv
                    tmp = TA if t == 0 else TB
                    a(f'v_perm_b32 v{tmp}, v{r1}, v{r0}, s{sel}')
                    a(f'v_accvgpr_write_b32 a{dst}, v{tmp}')
                elif sg >= 4:
                    a(f'v_perm_b32 v{WKR+((sg-4)*2+t)*8+qv}, v{r1}, v{r0}, s{sel}')
                else:
                    a(f'v_perm_b32 v{POOL+(sg*2+t)*8+qv}, v{r1}, v{r0}, s{sel}')
            if n + 5 < len(items): rd(n+5)
    issue(0); issue(1)
    for i in range(6):
        a(f's_waitcnt vmcnt({16 if i < 5 else 0})')
        a('s_barrier')
        consume(i)
        a('s_waitcnt lgkmcnt(0)')
        a('s_barrier')
        if i + 2 < 6: issue(i+2)
        if i == 4: pass
    VO = VD
    a(f"""
    v_lshrrev_b32 v{T}, 4, v{T2}
    v_lshlrev_b32 v{VO}, 10, v{T}
    v_and_b32 v{T}, 15, v{T2}
    v_lshl_add_u32 v{VO}, v{T}, 4, v{VO}
    s_lshl_b32 s{sT1}, s{sH}, 17
    s_lshl_b32 s{sT0}, s{sWV}, 8
    s_add_u32 s{72}, s{sT1}, s{sT0}
    s_lshl_b32 s{sT0}, s{sWV}, 15
    s_add_u32 s{74}, s{sT0}, {L.L_W}
    """)
    for k in range(32):
        a(f's_add_u32 m0, s74, {k*1024}')
        a(f's_add_u32 s{sT0}, s72, {k*4096}')
        a(f'buffer_load_dwordx4 v{VO}, {SRDW["o"]}, s{sT0} offen nt lds')
    a(f"""
    v_lshrrev_b32 v{T}, 5, v{T2}
    v_lshlrev_b32 v{T}, 4, v{T}
    v_bfe_u32 v{VB0}, v{T2}, 4, 1
    v_lshl_add_u32 v{T}, v{VB0}, 2, v{T}
    v_lshlrev_b32 v{T}, 8, v{T}
    v_and_b32 v{VB0}, 15, v{T2}
    v_lshl_add_u32 v{T}, v{VB0}, 4, v{T}
    v_add_u32 v{VB0}, s74, v{T}
    s_waitcnt vmcnt(0)
    """)
    RO = 56
    FO0 = 24
    def wo_item(ko, qv, dstf):
        e0 = 64*ko + 32*(qv >> 2) + 8*(qv & 1) + 2*((qv >> 1) & 1)
        a(f'ds_read_b128 {vr(RO,4)}, v{VB0} offset:{e0*256}')
        a(f'ds_read_b128 {vr(RO+4,4)}, v{VB0} offset:{(e0+1)*256}')
        for c in range(4):
            for hi, sel in ((0, sPLO), (1, sPHI)):
                t = 2*c + hi
                dst = dstf(t, qv) if t < 4 else WOR + (ko*4+t-4)*8 + qv
                a(f'v_perm_b32 v{dst}, v{RO+4+c}, v{RO+c}, s{sel}')
    for qv in range(8): wo_item(0, qv, lambda t, qv: FO0 + t*8 + qv)
    a('s_waitcnt lgkmcnt(0)')
    for f in range(8):
        a(f'ds_write_b128 v{WL}, {vr(POOL+f*8,4)} offset:{f*2048}')
        a(f'ds_write_b128 v{WL}, {vr(POOL+f*8+4,4)} offset:{f*2048+1024}')
    a('s_waitcnt lgkmcnt(0)')
    for qv in range(8): wo_item(1, qv, lambda t, qv: POOL + t*8 + qv)
    a('s_waitcnt lgkmcnt(0)')
    for t in range(4):
        a(f'ds_write_b128 v{WL}, {vr(FO0+t*8,4)} offset:{16384+t*2048}')
        a(f'ds_write_b128 v{WL}, {vr(FO0+t*8+4,4)} offset:{16384+t*2048+1024}')
        a(f'ds_write_b128 v{WL}, {vr(POOL+t*8,4)} offset:{16384+(4+t)*2048}')
        a(f'ds_write_b128 v{WL}, {vr(POOL+t*8+4,4)} offset:{16384+(4+t)*2048+1024}')
    a('s_waitcnt vmcnt(0) lgkmcnt(0)')

def poll_loop(a, name, loads, checks):
    a.label(f'{name}')
    for l in loads: a(l)
    a('s_waitcnt vmcnt(0)')
    c = list(checks)
    if len(c) == 2:
        a(f'v_max_u32 v{T}, v{c[0]}, v{c[1]}')
    else:
        a(f'v_max3_u32 v{T}, v{c[0]}, v{c[1]}, v{c[2]}')
        c = c[3:]
        while len(c) >= 2:
            a(f'v_max3_u32 v{T}, v{T}, v{c[0]}, v{c[1]}'); c = c[2:]
        if c: a(f'v_max_u32 v{T}, v{T}, v{c[0]}')
    a(f'''
    v_cmp_eq_u32 vcc, -1, v{T}
    s_cbranch_vccz {name}_ok
    s_cmp_eq_u32 s{sSPIN}, 0
    s_cbranch_scc1 {name}_ok
    s_sub_u32 s{sSPIN}, s{sSPIN}, 1
    s_branch {name}
    ''')
    a.label(f'{name}_ok')

def smf(a, acc, A, B):
    a(f'v_smfmac_f32_16x16x64_bf16 {vr(acc,4)}, {vr(A,4)}, {B}, v{IDX}')
def mf(a, D, A, B, C):
    a(f'v_mfma_f32_16x16x32_bf16 {vr(D,4)}, {vr(A,4)}, {vr(B,4)}, {C if C == "0" else vr(C,4)}')
def rd128(a, dst, addr, off):
    a(f'ds_read_b128 {vr(dst,4)}, v{addr} offset:{off}')

def zero(a, r0, n):
    for r in range(r0, r0+n, 2):
        a(f'v_mov_b64 {vr(r,2)}, 0')

def fin_qk(a, acc, ldsoff):
    a(f'v_pk_add_f32 {vr(acc,2)}, {vr(acc,2)}, {vr(acc+2,2)}')
    a(f'v_pk_add_f32 {vr(acc+4,2)}, {vr(acc+4,2)}, {vr(acc+6,2)}')
    a(f'v_cvt_pk_bf16_f32 v{acc}, v{acc}, v{acc+4}')
    a(f'v_cvt_pk_bf16_f32 v{acc+1}, v{acc+1}, v{acc+5}')
    a(f'ds_write_b32 v{QW}, v{acc} offset:{ldsoff}')
    a(f'ds_write_b32 v{QW}, v{acc+1} offset:{ldsoff+L.QROW}')

def prefetch_wk(a, fr=range(8)):
    for f in fr:
        rd128(a, POOL+f*8, WL, f*2048)
        rd128(a, POOL+f*8+4, WL, f*2048+1024)

def prefetch_wo(a, f):
    rd128(a, POOL+WO_SLOT[f], WL, 16384+f*2048)
    rd128(a, POOL+WO_SLOT[f]+4, WL, 16384+f*2048+1024)

def dma8(a, ldsbase, soff):
    for half in range(2):
        a(f's_mov_b32 m0, {ldsbase + half*4096}')
        if half:
            a(f's_add_u32 s{sT0}, s{soff}, 4096')
        so = f's{sT0}' if half else f's{soff}'
        for k in range(4):
            off = f' offset:{k*1024}' if k else ''
            a(f'buffer_load_dwordx4 v{L16}, {WS}, {so} offen{off} lds')

def dma2(a, ldsbase_s, soff):
    if CFG.get('nodma'): soff = sAGR
    a(f's_mov_b32 m0, s{ldsbase_s}')
    a(f'buffer_load_dwordx4 v{L16}, {WS}, s{soff} offen lds')
    a(f'buffer_load_dwordx4 v{L16}, {WS}, s{soff} offen offset:1024 lds')

def fin_out(a, t):
    b = oacc(t)
    a(f'v_pk_add_f32 {vr(b,2)}, {vr(b,2)}, {vr(b+2,2)}')
    a(f'v_cvt_pk_bf16_f32 v{b}, v{b}, v{b+1}')
    a(f'buffer_store_dword v{b}, v{RSW}, {WS}, s{sRSW} offen offset:{t*256}')

def barrier(a, name):
    a('@wait_ds_writes')
    a('s_barrier')
    stamp(a, name)

def spin_fail(a, back, ok):
    a(f'''
    s_cmp_eq_u32 s{sSPIN}, 0
    s_cbranch_scc1 {ok}
    s_sub_u32 s{sSPIN}, s{sSPIN}, 1
    s_branch {back}
    ''')

def kv_wait(a, tag, sneed, v1, v2):
    a.label(tag)
    a(f'''
    v_lshrrev_b32 v{v1}, 2, v{L16}
    v_and_b32 v{v1}, 60, v{v1}
    s_lshl_b32 s{sT1}, s{sH}, 6
    s_add_u32 s{sT1}, s{sT1}, {L.F_KV}
    buffer_load_dword v{v2}, v{v1}, {WS}, s{sT1} offen sc1
    s_waitcnt vmcnt(0)
    v_cmp_ne_u32 vcc, s{sNONCE}, v{v2}
    s_nop 1
    s_or_b32 s{sT1}, vcc_lo, 0x10000
    s_ff1_i32_b32 s{sNRDY}, s{sT1}
    s_cmp_lt_u32 s{sneed}, s{sNRDY}
    s_cbranch_scc1 {tag}_ok
    s_cmp_eq_u32 s{sSPIN}, 0
    s_cbranch_scc1 {tag}_ok
    s_sub_u32 s{sSPIN}, s{sSPIN}, 1
    s_sleep 8
    s_branch {tag}
    ''')
    a.label(f'{tag}_ok')

def get_nonce(a, tag, v1, v2, make=False):
    a(f'v_mov_b32 v{v1}, {L.DBG_NONCE}')
    a(f's_mov_b32 s{sT3}, 0x40000')
    a.label(tag)
    a(f'''
    global_load_dword v{v2}, v{v1}, {sr(sDBG,2)} sc1
    s_waitcnt vmcnt(0)
    v_readfirstlane_b32 s{sNONCE}, v{v2}
    s_cmp_lg_u32 s{sNONCE}, 0
    s_cbranch_scc1 {tag}_ok
    s_sub_u32 s{sT3}, s{sT3}, 1
    s_cbranch_scc1 {tag}_ok
    s_sleep 4
    s_branch {tag}
    ''')
    a.label(f'{tag}_ok')

def emit_step(a, w):
    dbg_mems = CFG['dbg_mems']
    pub = not CFG.get('nopub'); flags = CFG.get('flags')
    Lb = lambda n: f'C{w}_{n}'
    a(f'@loop_begin chain{w}')
    a.label(Lb('step'))
    stamp(a, 'top')
    def add(r): a(f'v_add_f32 v{r}, v{r}, v{r+2}')
    def cvt(d, x, y): a(f'v_cvt_pk_bf16_f32 v{d}, v{x}, v{y}')
    def mov(d, x): a(f'v_mov_b32 v{d}, {x}')
    def wr32(r, off): a(f'ds_write_b32 v{QW}, v{r} offset:{off}')
    def rdkx(f): rd128(a, POOL+32+4*f, L16, L.L_KX+f*1024)
    def rdq(ks): rd128(a, X+4*ks, QR, L.L_Q + 128*(ks >> 1) + 16*(ks & 1))
    def rdkm(ks, dst=None): rd128(a, KMB+4*ks if dst is None else dst, OR_, L.L_K + 128*(ks >> 1) + 16*(ks & 1))
    def rdwo(f, h): rd128(a, POOL+WO_SLOT[f]+4*h, WL, 16384+f*2048+1024*h)
    def SX(tile, ks): mf(a, AQ+4*tile, POOL+32+4*(tile*4+ks), X+4*ks, '0' if ks == 0 else AQ+4*tile)
    def agl(base):
        a(f'buffer_load_dwordx4 {vr(base,4)}, v{AGP}, {WS}, s{sAGR} offen sc1')
        a(f'buffer_load_dwordx4 {vr(base+4,4)}, v{AGP}, {WS}, s{sAGR} offen offset:1024 sc1')
    def agchk(base, ok):
        a(f'v_max3_u32 v{T}, v{base}, v{base+2}, v{base+4}')
        a(f'v_max_u32 v{T}, v{T}, v{base+6}')
        a(f'v_cmp_eq_u32 vcc, -1, v{T}')
        a(f's_cbranch_vccz {ok}')
    if w == 1 and pub:
        rd128(a, X+8, L16, L.L_Q); rd128(a, X+12, L16, L.L_Q+1024)
    if w == 3 and pub:
        rd128(a, X+8, OR_, L.L_K); rd128(a, X+12, OR_, L.L_K + 128)
    for i in range(CFG.get('ag_delay', 0) if w else max(0, CFG.get('ag_delay', 0) - 2)): a('s_nop 15')
    agl(AO)
    for i in range(CFG.get('ag_gap', 2)): a('s_nop 15')
    agl(X)
    a.label(Lb('ag'))
    a('s_waitcnt vmcnt(2)')
    stamp(a, 'ag_r0')
    agchk(AO, Lb('agA'))
    agl(AO)
    a('s_waitcnt vmcnt(2)')
    agchk(X, Lb('agB'))
    agl(X)
    a(f"""
    s_cmp_eq_u32 s{sSPIN}, 0
    s_cbranch_scc1 {Lb('agA')}
    s_sub_u32 s{sSPIN}, s{sSPIN}, 1
    s_branch {Lb('ag')}
    """)
    def prefix(A0, tag):
        Ar = lambda sg: A0+4*sg
        a(f'ds_write_b128 v{AGP}, {vr(A0,4)} offset:{L.L_MEM}')
        a(f'ds_write_b128 v{AGP}, {vr(A0+4,4)} offset:{L.L_MEM+1024}')
        smf(a, AQ, Ar(0), wq(0, 0)); smf(a, AQ+4, Ar(0), wq(0, 1)); smf(a, AQ, Ar(1), wq(1, 0)); smf(a, AQ+4, Ar(1), wq(1, 1))
        smf(a, AK, Ar(0), wk(0, 0)); a(f'v_xor_b32 v{T}, {1<<11}, v{AGP}')
        smf(a, AK+4, Ar(0), wk(0, 1))
        a('@wait_ds_writes')
        a('s_barrier')
        stamp(a, 'B1')
        rdA = lambda sg: rd128(a, POOL+(sg-2)*4, T, L.L_MEM + (sg & 1)*1024)
        smf(a, AK, Ar(1), wk(1, 0)); rdA(2)
        smf(a, AK+4, Ar(1), wk(1, 1)); rdA(3); a(f'v_xor_b32 v{T}, {2<<11}, v{AGP}')
        smf(a, AV, Ar(0), wv(0, 0)); rdA(4)
        smf(a, AV+4, Ar(0), wv(0, 1)); rdA(5); a(f'v_xor_b32 v{T}, {3<<11}, v{AGP}')
        smf(a, AV, Ar(1), wv(1, 0)); rdA(6)
        smf(a, AV+4, Ar(1), wv(1, 1)); rdA(7)
    a.label(Lb('agB'))
    a('@assume_vm_empty')
    stamp(a, 'ag_ok')
    prefix(X, 'B')
    a(f's_branch {Lb("agJ")}')
    a.label(Lb('agA'))
    stamp(a, 'ag_ok')
    prefix(AO, 'A')
    a.label(Lb('agJ'))
    a(f'@vm_set 2 {vr(AO,8)} {vr(X,8)}')
    Areg = lambda sg: POOL+(sg-2)*4
    Q = lambda sg, t: smf(a, AQ+4*t, Areg(sg), wq(sg, t))
    K = lambda sg, t: smf(a, AK+4*t, Areg(sg), wk(sg, t))
    V = lambda sg, t: smf(a, AV+4*t, Areg(sg), wv(sg, t))
    stamp(a, 'j0')
    def rs_reset(t): a(f'buffer_store_dwordx4 {vr(X+12,4)}, v{RSR}, {WS}, s{sRST+t} offen')
    def dma(reg_off, lds, k):
        soff = sAGR if CFG.get('nodma') else reg_off
        if k % 4 == 0:
            a(f's_mov_b32 m0, {lds + k*1024}')
            if k: a(f's_add_u32 s{sT0}, s{soff}, 4096')
        so = sT0 if k >= 4 else soff
        a(f'buffer_load_dwordx4 v{L16}, {WS}, s{so} offen' + (f' offset:{(k & 3)*1024}' if k & 3 else '') + ' lds')
    def st4(src, soff, off, extra=''): a(f'buffer_store_dwordx4 {vr(src,4)}, v{L16}, {WS}, s{soff} offen offset:{off}{extra}')
    E = {}
    def ex(slot, fn): E.setdefault(slot, []).append(fn)
    def run(slot):
        for fn in E.get(slot, []): fn()
    def pf(k):
        so = sAGR if CFG.get('nopf') else sPF
        a(f'buffer_load_dword v{T}, {WS}, s{so} offen' + (' offset:64' if k & 1 else '') + ' lds')
    def pf0(tag):
        if flags:
            a(f"""
            s_add_u32 s{sT0}, s{sSTEP}, 1
            s_lshr_b32 s{sT0}, s{sT0}, 2
            s_min_u32 s{sT0}, s{sT0}, 15
            s_cmp_lt_u32 s{sT0}, s{sNRDY}
            s_cbranch_scc1 {tag}_grpok
            """)
            kv_wait(a, f'{tag}_kvw', sT0, T, X+10)
            a.label(f'{tag}_grpok')
        if CFG.get('pf'):
            a(f's_mov_b32 m0, {L.L_O + 2176 + (w-1)*256}')
            a(f'v_lshlrev_b32 v{T}, 3, v{L16}')
    def piece(p):
        reg, lds = (sKX, L.L_KX) if p < 8 else (sVX, L.L_VX)
        k = p & 7
        soff = sAGR if CFG.get('nodma') else reg
        a(f's_mov_b32 m0, {lds + (k & 4)*1024}')
        if k >= 4: a(f's_add_u32 s{sT0}, s{soff}, 4096')
        so = sT0 if k >= 4 else soff
        a(f'buffer_load_dwordx4 v{L16}, {WS}, s{so} offen' + (f' offset:{(k & 3)*1024}' if k & 3 else '') + ' lds')
    def kmc(hf, dst): rd128(a, dst, OR_, L.L_K + 128*hf)
    if w == 0:
        ex('Q40', lambda: mov(X+12, -1)); ex('Q41', lambda: mov(X+13, -1))
        ex('Q51', lambda: a(f'buffer_store_dwordx2 {vr(X+12,2)}, v{AGW}, {WS}, s{sAGWR} offen'))
    else:
        if pub and w == 1:
            ex('Q20', lambda: st4(X+8, sVM, 0, ' sc1')); ex('Q31', lambda: st4(X+12, sVM, 1024, ' sc1'))
        if pub and w == 3:
            ex('Q40', lambda: st4(X+8, sKM, 0, ' sc1')); ex('Q50', lambda: st4(X+12, sKM, 1024, ' sc1'))
        movs = ('Q50', 'Q51', 'Q60', 'Q61') if w != 3 else ('Q60', 'Q61', 'Q70', 'Q71')
        for i, sl in enumerate(movs): ex(sl, lambda i=i: mov(X+12+i, -1))
        rsl_ = {1: ('Q71', 'K41', 'V20'), 2: ('Q70', 'K31', 'K61'), 3: ('K21', 'K51')}[w]
        for i, sl in enumerate(rsl_): ex(sl, lambda i=i: rs_reset(i))
        ex('K20', lambda: pf0(f'C{w}'))
        if w == 3 and flags:
            def fch():
                a(f"""
                s_mov_b64 exec, 1
                v_mov_b32 v{X+8}, s{sNONCE}
                v_mov_b32 v{X+9}, 0
                buffer_store_dword v{X+8}, v{X+9}, {WS}, s{sFCH} offen sc1
                s_mov_b64 exec, -1
                s_add_u32 s{sFCH}, s{sFCH}, 128
                """)
            ex('K60', fch)
        slots = ['S00', 'S01', 'S02', 'S03', 'S10', 'S11', 'S12', 'S13', 'M0', 'M1', 'M2', 'M3', 'F0', 'F1', 'E0', 'E1']
        for p in range(16):
            if p % 3 == w - 1: ex(slots[p], lambda p=p: piece(p))
    Q(2, 0); rdwo(1, 0); run('Q20')
    Q(2, 1); rdwo(1, 1); run('Q21')
    Q(3, 0); run('Q30')
    Q(3, 1); run('Q31')
    stamp(a, 'j1')
    Q(4, 0); run('Q40')
    Q(4, 1); run('Q41')
    Q(5, 0); run('Q50')
    Q(5, 1); run('Q51')
    Q(6, 0); rd128(a, AO, AGP, L.L_VX); run('Q60')
    Q(6, 1); rd128(a, AO+4, AGP, L.L_VX+1024); run('Q61')
    Q(7, 0); run('Q70')
    Q(7, 1); run('Q71')
    stamp(a, 'j3')
    K(2, 0); run('K20')
    K(2, 1); run('K21'); add(AQ)
    K(3, 0); add(AQ+1)
    K(3, 1); rdkx(0); run('K31'); add(AQ+4)
    K(4, 0); rdkx(1); add(AQ+5)
    K(4, 1); rdkx(2); run('K41'); cvt(AQ, AQ, AQ+4)
    K(5, 0); rdkx(3); cvt(AQ+1, AQ+1, AQ+5)
    K(5, 1); wr32(AQ, L.L_Q); wr32(AQ+1, L.L_Q+L.QROW); run('K51')
    K(6, 0); rdkx(4); run('K60')
    K(6, 1); rdkx(5); run('K61')
    K(7, 0); rdkx(6)
    K(7, 1); rdkx(7)
    stamp(a, 'j5')
    V(2, 0); run('V20')
    V(2, 1); add(AK)
    V(3, 0); run('V30'); add(AK+1)
    V(3, 1); add(AK+4)
    V(4, 0); add(AK+5)
    V(4, 1); cvt(AK, AK, AK+4)
    V(5, 0); cvt(AK+1, AK+1, AK+5)
    V(5, 1); wr32(AK, L.L_K); wr32(AK+1, L.L_K+L.QROW)
    V(6, 0)
    V(6, 1)
    barrier(a, 'B2')
    V(7, 0); rdq(0); rdq(1)
    V(7, 1); rdq(2); rdq(3)
    m, m2 = AK+4, AK+5
    stamp(a, 'j6')
    rdkm(0)
    SX(0, 0); rdkm(1); run('S00')
    SX(0, 1); rdkm(2); run('S01')
    SX(0, 2); rdkm(3); run('S02')
    SX(0, 3); rdwo(7, 0); run('S03')
    SX(1, 0); rdwo(7, 1); run('S10')
    SX(1, 1); run('S11')
    SX(1, 2); run('S12')
    SX(1, 3); rdwo(5, 0); run('S13')
    def SM(ks): mf(a, AK, KMB+4*ks, X+4*ks, '0' if ks == 0 else AK)
    stamp(a, 'j8')
    SM(0); rdwo(5, 1); run('M0'); a(f'v_max3_f32 v{m}, v{AQ}, v{AQ+1}, v{AQ+2}')
    SM(1); rdwo(2, 0); run('M1'); a(f'v_max3_f32 v{m2}, v{AQ+3}, v{AQ+4}, v{AQ+5}')
    SM(2); rdwo(2, 1); run('M2'); a(f'v_max3_f32 v{m}, v{m}, v{AQ+6}, v{AQ+7}')
    SM(3); rdwo(0, 0); run('M3')
    a(f'v_max_f32 v{m}, v{m}, v{m2}')
    stamp(a, 'sm_issued')
    rdwo(0, 1); rdwo(4, 0)
    a(f'v_max3_f32 v{m}, v{m}, v{AK}, v{AK+1}')
    a(f'v_mov_b32 v{m2}, v{m}')
    run('F0')
    a(f'v_permlane32_swap_b32 v{m}, v{m2}')
    a(f'v_max_f32 v{m}, v{m}, v{m2}')
    a(f'v_mov_b32 v{m2}, v{m}')
    run('F1'); rdwo(4, 1)
    a(f'v_permlane16_swap_b32 v{m}, v{m2}')
    a(f'v_max_f32 v{m}, v{m}, v{m2}')
    a(f'v_mul_f32 v{m}, s{sC}, v{m}')
    stamp(a, 'max_done')
    rdwo(6, 0); rdwo(6, 1); rdwo(3, 0); rdwo(3, 1)
    S = [AQ+i for i in range(8)] + [AK, AK+1]
    for i, r in enumerate(S):
        a(f'v_fma_f32 v{r}, v{r}, s{sC}, -v{m}')
    run('E0')
    for i, r in enumerate(S):
        a(f'v_exp_f32 v{r}, v{r}')
        if i == 4: run('E1')
    stamp(a, 'exp_done')
    cvt(AK+4, AQ, AQ+1); cvt(AK+5, AQ+2, AQ+3); cvt(AK+6, AQ+4, AQ+5); cvt(AK+7, AQ+6, AQ+7)
    for i in range(4): mov(X+4+i, f's{sONES}')
    mf(a, AQ, AO, AK+4, '0')
    cvt(AK+3, AK, AK+1); cvt(AK, AK, AK+1)
    mf(a, AQ+4, AO+4, AK+4, '0')
    add(AV); add(AV+1)
    mf(a, X, X+4, AK+4, '0')
    add(AV+4); add(AV+5)
    mov(AK+1, 0); mov(AK+2, 0)
    cvt(X+12, AV, AV+1); cvt(X+13, AV+4, AV+5)
    a(f'v_mfma_f32_16x16x16_bf16 {vr(X,4)}, {vr(X+4,2)}, {vr(AK,2)}, {vr(X,4)}')
    a(f'v_mfma_f32_16x16x16_bf16 {vr(AQ,4)}, {vr(X+12,2)}, {vr(AK,2)}, {vr(AQ,4)}')
    a(f'v_mfma_f32_16x16x16_bf16 {vr(AQ+4,4)}, {vr(X+12,2)}, {vr(AK+2,2)}, {vr(AQ+4,4)}')
    stamp(a, 'pv_issued')
    a(f'v_lshrrev_b32 v{T}, 1, v{L16}')
    mov(AK+4, 0); mov(AK+5, 0)
    mov(AK+6, 0); mov(AK+7, 0)
    a(f'v_rcp_f32 v{X}, v{X}')
    for i in range(4): a(f'v_pk_mul_f32 {vr(AQ+2*i,2)}, {vr(AQ+2*i,2)}, {vr(X,2)} op_sel_hi:[1,0]')
    for i in range(4): cvt(AQ+i, AQ+i, AQ+4+i)
    a(f'ds_write2_b32 v{OW}, v{AQ}, v{AQ+1} offset0:0 offset1:2')
    a(f'ds_write2_b32 v{OW}, v{AQ+2}, v{AQ+3} offset0:4 offset1:6')
    zero(a, 56, 8); zero(a, X, 8)
    barrier(a, 'B4')
    for ko in range(2):
        rd128(a, AO+4*ko, OR_, L.L_O+128*ko)
    if pub: a(f'ds_write_b64 v{T}, {vr(X+12,2)} offset:{L.L_Q + w*512}')
    zero(a, 40, 12)
    order = [4, 5, 6, 7, 0, 1, 2, 3]
    def st(t): a(f'buffer_store_dword v{oacc(t)}, v{RSW}, {WS}, s{sRSW} offen offset:{t*256}')
    for k, t in enumerate(order):
        smf(a, oacc(t), AO, wo(0, t))
        if k >= 3: st(order[k-3])
        if k >= 1: add(oacc(order[k-1]))
        smf(a, oacc(t), AO+4, wo(1, t))
        if k >= 1: add(oacc(order[k-1])+1)
        if k >= 2: cvt(oacc(order[k-2]), oacc(order[k-2]), oacc(order[k-2])+1)
    st(order[5])
    cvt(oacc(order[6]), oacc(order[6]), oacc(order[6])+1)
    add(oacc(order[7])); add(oacc(order[7])+1)
    st(order[6])
    cvt(oacc(order[7]), oacc(order[7]), oacc(order[7])+1)
    st(order[7])
    stamp(a, 'out_stored')
    a('@assume_lg_empty')
    prefetch_wk(a, range(4, 8))
    if w == 0:
        RA = [oacc(t) for t in range(8)]; RB = [POOL+4*t for t in range(8)]
        DA, DB = X+8, X+12
        def rsl(R, t): a(f'buffer_load_dwordx4 {vr(R[t],4)}, v{RSR}, {WS}, s{sRSR+t} offen sc1')
        def sweep(R, D, ok):
            for t in range(8):
                a(f's_waitcnt vmcnt({15 - t})')
                mf(a, D, R[t], SEL, '0' if t == 0 else D)
                if t == 0: a(f'v_mov_b32 v{T}, v{R[0]}')
                else: a(f'v_max_u32 v{T}, v{T}, v{R[t]}')
            a(f'v_cmp_eq_u32 vcc, -1, v{T}')
            a(f's_cbranch_vccz {ok}')
            for t in range(8): rsl(R, t)
        for i in range(CFG.get('rs_delay', 0)): a('s_nop 15')
        for t in range(8): rsl(RA, t)
        for i in range(CFG.get('rs_gap', 0)): a('s_nop 15')
        for t in range(8): rsl(RB, t)
        a.label('C_rs')
        a('@assume_vm_empty')
        sweep(RA, DA, 'C_rsA')
        a('@assume_vm_empty')
        sweep(RB, DB, 'C_rsB')
        a(f"""
        s_cmp_eq_u32 s{sSPIN}, 0
        s_cbranch_scc1 C_rsA
        s_sub_u32 s{sSPIN}, s{sSPIN}, 1
        s_branch C_rs
        """)
        D = DA
        a.label('C_rsB')
        a('@assume_vm_empty')
        a('s_nop 3')
        a(f'v_cvt_pk_bf16_f32 v{D}, v{DB}, v{DB+1}')
        a(f'v_cvt_pk_bf16_f32 v{D+1}, v{DB+2}, v{DB+3}')
        a('s_branch C_rsJ')
        a.label('C_rsA')
        a(f'v_cvt_pk_bf16_f32 v{D}, v{D}, v{D+1}')
        a(f'v_cvt_pk_bf16_f32 v{D+1}, v{D+2}, v{D+3}')
        a.label('C_rsJ')
        stamp(a, 'rs_ok')
        a(f'buffer_store_dwordx2 {vr(D,2)}, v{AGW}, {WS}, s{sAGWR} offen')
        stamp(a, 'ag_pub')
        a('s_waitcnt lgkmcnt(8)')
        a('s_barrier')
        a('s_waitcnt vmcnt(1)')
        if dbg_mems:
            a(f'buffer_store_dwordx2 {vr(D,2)}, v{AGW}, {WS}, s{sMEMS} offen')
            a(f's_add_u32 s{sMEMS}, s{sMEMS}, 8192')
        prefetch_wk(a, range(0, 4))
        zero(a, 40, 24)
    else:
        prefetch_wk(a, range(0, 4))
        zero(a, 40, 24)
    ring = [sRSW] + ([sRSR+t for t in range(8)] if w == 0 else [sRST+t for t in range(3 if w < 3 else 2)])
    for r in ring:
        a(f's_add_u32 s{r}, s{r}, {L.RS_SLOT}')
        a(f's_bitset0_b32 s{r}, 21')
    a(f's_xor_b32 s{sAGR}, s{sAGR}, 0x2000')
    if w == 0: a(f's_xor_b32 s{sAGWR}, s{sAGWR}, 0x2000')
    if w != 0:
        a(f's_add_u32 s{sKX}, s{sKX}, 262144'); a(f's_add_u32 s{sVX}, s{sVX}, 262144')
    if w in (1, 3): a(f's_add_u32 s{sVM}, s{sVM}, 65536')
    if w == 3: a(f's_add_u32 s{sKM}, s{sKM}, 65536')
    a(f's_add_u32 s{sSTEP}, s{sSTEP}, 1')
    if w != 0:
        a('s_waitcnt vmcnt(0)')
        a('s_waitcnt lgkmcnt(8)')
        a('s_barrier')
    stamp(a, 'end')
    dump_stamps(a, w)
    a(f's_cmp_lt_u32 s{sSTEP}, {CFG["nsteps"]}')
    a(f'@loop_end chain{w}')
    a(f's_cbranch_scc1 {Lb("step")}')

def emit_chain(a):
    dbg_mems = CFG['dbg_mems']
    T2 = X
    emit_setup(a)
    a(f'''
    s_mov_b32 s{sSTEP}, 0
    s_mov_b32 s{sAGR}, {L.AG}
    s_lshl_b32 s{sT0}, s{sH}, 8
    s_add_u32 s{sAGRST}, s{sT0}, {L.AG}
    s_add_u32 s{sAGWR}, s{sT0}, {L.AG + 0x2000}
    s_add_u32 s{sMEMS}, s{sT0}, {L.MEMS + 8192}
    s_mul_i32 s{sT1}, s{sWV}, {L.RSW_STRIDE}
    s_mul_i32 s{sT0}, s{sH}, {L.RSH}
    s_add_u32 s{sT1}, s{sT1}, s{sT0}
    s_add_u32 s{sRSW}, s{sT1}, {L.RS}
    s_lshl_b32 s{sT0}, s{sH}, 13
    s_add_u32 s{sKX}, s{sT0}, {L.KX}
    s_add_u32 s{sVX}, s{sT0}, {L.VX}
    s_add_u32 s{sPF}, s{sT0}, {L.KX + 2*262144}
    s_cmp_eq_u32 s{sWV}, 2
    s_cselect_b32 s{sT1}, 0x1000000, 0
    s_add_u32 s{sPF}, s{sPF}, s{sT1}
    s_lshl_b32 s{sT0}, s{sH}, 11
    s_add_u32 s{sKM}, s{sT0}, {L.KM - 65536}
    s_lshl_b32 s{sT0}, s{sH}, 11
    s_add_u32 s{sVM}, s{sT0}, {L.VM - 65536}
    ''')
    def rsr_setup(dst):
        a(f'''
        s_lshr_b32 s{sT0}, s{sH}, 3
        s_mul_i32 s{sT0}, s{sT0}, {L.RSW_STRIDE}
        s_and_b32 s{sT1}, s{sH}, 7
        s_lshl_b32 s{sT1}, s{sT1}, 8
        s_add_u32 s{sT0}, s{sT0}, s{sT1}
        ''')
        for t in range(8): a(f's_add_u32 s{dst+t}, s{sT0}, {L.RS + t*4*L.RSH}')
    a(f'''
    s_cmp_lg_u32 s{sWV}, 0
    s_cbranch_scc1 C_noinit
    ''')
    if CFG.get('flags'):
        a(f'''
        s_cmp_lg_u32 s{sH}, 0
        s_cbranch_scc1 C_nononce
        s_memrealtime {sr(sSAVE,2)}
        s_waitcnt lgkmcnt(0)
        s_or_b32 s{sT0}, s{sSAVE}, 1
        v_mov_b32 v{T}, {L.DBG_NONCE}
        v_mov_b32 v{T2}, s{sT0}
        global_store_dword v{T}, v{T2}, {sr(sDBG,2)} sc1
        ''')
        a.label('C_nononce')
    rsr_setup(sRSR)
    for i in range(4): a(f'v_mov_b32 v{X+12+i}, -1')
    for slot in range(4):
        for t in range(8):
            a(f's_add_u32 s{sT0}, s{sRSR+t}, {slot*L.RS_SLOT}')
            a(f'buffer_store_dwordx4 {vr(X+12,4)}, v{RSR}, {WS}, s{sT0} offen')
    a(f'buffer_store_dwordx2 {vr(X+12,2)}, v{AGW}, {WS}, s{sAGRST} offen')
    a(f'buffer_store_dwordx2 {vr(X+12,2)}, v{AGW}, {WS}, s{sAGWR} offen')
    a(f'''
    s_waitcnt vmcnt(0)
    v_mov_b32 v{T}, 32
    v_mov_b32 v{T2}, 1
    s_mov_b64 {sr(sSAVE,2)}, exec
    s_mov_b64 exec, 1
    global_atomic_add v{T}, v{T2}, {sr(sDBG,2)}
    s_mov_b64 exec, {sr(sSAVE,2)}
    ''')
    a.label('C_noinit')
    emit_weights(a)
    rsr_setup(sRSR)
    a(f'''
    s_mul_i32 s{sT0}, s{sWV}, {12*L.RSH}
    s_add_u32 s{sRST}, s{sRSR}, s{sT0}
    s_add_u32 s{sRST}, s{sRST}, {3*L.RS_SLOT - 12*L.RSH}
    s_add_u32 s{sRST+1}, s{sRST}, {4*L.RSH}
    s_add_u32 s{sRST+2}, s{sRST}, {8*L.RSH}
    ''')
    if 'tstamp' in HOOK: HOOK['tstamp'](a, 2, (24, 25))
    if CFG.get('flags'):
        get_nonce(a, 'C_nonce', X, X+1)
        a(f'''
        s_mov_b32 s{sNRDY}, 0
        s_mov_b32 s{sT0}, 0
        s_lshl_b32 s{sFCH}, s{sH}, 2
        s_add_u32 s{sFCH}, s{sFCH}, {L.F_CH - 256}
        ''')
        kv_wait(a, 'C_kv0', sT0, X, X+1)
    a(f'''
    s_cmp_lg_u32 s{sWV}, 1
    s_cbranch_scc1 C_nokx0
    ''')
    dma8(a, L.L_KX, sKX)
    a.label('C_nokx0')
    a(f'''
    s_cmp_lg_u32 s{sWV}, 2
    s_cbranch_scc1 C_novx0
    ''')
    dma8(a, L.L_VX, sVX)
    a.label('C_novx0')
    a(f'''
    s_add_u32 s{sKX}, s{sKX}, 262144
    s_add_u32 s{sVX}, s{sVX}, 262144
    ''')
    a(f'''
    s_cmp_lg_u32 s{sWV}, 0
    s_cbranch_scc1 C_nomem0
    ''')
    a.label('C_initwait')
    a(f'''
    v_mov_b32 v{T}, 32
    global_load_dword v{T2}, v{T}, {sr(sDBG,2)} sc1
    s_waitcnt vmcnt(0)
    v_cmp_gt_u32 vcc, 32, v{T2}
    s_cbranch_vccz C_initok
    s_cmp_eq_u32 s{sSPIN}, 0
    s_cbranch_scc1 C_initok
    s_sub_u32 s{sSPIN}, s{sSPIN}, 1
    s_branch C_initwait
    ''')
    a.label('C_initok')
    srd(a, 12, L.ARG['A_mem0'], 8192)
    lane(a, T2)
    a(f'''
    v_lshrrev_b32 v{T}, 4, v{T2}
    v_lshlrev_b32 v{T}, 1, v{T}
    v_and_b32 v{X+1}, 1, v{T2}
    v_add_u32 v{T}, v{T}, v{X+1}
    v_lshlrev_b32 v{T}, 10, v{T}
    v_bfe_u32 v{X+1}, v{T2}, 1, 2
    v_lshl_add_u32 v{T}, v{X+1}, 4, v{T}
    s_lshr_b32 s{sT0}, s{sH}, 3
    s_lshl_b32 s{sT0}, s{sT0}, 8
    s_and_b32 s{sT1}, s{sH}, 7
    s_lshl_b32 s{sT1}, s{sT1}, 1
    s_add_u32 s{sT0}, s{sT0}, s{sT1}
    ''')
    for i in range(4):
        a(f'buffer_load_ushort v{X+i}, v{T}, {sr(12,4)}, s{sT0} offen offset:{64*i}')
    a(f'''
    v_lshl_or_b32 v{X}, v{X+1}, 16, v{X}
    v_lshl_or_b32 v{X+1}, v{X+3}, 16, v{X+2}
    buffer_store_dwordx2 {vr(X,2)}, v{AGW}, {WS}, s{sAGRST} offen
    ''')
    if dbg_mems:
        a(f'''
        s_sub_u32 s{sT0}, s{sMEMS}, 8192
        buffer_store_dwordx2 {vr(X,2)}, v{AGW}, {WS}, s{sT0} offen
        ''')
    a.label('C_nomem0')
    a('s_waitcnt vmcnt(0) lgkmcnt(0)')
    a('s_barrier')
    a('@assume_drained')
    if 'tstamp' in HOOK: HOOK['tstamp'](a, 1, (24, 25))
    for w in range(1, 4):
        a(f's_cmp_eq_u32 s{sWV}, {w}')
        a(f's_cbranch_scc1 C_enter{w}')
    for w in range(4):
        a.label(f'C_enter{w}')
        a('@assume_drained')
        prefetch_wk(a, range(4, 8))
        prefetch_wk(a, range(0, 4))
        zero(a, 40, 24)
        emit_step(a, w)
        if w == 3:
            if not CFG.get('nopub'):
                a('s_waitcnt vmcnt(0) lgkmcnt(0)')
                a('@assume_drained')
                rd128(a, X+8, L16, L.L_Q); rd128(a, X+12, L16, L.L_Q+1024)
                for hf in range(2): rd128(a, POOL+4*hf, OR_, L.L_K + 128*hf)
                for k in range(2): a(f'buffer_store_dwordx4 {vr(X+8+4*k,4)}, v{L16}, {WS}, s{sVM} offen offset:{k*1024} sc1')
                for hf in range(2): a(f'buffer_store_dwordx4 {vr(POOL+4*hf,4)}, v{L16}, {WS}, s{sKM} offen offset:{hf*1024} sc1')
            a('s_waitcnt vmcnt(0)')
            a('s_barrier')
            if CFG.get('flags'):
                a(f'''
                s_mov_b64 exec, 1
                v_mov_b32 v{T}, s{sNONCE}
                v_mov_b32 v{X}, 0
                buffer_store_dword v{T}, v{X}, {WS}, s{sFCH} offen sc1
                buffer_store_dword v{T}, v{X}, {WS}, s{sFCH} offen offset:128 sc1
                s_mov_b64 exec, -1
                ''')
        if w < 3:
            a('s_waitcnt vmcnt(0)')
            a('s_barrier')
            a('s_branch C_exit')
    a.label('C_exit')
    if CFG['stamps']:
        a(f'''
        s_lshl_b32 s{sT0}, s{sH}, 2
        s_add_u32 s{sT0}, s{sT0}, s{sWV}
        s_lshl_b32 s{sT0}, s{sT0}, 7
        s_add_u32 s{sT0}, s{sT0}, {L.FLAGS + 0x10000}
        v_mov_b32 v{X}, 0
        v_mov_b32 v{T}, s{sSPIN}
        buffer_store_dword v{T}, v{X}, {WS}, s{sT0} offen offset:124
        ''')

HEADER = '''; @launch grid=(256,1,1) block=(256,1,1) lds=163840
.amdgcn_target "amdgcn-amd-amdhsa--gfx950"
.text
.globl {name}
.p2align 8
.type {name},@function
{name}:
'''
FOOTER = '''
.section .rodata,"a"
.p2align 6
.amdhsa_kernel {name}
  .amdhsa_next_free_vgpr 512
  .amdhsa_next_free_sgpr 102
  .amdhsa_accum_offset 256
  .amdhsa_group_segment_fixed_size 0
  .amdhsa_kernarg_size 152
  .amdhsa_user_sgpr_count 2
  .amdhsa_user_sgpr_kernarg_segment_ptr 1
  .amdhsa_system_sgpr_workgroup_id_x 1
.end_amdhsa_kernel
'''
NAME = 'concat_heads__memory_aug_recurrent_mem_tr__ssm_conv_s5__prompt_kernel'

def emit_elect(a):
    a(f'''
    s_cmp_ge_u32 s2, 256
    s_cbranch_scc1 L_end
    s_load_dwordx2 {sr(sDBG,2)}, s[0:1], {L.ARG['dbg']}
    s_getreg_b32 s3, hwreg(HW_REG_XCC_ID)
    s_and_b32 s3, s3, 7
    s_waitcnt lgkmcnt(0)
    ''')
    srd(a, S_WS, L.ARG['ws'], L.WS_BYTES)
    a(f'''
    v_lshrrev_b32 v1, 6, v0
    s_nop 0
    v_readfirstlane_b32 s{sWV}, v1
    v_cmp_eq_u32 vcc, 0, v0
    s_and_saveexec_b64 {sr(sSAVE,2)}, vcc
    s_cbranch_execz L_noticket
    s_lshl_b32 s{sT0}, s3, 2
    v_mov_b32 v1, s{sT0}
    v_mov_b32 v2, 1
    global_atomic_add v3, v1, v2, {sr(sDBG,2)} sc0
    s_waitcnt vmcnt(0)
    v_mov_b32 v1, 0
    ds_write_b32 v1, v3
    s_waitcnt lgkmcnt(0)
    ''')
    a.label('L_noticket')
    a(f'''
    s_mov_b64 exec, {sr(sSAVE,2)}
    s_barrier
    v_mov_b32 v1, 0
    ds_read_b32 v3, v1
    s_waitcnt lgkmcnt(0)
    v_readfirstlane_b32 s{sH}, v3
    s_barrier
    ''')

if __name__ == '__main__':
    import sys
    for arg in sys.argv[1:]:
        if arg == 'stamps': CFG['stamps'] = True
        elif arg.startswith('only='): CFG['only'] = arg[5:].split(',')
        elif '=' in arg:
            k, v = arg.split('='); CFG[k] = int(v)
    a = Asm()
    emit_elect(a)
    a(f'''
    s_cmp_lg_u32 s3, 0
    s_cbranch_scc1 L_end
    s_cmp_ge_u32 s{sH}, 32
    s_cbranch_scc1 L_end
    ''')
    emit_chain(a)
    a.label('L_end')
    a('s_endpgm')
    body = a.finalize()
    open('chain_test.s', 'w').write(HEADER.format(name=NAME) + body + FOOTER.format(name=NAME))
    print('instructions:', a.count(), ','.join(STAMPS), DUMPS)
```

```python
from asmlib import Asm
import layout as L
from gen_chain import vr, ar, sr, srd, WS, S_WS, sWV, sDBG, sT0, sT1, sT2, sT3, sPLO, sPHI

sTK = 16
sXW = 3
S_X = 12
S_M = 20
S_M2 = 24
S_OUT = 28
sG, sHD, sWO = 32, 33, 34
sDST = 35
sA, sB, sC_, sD = 42, 43, 44, 45
vL16, vXA, vWA, vT, vT2, vT3 = 1, 2, 3, 4, 5, 6
EP = 16

WST = dict(on=False, n=0)
def wstamp(a, i):
    if WST['on']: a.raw(f'    s_memtime s[{70+2*i}:{71+2*i}]')
def wdump(a, tag):
    if not WST['on']: return
    k = WST['n']; WST['n'] += 1
    a(f'''
    s_waitcnt lgkmcnt(0)
    s_lshl_b32 s{sT0}, s2, 2
    s_add_u32 s{sT0}, s{sT0}, s{sWV}
    s_lshl_b32 s{sT0}, s{sT0}, 7
    s_add_u32 s{sT0}, s{sT0}, {L.FLAGS + 0x40000 + k*32}
    v_mov_b32 v{vT2}, 0
    ''')
    for i in range(5):
        a(f'v_mov_b32 v{vT}, s{70+2*i}')
        a(f'buffer_store_dword v{vT}, v{vT2}, {WS}, s{sT0} offen offset:{4*i}')

def setup_lane(a):
    a(f'''
    v_and_b32 v{vT}, 63, v0
    v_lshlrev_b32 v{vL16}, 4, v{vT}
    s_mov_b32 s{sPLO}, 0x05040100
    s_mov_b32 s{sPHI}, 0x07060302
    ''')

XROW = 1040
def load_xtile(a, tok0_s, koff_bytes=0, row_bytes=1024):
    a(f'''
    s_lshl_b32 s{sT0}, s{sWV}, 5
    s_add_u32 s{sT1}, s{sT0}, s{tok0_s}
    s_mul_i32 s{sT1}, s{sT1}, {row_bytes}
    s_add_u32 s{sT1}, s{sT1}, {koff_bytes}
    s_mul_i32 s{sT0}, s{sT0}, {XROW}
    ''')
    for k in range(32):
        a(f's_add_u32 m0, s{sT0}, {k*XROW}')
        a(f's_add_u32 s{sT2}, s{sT1}, {k*row_bytes}')
        a(f'buffer_load_dwordx4 v{vL16}, {sr(S_X,4)}, s{sT2} offen lds')

def xtile_wait(a):
    a('s_waitcnt vmcnt(0)')
    a('s_barrier')

ACC = 128
NRAW = 5
WRAW = 16
WF = 96
vXR0, vXR1 = 8, 9
def accr(r, t): return ACC + (r*4+t)*4

def gemm128x64(a, nks, issue_w, conv_w, transposed, zero_acc=True, direct=False, pre_wait=None):
    raw = lambda ks: WRAW + (ks % NRAW)*16
    wf = (lambda ks: raw(ks)) if direct else (lambda ks: WF + (ks & 1)*16)
    xf = lambda ks: (ks & 1)*32
    a(f'''
    v_lshrrev_b32 v{vT}, 4, v{vL16}
    v_and_b32 v{vT2}, 15, v{vT}
    v_mul_u32_u24 v{vXR0}, {XROW}, v{vT2}
    v_lshrrev_b32 v{vT}, 4, v{vT}
    v_lshl_add_u32 v{vXR0}, v{vT}, 4, v{vXR0}
    v_add_u32 v{vXR1}, {64*XROW}, v{vXR0}
    ''')
    def xreads(ks): return [f'ds_read_b128 {ar(xf(ks)+4*r,4)}, v{vXR0 if r < 4 else vXR1} offset:{(r & 3)*16*XROW + ks*64}' for r in range(8)]
    AH = NRAW - 1
    for k0 in range(min(AH, nks)):
        for l in issue_w(k0, raw(k0)): a(l)
    if pre_wait: pre_wait(a)
    for l in xreads(0): a(l)
    for l in conv_w(raw(0), wf(0)): a(l)
    for ks in range(nks):
        ld = issue_w(ks+AH, raw(ks+AH)) if ks+AH < nks else []
        xr = xreads(ks+1) if ks+1 < nks else []
        cv = conv_w(raw(ks+1), wf(ks+1)) if ks+1 < nks else []
        chunks = []
        for l in ld:
            if l.startswith('s_') or not chunks: chunks.append([l])
            else: chunks[-1].append(l)
        k = 0
        for r in range(8):
            for t in range(4):
                acc = vr(accr(r, t), 4)
                A, B = ar(xf(ks)+4*r, 4), vr(wf(ks)+4*t, 4)
                if transposed: A, B = B, A
                c = '0' if (ks == 0 and zero_acc) else acc
                a(f'v_mfma_f32_16x16x32_bf16 {acc}, {A}, {B}, {c}')
                if k % 4 == 1 and xr: a(xr.pop(0))
                if k % 4 == 3 and chunks:
                    for l in chunks.pop(0): a(l)
                if k >= 8 and k % 4 in (0, 2) or k >= 24:
                    if cv: a(cv.pop(0))
                    if cv and k % 4 == 0: a(cv.pop(0))
                k += 1
        for c_ in chunks:
            for l in c_: a(l)
        for l in xr + cv: a(l)

def w_ncontig(srd_reg):
    def issue(ks, raw):
        out = []
        for j in range(8):
            out.append(f's_add_u32 s{sT0}, s{sWO}, {(32*ks+j)*8192}')
            out.append(f'buffer_load_dwordx2 {vr(raw+2*j,2)}, v{vWA}, {sr(srd_reg,4)}, s{sT0} offen')
        return out
    def conv(raw, wf):
        out = []
        for t in range(4):
            for q in range(4):
                r0, r1 = raw + 2*(2*q) + (t >> 1), raw + 2*(2*q+1) + (t >> 1)
                out.append(f'v_perm_b32 v{wf+4*t+q}, v{r1}, v{r0}, s{sPHI if t & 1 else sPLO}')
        return out
    return issue, conv

def epi_kq(a, base_s):
    for r in range(8):
        for u in range(2):
            b = EP + ((r*2+u) % 4)*4
            for dq in range(4):
                i = 2*u + (dq >> 1); t = 2*(dq & 1)
                a(f'v_cvt_pk_bf16_f32 v{b+dq}, v{accr(r,t)+i}, v{accr(r,t+1)+i}')
            a(f's_add_u32 s{sT0}, s{base_s}, {(r >> 1)*262144 + (r & 1)*4096 + u*1024}')
            a(f'buffer_store_dwordx4 {vr(b,4)}, v{vL16}, {WS}, s{sT0} offen sc1')

def epi_v(a, base_s):
    n = 0
    for sg in range(4):
        for t in range(4):
            b = EP + (n % 4)*4; n += 1
            for dq in range(4):
                r = 2*sg + (dq >> 1); i = 2*(dq & 1)
                a(f'v_cvt_pk_bf16_f32 v{b+dq}, v{accr(r,t)+i}, v{accr(r,t)+i+1}')
            a(f's_add_u32 s{sT0}, s{base_s}, {sg*262144 + t*1024}')
            a(f'buffer_store_dwordx4 {vr(b,4)}, v{vL16}, {WS}, s{sT0} offen sc1')

def emit_p_task(a, tag, isq):
    wstamp(a, 0)
    a(f's_lshl_b32 s{sA}, s{sG}, 7')
    load_xtile(a, sA)
    wstamp(a, 1)
    a(f'''
    v_and_b32 v{vT}, 63, v0
    v_lshrrev_b32 v{vT2}, 4, v{vT}
    v_lshlrev_b32 v{vWA}, 16, v{vT2}
    v_and_b32 v{vT2}, 15, v{vT}
    v_lshl_add_u32 v{vWA}, v{vT2}, 3, v{vWA}
    s_and_b32 s{sB}, s{sWV}, 1
    s_lshr_b32 s{sC_}, s{sWV}, 1
    ''')
    if isq:
        a(f'''
        s_lshl_b32 s{sD}, s{sHD}, 1
        s_add_u32 s{sD}, s{sD}, s{sC_}
        ''')
    else:
        a(f's_mov_b32 s{sD}, s{sHD}')
    a(f'''
    s_lshl_b32 s{sWO}, s{sD}, 8
    s_lshl_b32 s{sT0}, s{sB}, 7
    s_add_u32 s{sWO}, s{sWO}, s{sT0}
    s_lshl_b32 s{sDST}, s{sG}, 20
    s_lshl_b32 s{sT0}, s{sD}, 13
    s_add_u32 s{sDST}, s{sDST}, s{sT0}
    ''')
    if isq:
        srd(a, S_M, L.ARG['A_Wq'], 4194304)
        a(f'''
        s_lshl_b32 s{sT0}, s{sB}, 11
        s_add_u32 s{sDST}, s{sDST}, s{sT0}
        s_add_u32 s{sDST}, s{sDST}, {L.QX}
        ''')
        iss, cv = w_ncontig(S_M)
        gemm128x64(a, 16, iss, cv, True, pre_wait=xtile_wait)
        epi_kq(a, sDST)
    else:
        a(f'''
        s_cmp_eq_u32 s{sC_}, 1
        s_cbranch_scc1 {tag}_v
        ''')
        srd(a, S_M, L.ARG['A_Wk'], 4194304)
        a(f'''
        s_lshl_b32 s{sT0}, s{sB}, 11
        s_add_u32 s{sDST}, s{sDST}, s{sT0}
        s_add_u32 s{sDST}, s{sDST}, {L.KX}
        ''')
        iss, cv = w_ncontig(S_M)
        gemm128x64(a, 16, iss, cv, True, pre_wait=xtile_wait)
        wstamp(a, 2)
        epi_kq(a, sDST)
        a(f's_branch {tag}_done')
        a.label(f'{tag}_v')
        a('@assume_drained')
        srd(a, S_M, L.ARG['A_Wv'], 4194304)
        a(f'''
        s_lshl_b32 s{sT0}, s{sB}, 12
        s_add_u32 s{sDST}, s{sDST}, s{sT0}
        s_add_u32 s{sDST}, s{sDST}, {L.VX}
        ''')
        gemm128x64(a, 16, iss, cv, False, pre_wait=xtile_wait)
        epi_v(a, sDST)
        a.label(f'{tag}_done')
    wstamp(a, 3)
    a('s_waitcnt vmcnt(0) lgkmcnt(0)')
    a('s_barrier')
    wstamp(a, 4)
    wdump(a, tag)
    a('@assume_drained')

if __name__ == '__main__':
    import sys
    from gen_chain import HEADER, FOOTER, NAME, emit_elect, sH
    WST['on'] = 'stamps' in sys.argv
    a = Asm()
    emit_elect(a)
    setup_lane(a)
    srd(a, S_X, L.ARG['A_x'], 2097152)
    for rnd in range(2):
        a(f'''
        s_add_u32 s{sT0}, s2, {256*rnd}
        s_lshr_b32 s{sG}, s{sT0}, 5
        s_and_b32 s{sHD}, s{sT0}, 31
        ''')
        emit_p_task(a, f'P{rnd}', False)
    a(f'''
    s_lshr_b32 s{sG}, s2, 4
    s_and_b32 s{sHD}, s2, 15
    ''')
    emit_p_task(a, 'PQ', True)
    a.label('L_end')
    a('s_endpgm')
    body = a.finalize()
    open('p_test.s', 'w').write(HEADER.format(name=NAME) + body + FOOTER.format(name=NAME))
    print('instructions', a.count())

sSEG = 46
sMK = 54
sCC = 62
QF, KF, KMF, VF, VMF = 64, 96, 128, 144, 176
SX0, SX1, SM_, PX, PB0, PB1, ONE, TM = 184, 188, 192, 196, 200, 202, 204, 208

def attn_setup(a):
    a(f'''
    v_and_b32 v{vT}, 63, v0
    v_and_b32 v{vT2}, 15, v{vT}
    v_lshrrev_b32 v{vT}, 4, v{vT}
    v_lshlrev_b32 v{vT}, 2, v{vT}
    s_mov_b32 s{sCC}, 0x3e0293ee
    ''')
    for i in range(4):
        a(f'v_add_u32 v{vT3}, {i}, v{vT}')
        a(f'v_cmp_le_u32 {sr(sMK+2*i,2)}, v{vT3}, v{vT2}')
    for i in range(4): a(f'v_mov_b32 v{ONE+i}, 0x3f803f80')

def attn_loads_pre(a):
    a(f'''
    s_lshl_b32 s{sA}, s{sSEG}, 5
    s_add_u32 s{sA}, s{sA}, s{sHD}
    s_lshl_b32 s{sB}, s{sA}, 13
    ''')
    for nm, reg, base in (('q', QF, L.QX), ('k', KF, L.KX), ('v', VF, L.VX)):
        a(f's_add_u32 s{sT0}, s{sB}, {base}')
        a(f's_add_u32 s{sT1}, s{sB}, {base+4096}')
        for f in range(8):
            a(f'buffer_load_dwordx4 {vr(reg+4*f,4)}, v{vL16}, {WS}, s{sT0 if f < 4 else sT1} offen offset:{(f&3)*1024}')

def attn_loads_post(a):
    a(f'''
    s_lshl_b32 s{sT0}, s{sA}, 11
    s_add_u32 s{sT1}, s{sT0}, {L.VM}
    s_add_u32 s{sT0}, s{sT0}, {L.KM}
    v_lshrrev_b32 v{vT}, 1, v{vL16}
    v_and_b32 v{vT2}, 0xffffffdf, v{vL16}
    v_or_b32 v{vT3}, 32, v{vL16}
    ''')
    for ks in range(4):
        a(f'buffer_load_dwordx4 {vr(KMF+4*ks,4)}, v{vT3 if ks & 1 else vT2}, {WS}, s{sT0} offen offset:{(ks >> 1)*1024}')
    for w in range(4):
        a(f'buffer_load_dwordx2 {vr(VMF+2*w,2)}, v{vT}, {WS}, s{sT1} offen offset:{w*512}')

def attn_compute(a):
    M = 'v_mfma_f32_16x16x32_bf16'; M16 = 'v_mfma_f32_16x16x16_bf16'
    for u in range(2):
        for ks in range(4):
            c = '0' if ks == 0 else vr(SX0, 4)
            a(f'{M} {vr(SX0,4)}, {vr(KF+4*ks,4)}, {vr(QF+16*u+4*ks,4)}, {c}')
            if u == 1:
                c = '0' if ks == 0 else vr(SX1, 4)
                a(f'{M} {vr(SX1,4)}, {vr(KF+16+4*ks,4)}, {vr(QF+16*u+4*ks,4)}, {c}')
        for ks in range(4):
            c = '0' if ks == 0 else vr(SM_, 4)
            a(f'{M} {vr(SM_,4)}, {vr(KMF+4*ks,4)}, {vr(QF+16*u+4*ks,4)}, {c}')
        dg = SX0 if u == 0 else SX1
        a(f'v_mov_b32 v{TM}, 0xf149f2ca')
        for i in range(4):
            a(f'v_cndmask_b32 v{dg+i}, v{TM}, v{dg+i}, {sr(sMK+2*i,2)}')
        S = [SX0+i for i in range(4)] + ([SX1+i for i in range(4)] if u == 1 else []) + [SM_, SM_+1]
        m, m2 = TM, TM+1
        a(f'v_max3_f32 v{m}, v{S[0]}, v{S[1]}, v{S[2]}')
        rest = S[3:]
        while len(rest) >= 2:
            a(f'v_max3_f32 v{m}, v{m}, v{rest[0]}, v{rest[1]}'); rest = rest[2:]
        if rest: a(f'v_max_f32 v{m}, v{m}, v{rest[0]}')
        a(f'''
        v_mov_b32 v{m2}, v{m}
        v_permlane32_swap_b32 v{m}, v{m2}
        v_max_f32 v{m}, v{m}, v{m2}
        v_mov_b32 v{m2}, v{m}
        v_permlane16_swap_b32 v{m}, v{m2}
        v_max_f32 v{m}, v{m}, v{m2}
        v_mul_f32 v{m}, s{sCC}, v{m}
        ''')
        for r in S: a(f'v_fma_f32 v{r}, v{r}, s{sCC}, -v{m}')
        for r in S: a(f'v_exp_f32 v{r}, v{r}')
        a(f'v_cvt_pk_bf16_f32 v{PX}, v{SX0}, v{SX0+1}')
        a(f'v_cvt_pk_bf16_f32 v{PX+1}, v{SX0+2}, v{SX0+3}')
        if u == 1:
            a(f'v_cvt_pk_bf16_f32 v{PX+2}, v{SX1}, v{SX1+1}')
            a(f'v_cvt_pk_bf16_f32 v{PX+3}, v{SX1+2}, v{SX1+3}')
        else:
            a(f'v_mov_b32 v{PX+2}, 0'); a(f'v_mov_b32 v{PX+3}, 0')
        a(f'v_cvt_pk_bf16_f32 v{PB0}, v{SM_}, v{SM_+1}')
        a(f'v_mov_b32 v{PB0+1}, 0')
        a(f'v_mov_b32 v{PB1}, 0')
        a(f'v_mov_b32 v{PB1+1}, v{PB0}')
        for f in range(8):
            a(f'{M} {ar(4*f,4)}, {vr(VF+4*f,4)}, {vr(PX,4)}, 0')
        a(f'{M} {ar(32,4)}, {vr(ONE,4)}, {vr(PX,4)}, 0')
        for f in range(8):
            hf, t = f >> 2, f & 3
            w = 2*hf + (t >> 1)
            a(f'{M16} {ar(4*f,4)}, {vr(VMF+2*w,2)}, {vr(PB1 if t & 1 else PB0,2)}, {ar(4*f,4)}')
        a(f'{M16} {ar(32,4)}, {vr(ONE,2)}, {vr(PB0,2)}, {ar(32,4)}')
        a(f'v_accvgpr_read_b32 v{TM}, a32')
        a(f'v_rcp_f32 v{TM}, v{TM}')
        a(f'''
        s_lshl_b32 s{sT0}, s{sA}, 13
        s_add_u32 s{sT0}, s{sT0}, {L.OX + u*4096}
        ''')
        n = 0
        for hf in range(2):
            for up in range(2):
                b = TM + 4 + (n % 2)*8; n += 1
                for dq in range(4):
                    i = 2*up + (dq >> 1); t = 2*(dq & 1)
                    a(f'v_accvgpr_read_b32 v{b+4}, a{(4*hf+t)*4+i}')
                    a(f'v_accvgpr_read_b32 v{b+5}, a{(4*hf+t+1)*4+i}')
                    a(f'v_mul_f32 v{b+4}, v{b+4}, v{TM}')
                    a(f'v_mul_f32 v{b+5}, v{b+5}, v{TM}')
                    a(f'v_cvt_pk_bf16_f32 v{b+dq}, v{b+4}, v{b+5}')
                a(f'buffer_store_dwordx4 {vr(b,4)}, v{vL16}, {WS}, s{sT0} offen offset:{(2*hf+up)*1024} sc1')

def gen_attn_test():
    from gen_chain import HEADER, FOOTER, NAME, emit_elect
    a = Asm()
    emit_elect(a)
    setup_lane(a)
    attn_setup(a)
    for k in range(2):
        a(f'''
        s_lshl_b32 s{sT0}, s2, 2
        s_add_u32 s{sT0}, s{sT0}, s{sWV}
        s_add_u32 s{sT0}, s{sT0}, {1024*k}
        s_lshr_b32 s{sSEG}, s{sT0}, 5
        s_and_b32 s{sHD}, s{sT0}, 31
        ''')
        attn_loads_pre(a); attn_loads_post(a); attn_compute(a)
    a('s_waitcnt vmcnt(0)')
    a.label('L_end')
    a('s_endpgm')
    body = a.finalize()
    open('a_test.s', 'w').write(HEADER.format(name=NAME) + body + FOOTER.format(name=NAME))
    print('attn instructions', a.count())
gen_attn_test() if __name__ == '__main__' else None

sCB, sUN = 47, 48
OF = 64
OACC = 192
OTM = 200

def oproj_load_weights(a):
    srd(a, S_M, L.ARG['A_Wo'], 4194304)
    a(f'''
    v_and_b32 v{vT}, 63, v0
    v_lshrrev_b32 v{vT2}, 4, v{vT}
    v_lshlrev_b32 v{vWA}, 14, v{vT2}
    v_and_b32 v{vT2}, 15, v{vT}
    v_lshl_add_u32 v{vWA}, v{vT2}, 2, v{vWA}
    s_lshl_b32 s{sWO}, s{sWV}, 20
    s_lshl_b32 s{sT0}, s{sCB}, 6
    s_add_u32 s{sWO}, s{sWO}, s{sT0}
    ''')
    groups = [(hh, ks) for hh in range(8) for ks in range(4)]
    RAW = 64; NB = 7
    def issue(gi):
        hh, ks = groups[gi]
        for j in range(8):
            e = 64*(ks >> 1) + 8*(ks & 1) + j
            a(f's_add_u32 s{sT0}, s{sWO}, {hh*131072 + e*1024}')
            a(f'buffer_load_dword v{RAW+(gi % NB)*8+j}, v{vWA}, {sr(S_M,4)}, s{sT0} offen')
    def proc(gi):
        hh, ks = groups[gi]
        b = RAW+(gi % NB)*8
        for t in range(2):
            for q in range(4):
                a(f'v_perm_b32 v{vT+(q&1)}, v{b+2*q+1}, v{b+2*q}, s{sPHI if t else sPLO}')
                a(f'v_accvgpr_write_b32 a{((hh*4+ks)*2+t)*4+q}, v{vT+(q&1)}')
    for gi in range(NB-1): issue(gi)
    for gi in range(32):
        proc(gi)
        if gi+NB-1 < 32: issue(gi+NB-1)

def oproj_unit_loads(a):
    a(f'''
    s_lshr_b32 s{sT0}, s{sUN}, 1
    s_lshl_b32 s{sT0}, s{sT0}, 18
    s_and_b32 s{sT1}, s{sUN}, 1
    s_lshl_b32 s{sT1}, s{sT1}, 12
    s_add_u32 s{sT0}, s{sT0}, s{sT1}
    s_lshl_b32 s{sT1}, s{sWV}, 16
    s_add_u32 s{sT0}, s{sT0}, s{sT1}
    s_add_u32 s{sA}, s{sT0}, {L.OX}
    ''')
    for hh in range(8):
        a(f's_add_u32 s{sT0}, s{sA}, {hh*8192}')
        for ks in range(4):
            a(f'buffer_load_dwordx4 {vr(OF+(hh*4+ks)*4,4)}, v{vL16}, {WS}, s{sT0} offen offset:{ks*1024}')

def oproj_unit_compute(a, par, tag):
    M = 'v_mfma_f32_16x16x32_bf16'
    for f in range(32):
        for t in range(2):
            c = '0' if f == 0 else vr(OACC+4*t, 4)
            a(f'{M} {vr(OACC+4*t,4)}, {ar((f*2+t)*4,4)}, {vr(OF+4*f,4)}, {c}')
    lds = par*8192
    a(f'''
    s_lshl_b32 s{sT0}, s{sWV}, 11
    v_lshlrev_b32 v{vT}, 1, v{vL16}
    v_add_u32 v{vT}, s{sT0}, v{vT}
    ds_write_b128 v{vT}, {vr(OACC,4)} offset:{lds}
    ds_write_b128 v{vT}, {vr(OACC+4,4)} offset:{lds+16}
    s_waitcnt lgkmcnt(0)
    s_barrier
    s_cmp_lg_u32 s{sWV}, 0
    s_cbranch_scc1 {tag}_skip
    v_lshlrev_b32 v{vT}, 1, v{vL16}
    ''')
    for w in range(1, 4):
        a(f'ds_read_b128 {vr(OTM+8*(w-1),4)}, v{vT} offset:{lds+w*2048}')
        a(f'ds_read_b128 {vr(OTM+8*(w-1)+4,4)}, v{vT} offset:{lds+w*2048+16}')
    for w in range(1, 4):
        for i in range(8): a(f'v_add_f32 v{OACC+i}, v{OACC+i}, v{OTM+8*(w-1)+i}')
    for i in range(4):
        a(f'v_cvt_pk_bf16_f32 v{OTM+i}, v{OACC+i}, v{OACC+4+i}')
    for i in range(4):
        a(f'v_lshlrev_b32 v{OTM+8+2*i}, 16, v{OTM+i}')
        a(f'v_and_b32 v{OTM+9+2*i}, 0xffff0000, v{OTM+i}')
    a(f'''
    v_lshrrev_b32 v{vT}, 4, v{vL16}
    v_and_b32 v{vT2}, 15, v{vT}
    v_lshlrev_b32 v{vT2}, 12, v{vT2}
    v_lshrrev_b32 v{vT}, 4, v{vT}
    v_lshl_add_u32 v{vT2}, v{vT}, 5, v{vT2}
    s_lshl_b32 s{sT0}, s{sUN}, 16
    s_lshl_b32 s{sT1}, s{sCB}, 7
    s_add_u32 s{sT0}, s{sT0}, s{sT1}
    buffer_store_dwordx4 {vr(OTM+8,4)}, v{vT2}, {sr(S_OUT,4)}, s{sT0} offen
    buffer_store_dwordx4 {vr(OTM+12,4)}, v{vT2}, {sr(S_OUT,4)}, s{sT0} offen offset:16
    ''')
    a.label(f'{tag}_skip')
    a('@assume_lg_empty')

def gen_o_test():
    from gen_chain import HEADER, FOOTER, NAME, emit_elect
    a = Asm()
    emit_elect(a)
    setup_lane(a)
    srd(a, S_OUT, L.ARG['out'], 2048*1024*4)
    a(f'''
    s_and_b32 s{sCB}, s2, 15
    s_lshr_b32 s{sUN}, s2, 4
    ''')
    oproj_load_weights(a)
    for k in range(8):
        oproj_unit_loads(a)
        oproj_unit_compute(a, k & 1, f'O{k}')
        a(f's_add_u32 s{sUN}, s{sUN}, 16')
    a('s_waitcnt vmcnt(0)')
    a.label('L_end')
    a('s_endpgm')
    body = a.finalize()
    open('o_test.s', 'w').write(HEADER.format(name=NAME) + body + FOOTER.format(name=NAME))
    print('oproj instructions', a.count())
gen_o_test() if __name__ == '__main__' else None

S_BX = 12
def s1_task(a, tag):
    srd(a, S_X, L.ARG['B_x'], 2097152)
    srd(a, S_M, L.ARG['B_B_re'], 524288)
    srd(a, S_M2, L.ARG['B_B_im'], 524288)
    a(f's_lshl_b32 s{sA}, s{sG}, 7')
    load_xtile(a, sA)
    a(f'''
    v_lshrrev_b32 v{vT}, 4, v{vL16}
    v_and_b32 v{vT2}, 15, v{vT}
    v_lshlrev_b32 v{vWA}, 10, v{vT2}
    v_lshrrev_b32 v{vT}, 4, v{vT}
    v_lshl_add_u32 v{vWA}, v{vT}, 4, v{vWA}
    s_lshl_b32 s{sWO}, s{sCB}, 7
    s_lshl_b32 s{sT0}, s{sWV}, 5
    s_add_u32 s{sB}, s{sWO}, s{sT0}
    s_lshl_b32 s{sWO}, s{sB}, 10
    ''')
    def issue(ks, raw):
        out = []
        for t in range(4):
            pb, c = t >> 1, t & 1
            out.append(f's_add_u32 s{sT0}, s{sWO}, {pb*16*1024 + ks*64}')
            out.append(f'buffer_load_dwordx4 {vr(raw+4*t,4)}, v{vWA}, {sr(S_M2 if c else S_M,4)}, s{sT0} offen')
        return out
    gemm128x64(a, 16, issue, lambda raw, wf: [], True, direct=True, pre_wait=xtile_wait)
    a(f'''
    v_lshrrev_b32 v{vT}, 4, v{vL16}
    v_and_b32 v{vT2}, 15, v{vT}
    v_lshlrev_b32 v{vT2}, 12, v{vT2}
    v_lshrrev_b32 v{vT}, 4, v{vT}
    v_lshl_add_u32 v{vT2}, v{vT}, 5, v{vT2}
    s_lshl_b32 s{sDST}, s{sG}, 19
    s_lshl_b32 s{sT0}, s{sB}, 3
    s_add_u32 s{sDST}, s{sDST}, s{sT0}
    s_add_u32 s{sDST}, s{sDST}, {L.UB}
    ''')
    n = 0
    for r in range(8):
        for pb in range(2):
            b = EP + (n % 4)*8; n += 1
            for i in range(4):
                a(f'v_mov_b32 v{b+2*i}, v{accr(r,2*pb)+i}')
                a(f'v_mov_b32 v{b+2*i+1}, v{accr(r,2*pb+1)+i}')
            a(f's_add_u32 s{sT0}, s{sDST}, {r*16*4096 + pb*128}')
            a(f'buffer_store_dwordx4 {vr(b,4)}, v{vT2}, {WS}, s{sT0} offen sc1')
            a(f'buffer_store_dwordx4 {vr(b+4,4)}, v{vT2}, {WS}, s{sT0} offen offset:16 sc1')
    a('s_waitcnt vmcnt(0) lgkmcnt(0)')
    a('s_barrier')
    a('@assume_drained')

LR, LI, CR, CI, PR, PI, GR, GI, TA_, TB_, TC_, TD_ = range(8, 20)
vP8 = 20
UREG = 64
def s5_params(a):
    srd(a, S_M, L.ARG['B_Lambda_re'], 1024)
    srd(a, S_M2, L.ARG['B_Lambda_im'], 1024)
    srd(a, S_X, L.ARG['B_log_dt'], 1024)
    a(f'''
    s_lshl_b32 s{sT0}, s{sCB}, 8
    v_add_u32 v{vT}, s{sT0}, v0
    v_lshlrev_b32 v{vP8}, 3, v{vT}
    v_lshlrev_b32 v{vT}, 1, v{vT}
    buffer_load_ushort v{TA_}, v{vT}, {sr(S_M,4)}, 0 offen
    buffer_load_ushort v{TB_}, v{vT}, {sr(S_M2,4)}, 0 offen
    buffer_load_ushort v{TC_}, v{vT}, {sr(S_X,4)}, 0 offen
    v_lshlrev_b32 v{TA_}, 16, v{TA_}
    v_lshlrev_b32 v{TB_}, 16, v{TB_}
    v_lshlrev_b32 v{TC_}, 16, v{TC_}
    v_mul_f32 v{TC_}, 0x3fb8aa3b, v{TC_}
    v_exp_f32 v{TC_}, v{TC_}
    s_nop 0
    v_cvt_pk_bf16_f32 v{TC_}, v{TC_}, v{TC_}
    v_lshlrev_b32 v{TC_}, 16, v{TC_}
    v_mul_f32 v{TD_}, v{TC_}, v{TA_}
    v_mul_f32 v{GR}, v{TC_}, v{TB_}
    v_mul_f32 v{TD_}, 0x3fb8aa3b, v{TD_}
    v_exp_f32 v{TD_}, v{TD_}
    v_mul_f32 v{GR}, 0.15915494, v{GR}
    v_rndne_f32 v{GI}, v{GR}
    v_sub_f32 v{GR}, v{GR}, v{GI}
    v_cos_f32 v{LR}, v{GR}
    v_sin_f32 v{LI}, v{GR}
    s_nop 0
    v_mul_f32 v{LR}, v{LR}, v{TD_}
    v_mul_f32 v{LI}, v{LI}, v{TD_}
    v_add_f32 v{GR}, -1.0, v{LR}
    v_mul_f32 v{GI}, v{TA_}, v{TA_}
    v_fma_f32 v{GI}, v{TB_}, v{TB_}, v{GI}
    v_rcp_f32 v{GI}, v{GI}
    v_mul_f32 v{CR}, v{GR}, v{TA_}
    v_fma_f32 v{CR}, v{LI}, v{TB_}, v{CR}
    v_mul_f32 v{CI}, v{LI}, v{TA_}
    v_fma_f32 v{CI}, -v{GR}, v{TB_}, v{CI}
    v_mul_f32 v{CR}, v{CR}, v{GI}
    v_mul_f32 v{CI}, v{CI}, v{GI}
    v_mov_b32 v{PR}, v{LR}
    v_mov_b32 v{PI}, v{LI}
    ''')
    for k in range(6):
        a(f'''
        v_mul_f32 v{TA_}, v{PI}, v{PI}
        v_mul_f32 v{TB_}, v{PR}, v{PI}
        v_fma_f32 v{PR}, v{PR}, v{PR}, -v{TA_}
        v_add_f32 v{PI}, v{TB_}, v{TB_}
        ''')

def cstep(a, xr, xi, ur, ui):
    a(f'''
    v_fma_f32 v{TA_}, -v{xi}, v{GI}, v{ur}
    v_fma_f32 v{TB_}, v{xi}, v{GR}, v{ui}
    v_fma_f32 v{GR}, v{xr}, v{GR}, v{TA_}
    v_fma_f32 v{GI}, v{xr}, v{GI}, v{TB_}
    ''')

def u_loads(a, half):
    a(f'''
    s_lshl_b32 s{sA}, s{sG}, 18
    s_add_u32 s{sA}, s{sA}, {L.UB + half*32*4096}
    ''')
    for k in range(32):
        a(f's_add_u32 s{sT0}, s{sA}, {k*4096}')
        a(f'buffer_load_dwordx2 {vr(UREG+half*64+2*k,2)}, v{vP8}, {WS}, s{sT0} offen')

def s2_task(a):
    u_loads(a, 0)
    s5_params_done = True
    a(f'v_mov_b32 v{GR}, 0'); a(f'v_mov_b32 v{GI}, 0')
    for k in range(32):
        cstep(a, LR, LI, UREG+2*k, UREG+2*k+1)
        if k == 0: u_loads(a, 1)
    for k in range(32): cstep(a, LR, LI, UREG+64+2*k, UREG+64+2*k+1)
    a(f'''
    s_lshl_b32 s{sT0}, s{sG}, 12
    s_add_u32 s{sT0}, s{sT0}, {L.EB}
    v_mov_b32 v{TC_}, v{GR}
    v_mov_b32 v{TD_}, v{GI}
    buffer_store_dwordx2 {vr(TC_,2)}, v{vP8}, {WS}, s{sT0} offen sc1
    s_waitcnt vmcnt(0)
    ''')

def s3_task(a, tag):
    EREG = 192
    for c in range(31):
        a(f'buffer_load_dwordx2 {vr(EREG+2*c,2)}, v{vP8}, {WS}, s{sD} offen offset:{(c*4096) % 4096}') if False else None
    a(f's_mov_b32 s{sD}, {L.EB}')
    for c in range(31):
        a(f's_add_u32 s{sT0}, s{sD}, {c*4096}')
        a(f'buffer_load_dwordx2 {vr(EREG+2*c,2)}, v{vP8}, {WS}, s{sT0} offen')
    u_loads(a, 0)
    a(f'v_mov_b32 v{GR}, 0'); a(f'v_mov_b32 v{GI}, 0')
    a('s_waitcnt vmcnt(32)')
    for c in range(31):
        a(f's_cmp_le_u32 s{sG}, {c}')
        a(f's_cbranch_scc1 {tag}_carry')
        cstep(a, PR, PI, EREG+2*c, EREG+2*c+1)
    a.label(f'{tag}_carry')
    a(f'''
    v_lshrrev_b32 v{vT}, 1, v{vP8}
    s_lshl_b32 s{sB}, s{sG}, 17
    s_add_u32 s{sB}, s{sB}, {L.HB}
    ''')
    for half in range(2):
        for k in range(32):
            cstep(a, LR, LI, UREG+half*64+2*k, UREG+half*64+2*k+1)
            if half == 0 and k == 0: u_loads(a, 1)
            a(f'''
            v_mul_f32 v{TC_}, v{CR}, v{GR}
            v_mul_f32 v{TD_}, v{CR}, v{GI}
            v_fma_f32 v{TC_}, -v{CI}, v{GI}, v{TC_}
            v_fma_f32 v{TD_}, v{CI}, v{GR}, v{TD_}
            v_cvt_pk_bf16_f32 v{vT2}, v{TC_}, -v{TD_}
            s_add_u32 s{sT0}, s{sB}, {(half*32+k)*2048}
            buffer_store_dword v{vT2}, v{vT}, {WS}, s{sT0} offen sc1
            ''')
    a('s_waitcnt vmcnt(0)')

def s4_task(a, tag):
    a(f'''
    s_add_u32 s{S_X}, s{S_WS}, {L.HB}
    s_addc_u32 s{S_X+1}, s{S_WS+1}, 0
    s_mov_b32 s{S_X+2}, {2048*2048}
    s_mov_b32 s{S_X+3}, 0x20000
    ''')
    srd(a, S_M, L.ARG['B_C_re'], 524288)
    srd(a, S_M2, L.ARG['B_C_im'], 524288)
    a(f'''
    v_lshrrev_b32 v{vT}, 4, v{vL16}
    v_and_b32 v{vT2}, 15, v{vT}
    v_lshlrev_b32 v{vWA}, 10, v{vT2}
    v_lshrrev_b32 v{vT}, 4, v{vT}
    v_lshl_add_u32 v{vWA}, v{vT}, 3, v{vWA}
    s_lshl_b32 s{sB}, s{sCB}, 8
    s_lshl_b32 s{sT0}, s{sWV}, 6
    s_add_u32 s{sB}, s{sB}, s{sT0}
    s_lshl_b32 s{sWO}, s{sB}, 10
    ''')
    def mk_issue(kh):
        def issue(ks, raw):
            out = []
            for t in range(4):
                out.append(f's_add_u32 s{sT0}, s{sWO}, {t*16*1024 + (kh*16+ks)*32}')
                out.append(f'buffer_load_dwordx2 {vr(raw+4*t,2)}, v{vWA}, {sr(S_M,4)}, s{sT0} offen')
                out.append(f'buffer_load_dwordx2 {vr(raw+4*t+2,2)}, v{vWA}, {sr(S_M2,4)}, s{sT0} offen')
            return out
        return issue
    def conv(raw, wf):
        out = []
        for t in range(4):
            for q in range(4):
                out.append(f'v_perm_b32 v{wf+4*t+q}, v{raw+4*t+2+(q>>1)}, v{raw+4*t+(q>>1)}, s{sPHI if q & 1 else sPLO}')
        return out
    for kh in range(2):
        a(f's_lshl_b32 s{sA}, s{sG}, 7')
        if kh: a('s_barrier')
        load_xtile(a, sA, koff_bytes=kh*1024, row_bytes=2048)
        gemm128x64(a, 16, mk_issue(kh), conv, True, zero_acc=(kh == 0), pre_wait=xtile_wait)
        a('s_waitcnt vmcnt(0) lgkmcnt(0)')
    srd(a, S_X, L.ARG['B_x'], 2097152)
    srd(a, S_M, L.ARG['B_Dskip'], 1024)
    a(f'''
    v_lshrrev_b32 v{vT}, 4, v{vL16}
    v_and_b32 v{vT2}, 15, v{vT}
    v_lshrrev_b32 v{vT}, 4, v{vT}
    v_lshlrev_b32 v{vXA}, 10, v{vT2}
    v_lshl_add_u32 v{vXA}, v{vT}, 3, v{vXA}
    v_lshlrev_b32 v{vWA}, 12, v{vT2}
    v_lshl_add_u32 v{vWA}, v{vT}, 4, v{vWA}
    v_lshlrev_b32 v{vT3}, 3, v{vT}
    s_lshl_b32 s{sA}, s{sG}, 7
    s_lshl_b32 s{sC_}, s{sA}, 10
    s_lshl_b32 s{sT0}, s{sB}, 1
    s_add_u32 s{sC_}, s{sC_}, s{sT0}
    s_lshl_b32 s{sD}, s{sA}, 12
    s_lshl_b32 s{sT0}, s{sB}, 2
    s_add_u32 s{sD}, s{sD}, s{sT0}
    s_add_u32 s{sD}, s{sD}, 2048
    s_lshl_b32 s{sWO}, s{sB}, 1
    ''')
    DS_ = 48
    for t in range(4):
        a(f's_add_u32 s{sT0}, s{sWO}, {t*32}')
        a(f'buffer_load_dwordx2 {vr(120+2*t,2)}, v{vT3}, {sr(S_M,4)}, s{sT0} offen')
    for t in range(4):
        for q in range(2):
            a(f'v_lshlrev_b32 v{DS_+4*t+2*q}, 16, v{120+2*t+q}')
            a(f'v_and_b32 v{DS_+4*t+2*q+1}, 0xffff0000, v{120+2*t+q}')
    XR = 64
    def xl(hf):
        for r in range(4*hf, 4*hf+4):
            for t in range(4):
                a(f's_add_u32 s{sT0}, s{sC_}, {r*16*1024 + t*32}')
                a(f'buffer_load_dwordx2 {vr(XR+hf*32+((r & 3)*4+t)*2,2)}, v{vXA}, {sr(S_X,4)}, s{sT0} offen')
    xl(0)
    n = 0
    for r in range(8):
        if r == 1:
            pass
        for t in range(4):
            b = EP + (n % 4)*8; n += 1
            x0 = XR+(r >> 2)*32+((r & 3)*4+t)*2 if False else XR + ((r >> 2) & 1)*0 + ((r & 3)*4+t)*2
            if r == 4 and t == 0:
                for rr in range(4, 8):
                    for tt in range(4):
                        a(f's_add_u32 s{sT0}, s{sC_}, {rr*16*1024 + tt*32}')
                        a(f'buffer_load_dwordx2 {vr(XR+((rr & 3)*4+tt)*2,2)}, v{vXA}, {sr(S_X,4)}, s{sT0} offen')
            for q in range(2):
                a(f'v_lshlrev_b32 v{b+4+2*q}, 16, v{x0+q}')
                a(f'v_and_b32 v{b+5+2*q}, 0xffff0000, v{x0+q}')
            for i in range(4): a(f'v_mul_f32 v{b+4+i}, v{b+4+i}, v{DS_+4*t+i}')
            for q in range(2): a(f'v_cvt_pk_bf16_f32 v{x0+q}, v{b+4+2*q}, v{b+5+2*q}')
            for q in range(2):
                a(f'v_lshlrev_b32 v{b+4+2*q}, 16, v{x0+q}')
                a(f'v_and_b32 v{b+5+2*q}, 0xffff0000, v{x0+q}')
            for i in range(4):
                a(f'v_fma_f32 v{b+i}, v{accr(r,t)+i}, 2.0, v{b+4+i}')
            a(f's_add_u32 s{sT0}, s{sD}, {r*16*4096 + t*64}')
            a(f'buffer_store_dwordx4 {vr(b,4)}, v{vWA}, {sr(S_OUT,4)}, s{sT0} offen')
    a('s_waitcnt vmcnt(0) lgkmcnt(0)')
    a('s_barrier')
    a('@assume_drained')

def gen_s5_test():
    from gen_chain import FOOTER, NAME, emit_elect
    names = ['s5a_kernel', 's5b_kernel', 's5c_kernel', 's5d_kernel']
    txt = ''.join(f'; @launch kernel={n} grid=(256,1,1) block=(256,1,1) lds=163840\n' for n in names)
    txt += '.amdgcn_target "amdgcn-amd-amdhsa--gfx950"\n.text\n'
    for idx, n in enumerate(names):
        a = Asm()
        a(f'''
        s_cmp_ge_u32 s2, {64 if idx < 3 else 32}
        s_cbranch_scc1 L_end{idx}
        v_lshrrev_b32 v1, 6, v0
        s_nop 0
        v_readfirstlane_b32 s{sWV}, v1
        ''')
        srd(a, S_WS, L.ARG['ws'], L.WS_BYTES)
        srd(a, S_OUT, L.ARG['out'], 2048*1024*4)
        setup_lane(a)
        if idx == 0:
            a(f's_lshr_b32 s{sG}, s2, 2\ns_and_b32 s{sCB}, s2, 3'); s1_task(a, 'S1')
        elif idx == 1:
            a(f's_lshr_b32 s{sG}, s2, 1\ns_and_b32 s{sCB}, s2, 1'); s5_params(a); s2_task(a)
        elif idx == 2:
            a(f's_lshr_b32 s{sG}, s2, 1\ns_and_b32 s{sCB}, s2, 1'); s5_params(a); s3_task(a, 'S3')
        else:
            a(f's_lshr_b32 s{sG}, s2, 1\ns_and_b32 s{sCB}, s2, 1'); s4_task(a, 'S4')
        a.label(f'L_end{idx}')
        a('s_endpgm')
        txt += f'.globl {n}\n.p2align 8\n.type {n},@function\n{n}:\n' + a.finalize()
    for n in names: txt += FOOTER.format(name=n)
    open('s5_test.s', 'w').write(txt)
    print('s5 test written')
gen_s5_test() if __name__ == '__main__' else None
```

```python
KX   = 0x0000000
VX   = 0x1000000
QX   = 0x2000000
OX   = 0x3000000
KM   = 0x4040000
VM   = 0x4860000
RS   = 0x5000000
RSH  = 2304
RSW_STRIDE = 32*2304
RS_SLOT = 0x80000
AG   = 0x4D00000
MEMS = 0x4E00000
FLAGS= 0x4F00000
UB   = 0x5400000
HB   = 0x5C00000
EB   = 0x6000000
BF   = 0x6100000
CF   = 0x6200000
WS_BYTES = 0x10000000
ARG = dict(A_x=0, A_mem0=8, A_Wq=16, A_Wk=24, A_Wv=32, A_Wo=40, A_seg_len=48, B_x=56, B_Lambda_re=64, B_Lambda_im=72,
           B_B_re=80, B_B_im=88, B_C_re=96, B_C_im=104, B_log_dt=112, B_Dskip=120, out=128, dbg=136, ws=144)
L_MEM = 0
L_KX  = 8192
L_VX  = 16384
L_Q   = 24576
L_K   = 24576 + 2176
L_O   = 24576 + 2*2176
L_W   = 32768
QROW  = 272

F_KV = FLAGS + 0x0000
F_Q  = FLAGS + 0x1000
F_CH = FLAGS + 0x2000
F_A  = FLAGS + 0x4000
F_S1 = FLAGS + 0x6000
F_S2 = FLAGS + 0x6400
F_S3 = FLAGS + 0x6800
DBG_NONCE = 64
F_S0 = FLAGS + 0x6C00
```

```python
import sys
from asmlib import Asm
import layout as L
import gen_chain as C
from gen_chain import srd, sr, vr, sWV, sH, S_WS, WS, FOOTER, HEADER, NAME, emit_elect, sDBG, sNONCE, sSAVE, get_nonce, sT0, sT1, sT2, sT3
import gen_work as W
from gen_work import *

sXW, sTKT, sRND, sIDX, sSPINW, sKIND = 49, 16, 63, 64, 65, 66
sFL = 67

PROF = dict(on=False)
def tstamp(a, slot, vtmp=(4, 5)):
    if not PROF['on']: return
    lab = f'TS{tstamp.n}'; tstamp.n += 1
    a(f'''
    s_cmp_lg_u32 s{sWV}, 0
    s_cbranch_scc1 {lab}
    s_memrealtime s[98:99]
    s_waitcnt lgkmcnt(0)
    s_lshl_b32 s99, s2, 6
    s_add_u32 s99, s99, {L.FLAGS + 0x50000 + slot*4}
    v_mov_b32 v{vtmp[0]}, s98
    v_mov_b32 v{vtmp[1]}, 0
    buffer_store_dword v{vtmp[0]}, v{vtmp[1]}, {WS}, s99 offen
    ''')
    a.label(lab)
tstamp.n = 0

def set_flag_wg(a, off_s):
    a(f'''
    s_waitcnt vmcnt(0) lgkmcnt(0)
    s_barrier
    s_cmp_lg_u32 s{sWV}, 0
    ''')
    lab = f'SF{set_flag_wg.n}'; set_flag_wg.n += 1
    a(f's_cbranch_scc1 {lab}')
    set_flag_wave(a, off_s, drained=True)
    a.label(lab)
set_flag_wg.n = 0

def set_flag_wave(a, off_s, drained=False):
    if not drained: a('s_waitcnt vmcnt(0)')
    a(f'''
    s_mov_b64 exec, 1
    v_mov_b32 v{vT}, s{sNONCE}
    v_mov_b32 v{vT2}, 0
    buffer_store_dword v{vT}, v{vT2}, {WS}, s{off_s} offen sc1
    s_mov_b64 exec, -1
    ''')

SLEEP = dict(mul=1)
def wait_flags(a, off_s, n, sleep=8):
    sleep = min(127, sleep*SLEEP['mul'])
    lab = f'WF{wait_flags.n}'; wait_flags.n += 1
    a(f'''
    v_lshrrev_b32 v{vT}, 2, v{vL16}
    v_min_u32 v{vT}, {4*(n-1)}, v{vT}
    ''')
    a.label(lab)
    a(f'''
    buffer_load_dword v{vT2}, v{vT}, {WS}, s{off_s} offen sc1
    s_waitcnt vmcnt(0)
    v_cmp_ne_u32 vcc, s{sNONCE}, v{vT2}
    s_cbranch_vccz {lab}_ok
    s_cmp_eq_u32 s{sSPINW}, 0
    s_cbranch_scc1 {lab}_ok
    s_sub_u32 s{sSPINW}, s{sSPINW}, 1
    s_sleep {sleep}
    s_branch {lab}
    ''')
    a.label(f'{lab}_ok')
    a('@assume_vm_empty')
wait_flags.n = 0

def p_loop(a):
    a(f's_mov_b32 s{sRND}, 0')
    a.label('P_round')
    a(f'''
    s_mul_i32 s{sA}, s{sRND}, 7
    s_add_u32 s{sA}, s{sA}, s{sXW}
    s_cmp_ge_u32 s{sA}, 24
    s_cbranch_scc1 P_end
    s_cmp_ge_u32 s{sA}, 16
    s_cselect_b32 s{sKIND}, 1, 0
    s_cbranch_scc1 P_isq
    s_lshr_b32 s{sB}, s{sA}, 2
    s_and_b32 s{sC_}, s{sA}, 3
    s_branch P_dec
    ''')
    a.label('P_isq')
    a(f'''
    s_sub_u32 s{sA}, s{sA}, 16
    s_lshr_b32 s{sB}, s{sA}, 1
    s_and_b32 s{sC_}, s{sA}, 1
    ''')
    a.label('P_dec')
    a(f'''
    s_lshl_b32 s{sG}, s{sB}, 2
    s_lshr_b32 s{sT0}, s{sTKT}, 3
    s_add_u32 s{sG}, s{sG}, s{sT0}
    s_lshl_b32 s{sHD}, s{sC_}, 3
    s_and_b32 s{sT0}, s{sTKT}, 7
    s_add_u32 s{sHD}, s{sHD}, s{sT0}
    s_lshl_b32 s{sA}, s{sG}, 7
    ''')
    srd(a, S_X, L.ARG['A_x'], 2097152)
    load_xtile(a, sA)
    a(f'''
    v_lshrrev_b32 v{vT}, 4, v{vL16}
    v_lshrrev_b32 v{vT2}, 4, v{vT}
    v_lshlrev_b32 v{vWA}, 16, v{vT2}
    v_and_b32 v{vT2}, 15, v{vT}
    v_lshl_add_u32 v{vWA}, v{vT2}, 3, v{vWA}
    s_and_b32 s{sB}, s{sWV}, 1
    s_lshr_b32 s{sC_}, s{sWV}, 1
    s_lshl_b32 s{sD}, s{sHD}, 1
    s_add_u32 s{sD}, s{sD}, s{sC_}
    s_cmp_eq_u32 s{sKIND}, 1
    s_cselect_b32 s{sD}, s{sD}, s{sHD}
    s_lshl_b32 s{sWO}, s{sD}, 8
    s_lshl_b32 s{sT0}, s{sB}, 7
    s_add_u32 s{sWO}, s{sWO}, s{sT0}
    s_lshl_b32 s{sDST}, s{sG}, 20
    s_lshl_b32 s{sT0}, s{sD}, 13
    s_add_u32 s{sDST}, s{sDST}, s{sT0}
    ''')
    a(f'''
    s_cmp_eq_u32 s{sKIND}, 1
    s_cbranch_scc1 P_mq
    s_cmp_eq_u32 s{sC_}, 1
    s_cbranch_scc1 P_v
    ''')
    srd(a, S_M, L.ARG['A_Wk'], 4194304)
    a(f's_add_u32 s{sDST}, s{sDST}, {L.KX}')
    a('s_branch P_t')
    a.label('P_mq')
    srd(a, S_M, L.ARG['A_Wq'], 4194304)
    a(f's_add_u32 s{sDST}, s{sDST}, {L.QX}')
    a.label('P_t')
    a(f'''
    s_lshl_b32 s{sT0}, s{sB}, 11
    s_add_u32 s{sDST}, s{sDST}, s{sT0}
    ''')
    iss, cv = w_ncontig(S_M)
    gemm128x64(a, 16, iss, cv, True, pre_wait=xtile_wait)
    epi_kq(a, sDST)
    a('s_branch P_done')
    a.label('P_v')
    a('@assume_drained')
    srd(a, S_M, L.ARG['A_Wv'], 4194304)
    a(f'''
    s_lshl_b32 s{sT0}, s{sB}, 12
    s_add_u32 s{sDST}, s{sDST}, s{sT0}
    s_add_u32 s{sDST}, s{sDST}, {L.VX}
    ''')
    gemm128x64(a, 16, iss, cv, False, pre_wait=xtile_wait)
    epi_v(a, sDST)
    a.label('P_done')
    a(f'''
    s_cmp_lg_u32 s{sRND}, 0
    s_cbranch_scc1 P_hasn
    ''')
    get_nonce(a, 'W_nonce', vT, vT2)
    a.label('P_hasn')
    a(f'''
    s_lshl_b32 s{sFL}, s{sHD}, 6
    s_lshl_b32 s{sT0}, s{sG}, 2
    s_add_u32 s{sFL}, s{sFL}, s{sT0}
    s_lshl_b32 s{sT0}, s{sKIND}, 12
    s_add_u32 s{sFL}, s{sFL}, s{sT0}
    s_add_u32 s{sFL}, s{sFL}, {L.F_KV}
    ''')
    set_flag_wg(a, sFL)
    a(f'''
    s_add_u32 s{sRND}, s{sRND}, 1
    s_branch P_round
    ''')
    a.label('P_end')
    a('@assume_drained')

def a_role(a, nsets):
    attn_setup(a)
    a(f'''
    s_and_b32 s{sHD}, s{sIDX}, 7
    s_lshl_b32 s{sHD}, s{sHD}, 2
    s_add_u32 s{sHD}, s{sHD}, s{sWV}
    s_lshr_b32 s{sSEG}, s{sIDX}, 3
    ''')
    a.label('A_loop')
    a(f'''
    s_lshr_b32 s{sT2}, s{sSEG}, 2
    s_lshl_b32 s{sT2}, s{sT2}, 2
    s_lshl_b32 s{sFL}, s{sHD}, 6
    s_add_u32 s{sFL}, s{sFL}, s{sT2}
    s_add_u32 s{sFL}, s{sFL}, {L.F_KV}
    ''')
    wait_flags(a, sFL, 1)
    a(f'''
    s_lshr_b32 s{sT2}, s{sSEG}, 2
    s_lshl_b32 s{sT2}, s{sT2}, 2
    s_lshr_b32 s{sFL}, s{sHD}, 1
    s_lshl_b32 s{sFL}, s{sFL}, 6
    s_add_u32 s{sFL}, s{sFL}, s{sT2}
    s_add_u32 s{sFL}, s{sFL}, {L.F_Q}
    ''')
    wait_flags(a, sFL, 1)
    attn_loads_pre(a)
    a(f'''
    s_lshl_b32 s{sFL}, s{sSEG}, 7
    s_lshl_b32 s{sT2}, s{sHD}, 2
    s_add_u32 s{sFL}, s{sFL}, s{sT2}
    s_add_u32 s{sFL}, s{sFL}, {L.F_CH}
    ''')
    wait_flags(a, sFL, 1, sleep=2)
    attn_loads_post(a)
    attn_compute(a)
    a(f's_add_u32 s{sFL}, s{sFL}, {L.F_A - L.F_CH}')
    set_flag_wave(a, sFL)
    a(f'''
    s_add_u32 s{sSEG}, s{sSEG}, {nsets}
    s_cmp_lt_u32 s{sSEG}, 64
    s_cbranch_scc1 A_loop
    ''')

def o_role(a, nsets):
    a(f'''
    s_and_b32 s{sCB}, s{sIDX}, 15
    s_lshr_b32 s{sUN}, s{sIDX}, 4
    s_mov_b32 s{sKIND}, 0
    ''')
    oproj_load_weights(a)
    a('s_waitcnt vmcnt(0)')
    tstamp(a, 2)
    a.label('O_loop')
    a('@assume_drained')
    for par in range(2):
        a(f'''
        s_lshr_b32 s{sFL}, s{sUN}, 1
        s_lshl_b32 s{sFL}, s{sFL}, 7
        s_add_u32 s{sFL}, s{sFL}, {L.F_A}
        ''')
        wait_flags(a, sFL, 32, sleep=2)
        oproj_unit_loads(a)
        oproj_unit_compute(a, par, f'OU{par}')
        a(f'''
        s_add_u32 s{sUN}, s{sUN}, {nsets}
        s_cmp_ge_u32 s{sUN}, 128
        s_cbranch_scc1 O_end
        ''')
    a('s_branch O_loop')
    a.label('O_end')
    a('s_waitcnt vmcnt(0)')

def s5_role(a):
    a(f's_lshr_b32 s{sG}, s{sIDX}, 2\ns_and_b32 s{sCB}, s{sIDX}, 3')
    s1_task(a, 'S1')
    a(f'''
    s_lshl_b32 s{sFL}, s{sIDX}, 2
    s_add_u32 s{sFL}, s{sFL}, {L.F_S1}
    ''')
    set_flag_wg(a, sFL)
    a(f'''
    s_lshr_b32 s{sG}, s{sIDX}, 1
    s_and_b32 s{sCB}, s{sIDX}, 1
    ''')
    s5_params(a)
    a(f'''
    s_lshr_b32 s{sFL}, s{sG}, 1
    s_lshl_b32 s{sFL}, s{sFL}, 4
    s_add_u32 s{sFL}, s{sFL}, {L.F_S1}
    ''')
    wait_flags(a, sFL, 4)
    s2_task(a)
    a(f'''
    s_lshl_b32 s{sFL}, s{sIDX}, 2
    s_add_u32 s{sFL}, s{sFL}, {L.F_S2}
    ''')
    set_flag_wg(a, sFL)
    a(f's_mov_b32 s{sFL}, {L.F_S2}')
    wait_flags(a, sFL, 64)
    tstamp(a, 2)
    s3_task(a, 'S3')
    a(f'''
    s_lshl_b32 s{sFL}, s{sIDX}, 2
    s_add_u32 s{sFL}, s{sFL}, {L.F_S3}
    ''')
    set_flag_wg(a, sFL)
    a(f'''
    s_cmp_ge_u32 s{sIDX}, 32
    s_cbranch_scc1 S5_end
    s_lshr_b32 s{sG}, s{sIDX}, 1
    s_and_b32 s{sCB}, s{sIDX}, 1
    s_lshl_b32 s{sFL}, s{sG}, 4
    s_add_u32 s{sFL}, s{sFL}, {L.F_S3}
    ''')
    wait_flags(a, sFL, 4)
    s4_task(a, 'S4')
    a.label('S5_end')

def build(cfg):
    C.CFG.update(dbg_mems=False, rs_gap=1, rs_delay=1, flags=1)
    C.CFG.update(cfg)
    a = Asm()
    emit_elect(a)
    if PROF['on']:
        a(f'''
        s_lshl_b32 s99, s2, 6
        s_add_u32 s99, s99, {L.FLAGS + 0x50000}
        v_mov_b32 v4, s3
        v_mov_b32 v5, 0
        buffer_store_dword v4, v5, {WS}, s99 offen offset:16
        v_mov_b32 v4, s{sH}
        buffer_store_dword v4, v5, {WS}, s99 offen offset:20
        ''')
    a(f'''
    s_cmp_lg_u32 s3, 0
    s_cbranch_scc1 W_start
    s_cmp_ge_u32 s{sH}, 32
    s_cbranch_scc1 L_end
    ''')
    C.HOOK['tstamp'] = tstamp
    tstamp(a, 0, (24, 25))
    a(f'v_mov_b32 v24, s3') if False else None
    C.emit_chain(a)
    tstamp(a, 3, (24, 25))
    a('s_branch L_end')
    a.label('W_start')
    a('@assume_drained')
    a(f'''
    s_sub_u32 s{sXW}, s3, 1
    s_mov_b32 s{sSPINW}, 0x100000
    s_cmp_ge_u32 s{sTKT}, 32
    s_cbranch_scc1 L_end
    ''')
    srd(a, S_OUT, L.ARG['out'], 2048*1024*4)
    setup_lane(a)
    tstamp(a, 0)
    p_loop(a)
    tstamp(a, 1)
    a(f'''
    s_cmp_eq_u32 s{sXW}, 0
    s_cbranch_scc1 R_a
    s_cmp_eq_u32 s{sXW}, 3
    s_cbranch_scc1 R_s5
    s_cmp_eq_u32 s{sXW}, 4
    s_cbranch_scc1 R_s5
    s_cmp_ge_u32 s{sXW}, 5
    s_cselect_b32 s{sT0}, 3, 1
    s_sub_u32 s{sT0}, s{sXW}, s{sT0}
    s_lshl_b32 s{sIDX}, s{sT0}, 5
    s_add_u32 s{sIDX}, s{sIDX}, s{sTKT}
    ''')
    if not cfg.get('no_o'): o_role(a, 8)
    tstamp(a, 3)
    a('s_branch L_end')
    a.label('R_a')
    a('@assume_drained')
    a(f's_mov_b32 s{sIDX}, s{sTKT}')
    if not cfg.get('no_a'): a_role(a, 4)
    tstamp(a, 3)
    a('s_branch L_end')
    a.label('R_s5')
    a('@assume_drained')
    a(f'''
    s_sub_u32 s{sT0}, s{sXW}, 3
    s_lshl_b32 s{sIDX}, s{sT0}, 5
    s_add_u32 s{sIDX}, s{sIDX}, s{sTKT}
    ''')
    if not cfg.get('no_s5'): s5_role(a)
    tstamp(a, 3)
    a.label('L_end')
    a('s_endpgm')
    body = a.finalize(compact=True)
    hdr = open('concat_heads__memory_aug_recurrent_mem_tr__ssm_conv_s5__prompt.s.ref').read().split('; Override launch geometry')[0]
    return hdr + HEADER.format(name=NAME) + body + FOOTER.format(name=NAME), a.count()

if __name__ == '__main__':
    cfg = {}
    for arg in sys.argv[1:]:
        k, v = arg.split('=')
        if k == 'only': cfg[k] = v.split(',')
        else: cfg[k] = int(v)
    PROF['on'] = bool(cfg.get('prof'))
    SLEEP['mul'] = cfg.get('sleepmul', 1)
    txt, n = build(cfg)
    open('main.s', 'w').write(txt)
    print('instructions', n, 'bytes', len(txt), ','.join(C.STAMPS))
```

```python
from asmlib import Asm
import layout as L

T, L16, AGP, QW, QR, OW, OR_, RSW, AGW, WL, IDX, RSR = range(12)
SEL = 12
AO = 16
X = 24
AQ, AK, AV = 40, 48, 56
POOL = 64
WKR = 128
WOR = 192
S_WS = 8
sH, sWV, sSTEP, sAGR, sAGWR, sAGRST = 16, 17, 18, 19, 20, 21
sRSW = 22
sONES = 24
sKX, sVX, sKM, sVM = 28, 29, 30, 31
sC = 36
sSPIN = 37
sT0, sT1, sT2, sT3 = 38, 39, 40, 41
sPW = 42
sMEMS = 46
sSAVE = 48
sPLO, sPHI = 50, 51
sDBG = 52
sLKX, sLVX = 33, 34
sKMO = 32
sRST = 57
sRSR = 60
STAMP0 = 70
sNONCE, sNRDY, sFCH = 69, 68, 47
sVML = 55
sPF = 54

CFG = dict(stamps=False, stamp_step=40, dbg_mems=True, nsteps=64, noreset=False)
STAMPS = []
HOOK = {}

def vr(a, n=1): return f'v{a}' if n == 1 else f'v[{a}:{a+n-1}]'
def ar(a, n=1): return f'a{a}' if n == 1 else f'a[{a}:{a+n-1}]'
def sr(a, n=1): return f's{a}' if n == 1 else f's[{a}:{a+n-1}]'

def wq(sg, t): return ar((sg*2+t)*8, 8)
def wv(sg, t): return ar(128+(sg*2+t)*8, 8)
def wk(sg, t):
    return vr(POOL+(sg*2+t)*8, 8) if sg < 4 else vr(WKR+((sg-4)*2+t)*8, 8)
WO_SLOT = {0: 48, 4: 56, 1: 24, 5: 32, 2: 40, 6: 0, 3: 8, 7: 16}
KMB = POOL
def wo(ko, t):
    return vr(POOL+WO_SLOT[ko*4+t], 8) if t < 4 else vr(WOR+(ko*4+t-4)*8, 8)
def oacc(t):
    return 40+4*t if t < 6 else X+4*(t-6)

WS = sr(S_WS, 4)

def srd(a, dst, argoff, nbytes):
    a(f'''
    s_load_dwordx2 {sr(dst,2)}, s[0:1], {argoff}
    s_waitcnt lgkmcnt(0)
    s_and_b32 {sr(dst+1)}, {sr(dst+1)}, 0xffff
    s_mov_b32 {sr(dst+2)}, {nbytes}
    s_mov_b32 {sr(dst+3)}, 0x20000
    ''')

def lane(a, dst):
    a(f'v_lshrrev_b32 v{dst}, 4, v{L16}')

def stamp(a, name):
    if not CFG['stamps']: return
    if CFG.get('only') and name not in CFG['only']: return
    if name not in STAMPS: STAMPS.append(name)
    i = STAMPS.index(name)
    assert STAMP0+1+2*i <= 101
    a.raw(f'    {"s_memrealtime" if CFG.get("rt") else "s_memtime"} s[{STAMP0+2*i}:{STAMP0+1+2*i}]')

def dump_stamps(a, w):
    if not CFG['stamps']: return
    n = 14
    a(f'''
    s_cmp_lg_u32 s{sSTEP}, {CFG['stamp_step']}
    s_cbranch_scc1 C_nostamp{w}
    s_waitcnt lgkmcnt(0)
    s_lshl_b32 s{sT0}, s{sH}, 2
    s_add_u32 s{sT0}, s{sT0}, s{sWV}
    s_lshl_b32 s{sT0}, s{sT0}, 7
    s_add_u32 s{sT0}, s{sT0}, {L.FLAGS + 0x10000}
    v_mov_b32 v{X}, 0
    ''')
    for i in range(n):
        a(f'v_mov_b32 v{T}, s{STAMP0+2*i}')
        a(f'buffer_store_dword v{T}, v{X}, {WS}, s{sT0} offen offset:{4*i}')
    a.label(f'C_nostamp{w}')

DUMPS = []
def dump(a, name, regs):
    if not CFG.get('dump'): return
    a(f'''
    s_lshl_b32 s{sT2}, s{sH}, 2
    s_add_u32 s{sT2}, s{sT2}, s{sWV}
    s_lshl_b32 s{sT2}, s{sT2}, 14
    s_add_u32 s{sT2}, s{sT2}, {L.FLAGS + 0x100000}
    ''')
    for r in regs:
        i = len(DUMPS); DUMPS.append(f'{name}{r}')
        a(f's_add_u32 s{sT3}, s{sT2}, {i*256}')
        a(f'buffer_store_dword v{r}, v{RSW}, {WS}, s{sT3} offen')

def emit_setup(a):
    T2 = X
    a(f'''
    v_and_b32 v{T2}, 63, v0
    v_lshlrev_b32 v{L16}, 4, v{T2}
    s_lshl_b32 s{sT0}, s{sWV}, 11
    v_add_u32 v{AGP}, s{sT0}, v{L16}
    ''')
    a(f'''
    v_lshrrev_b32 v{T}, 4, v{T2}
    v_mul_u32_u24 v{QW}, {2*L.QROW}, v{T}
    v_and_b32 v{T}, 15, v{T2}
    v_lshl_add_u32 v{QW}, v{T}, 3, v{QW}
    s_lshr_b32 s{sT0}, s{sWV}, 1
    s_lshl_b32 s{sT0}, s{sT0}, 7
    s_and_b32 s{sT1}, s{sWV}, 1
    s_lshl_b32 s{sT1}, s{sT1}, 2
    s_add_u32 s{sT0}, s{sT0}, s{sT1}
    v_add_u32 v{QW}, s{sT0}, v{QW}
    ''')
    a(f'''
    v_and_b32 v{T}, 7, v{T2}
    v_mul_u32_u24 v{QR}, {L.QROW}, v{T}
    v_lshrrev_b32 v{T}, 4, v{T2}
    v_lshl_add_u32 v{QR}, v{T}, 5, v{QR}
    ''')
    a(f'''
    s_add_u32 s{sT1}, s{sT0}, {L.L_O}
    v_add_u32 v{OW}, s{sT1}, v{QR}
    ''')
    a(f'''
    v_bfe_u32 v{T}, v{T2}, 2, 2
    v_lshlrev_b32 v{T}, 1, v{T}
    v_and_b32 v{OR_}, 1, v{T2}
    v_add_u32 v{T}, v{T}, v{OR_}
    v_mul_u32_u24 v{OR_}, {L.QROW}, v{T}
    v_lshrrev_b32 v{T}, 4, v{T2}
    v_lshl_add_u32 v{OR_}, v{T}, 5, v{OR_}
    v_bfe_u32 v{T}, v{T2}, 1, 1
    v_lshl_add_u32 v{OR_}, v{T}, 4, v{OR_}
    ''')
    a(f'''
    v_lshlrev_b32 v{RSW}, 2, v{T2}
    v_lshrrev_b32 v{T}, 4, v{T2}
    v_mul_u32_u24 v{RSR}, {L.RSH}, v{T}
    v_and_b32 v{T}, 15, v{T2}
    v_lshl_add_u32 v{RSR}, v{T}, 4, v{RSR}
    ''')
    a(f'''
    v_lshrrev_b32 v{T}, 4, v{T2}
    v_lshlrev_b32 v{AGW}, 6, v{T}
    v_bfe_u32 v{T}, v{T2}, 2, 1
    v_lshl_add_u32 v{AGW}, v{T}, 5, v{AGW}
    v_and_b32 v{T}, 1, v{T2}
    v_lshl_add_u32 v{AGW}, v{T}, 4, v{AGW}
    v_bfe_u32 v{T}, v{T2}, 1, 1
    v_lshl_add_u32 v{AGW}, v{T}, 3, v{AGW}
    ''')
    a(f'''
    s_lshl_b32 s{sT0}, s{sWV}, 15
    s_add_u32 s{sT0}, s{sT0}, {L.L_W}
    v_add_u32 v{WL}, s{sT0}, v{L16}
    ''')
    a(f'''
    v_bfe_u32 v{T}, v{T2}, 1, 1
    v_mov_b32 v{IDX}, 0x44444444
    v_cmp_eq_u32 vcc, 1, v{T}
    v_mov_b32 v{T}, 0xeeeeeeee
    v_cndmask_b32 v{IDX}, v{IDX}, v{T}, vcc
    ''')
    a(f'v_and_b32 v{T}, 7, v{T2}')
    for c in range(4):
        a(f'''
        v_mov_b32 v{SEL+c}, 0
        v_cmp_eq_u32 vcc, {2*c}, v{T}
        v_mov_b32 v{X+1}, 0x3f80
        v_cndmask_b32 v{SEL+c}, v{SEL+c}, v{X+1}, vcc
        v_cmp_eq_u32 vcc, {2*c+1}, v{T}
        v_mov_b32 v{X+1}, 0x3f800000
        v_cndmask_b32 v{SEL+c}, v{SEL+c}, v{X+1}, vcc
        ''')
    a(f'''
    s_mov_b32 s{sC}, 0x3e0293ee
    s_mov_b32 s{sONES}, 0x3f803f80
    s_mov_b32 s{sONES+1}, 0x3f803f80
    s_mov_b32 s{sSPIN}, 0x80000
    s_mov_b32 s{sPLO}, 0x05040100
    s_mov_b32 s{sPHI}, 0x07060302
    ''')

def emit_weights(a, mid_hook=None, late_hook=None):
    VD, VB0, T2 = 16, 17, 21
    RAW = 64
    SRDW = {'q': sr(60, 4), 'v': sr(64, 4), 'k': sr(12, 4), 'o': sr(68, 4)}
    srd(a, 12, L.ARG['A_Wk'], 4194304)
    srd(a, 60, L.ARG['A_Wq'], 4194304)
    srd(a, 64, L.ARG['A_Wv'], 4194304)
    srd(a, 68, L.ARG['A_Wo'], 4194304)
    lane(a, T2)
    a(f"""
    v_lshrrev_b32 v{T}, 3, v{T2}
    v_lshlrev_b32 v{VD}, 13, v{T}
    v_and_b32 v{T}, 7, v{T2}
    v_lshl_add_u32 v{VD}, v{T}, 4, v{VD}
    s_lshr_b32 s{sPW}, s{sWV}, 1
    s_and_b32 s{sPW+1}, s{sWV}, 1
    """)
    for j in range(2):
        a(f"""
        s_xor_b32 s{sT0}, s{sPW}, {j}
        s_lshl_b32 s{sT0}, s{sT0}, 21
        s_lshl_b32 s{sT1}, s{sPW+1}, 20
        s_add_u32 s{sT0}, s{sT0}, s{sT1}
        s_lshl_b32 s{sT1}, s{sH}, 8
        s_add_u32 s{sT0}, s{sT0}, s{sT1}
        s_lshl_b32 s{sT1}, s{sPW}, 7
        s_add_u32 s{72+j}, s{sT0}, s{sT1}
        s_lshl_b32 s{sT0}, s{sPW}, 15
        s_lshl_b32 s{sT1}, s{sPW+1}, 14
        s_add_u32 s{sT0}, s{sT0}, s{sT1}
        s_add_u32 s{74+j}, s{sT0}, {L.L_W + j*65536}
        """)
    a(f"""
    v_bfe_u32 v{T}, v{T2}, 4, 1
    v_lshlrev_b32 v{T}, 3, v{T}
    v_lshrrev_b32 v{VB0}, 5, v{T2}
    v_add_u32 v{T}, v{T}, v{VB0}
    v_lshlrev_b32 v{T}, 7, v{T}
    v_and_b32 v{VB0}, 15, v{T2}
    v_lshl_add_u32 v{T}, v{VB0}, 3, v{T}
    s_lshl_b32 s{sT0}, s{sPW}, 15
    s_lshl_b32 s{sT1}, s{sPW+1}, 2
    s_add_u32 s{sT0}, s{sT0}, s{sT1}
    s_add_u32 s{sT0}, s{sT0}, {L.L_W}
    v_add_u32 v{T}, s{sT0}, v{T}
    """)
    for j in range(2):
        for p in range(2):
            a(f"""
            s_xor_b32 s{sT0}, s{sPW+1}, {p}
            s_lshl_b32 s{sT0}, s{sT0}, 14
            s_add_u32 s{sT0}, s{sT0}, {j*65536}
            v_add_u32 v{VB0+2*j+p}, s{sT0}, v{T}
            """)
    steps = [(m, j) for m in ('q', 'v', 'k') for j in range(2)]
    def issue(i):
        m, j = steps[i]
        for k in range(16):
            a(f's_add_u32 m0, s{74+j}, {k*1024}')
            a(f's_add_u32 s{sT0}, s{72+j}, {k*8*8192}')
            a(f'buffer_load_dwordx4 v{VD}, {SRDW[m]}, s{sT0} offen nt lds')
    TA, TB = 22, 23
    RW = 24
    def consume(i):
        m, j = steps[i]
        items = [(p, sp, qv) for p in range(2) for sp in range(2) for qv in range(8)]
        def rd(n):
            p, sp, qv = items[n]
            for e in range(2):
                row = 64*((qv >> 1) & 1) + 16*(qv & 1) + 4*sp + 2*(qv >> 2) + 32*e
                a(f'ds_read_b32 v{RW+(n % 6)*2+e}, v{VB0+2*j+p} offset:{row*128}')
        for n in range(5): rd(n)
        for n, (p, sp, qv) in enumerate(items):
            sg = 4*j + 2*p + sp
            r0, r1 = RW+(n % 6)*2, RW+(n % 6)*2+1
            for t, sel in ((0, sPLO), (1, sPHI)):
                if m in 'qv':
                    dst = (0 if m == 'q' else 128) + (sg*2+t)*8 + qv
                    tmp = TA if t == 0 else TB
                    a(f'v_perm_b32 v{tmp}, v{r1}, v{r0}, s{sel}')
                    a(f'v_accvgpr_write_b32 a{dst}, v{tmp}')
                elif sg >= 4:
                    a(f'v_perm_b32 v{WKR+((sg-4)*2+t)*8+qv}, v{r1}, v{r0}, s{sel}')
                else:
                    a(f'v_perm_b32 v{POOL+(sg*2+t)*8+qv}, v{r1}, v{r0}, s{sel}')
            if n + 5 < len(items): rd(n+5)
    VO = 53
    a(f"""
    v_lshrrev_b32 v{T}, 4, v{T2}
    v_lshlrev_b32 v{VO}, 10, v{T}
    v_and_b32 v{T}, 15, v{T2}
    v_lshl_add_u32 v{VO}, v{T}, 4, v{VO}
    s_lshl_b32 s{sT1}, s{sH}, 17
    s_lshl_b32 s{sT0}, s{sWV}, 8
    s_add_u32 s76, s{sT1}, s{sT0}
    s_lshl_b32 s{sT0}, s{sWV}, 15
    s_add_u32 s77, s{sT0}, {L.L_W}
    """)
    def issue_wo():
        for k in range(32):
            a(f's_add_u32 m0, s77, {k*1024}')
            a(f's_add_u32 s{sT0}, s76, {k*4096}')
            a(f'buffer_load_dwordx4 v{VO}, {SRDW["o"]}, s{sT0} offen nt lds')
    issue(0); issue(1)
    for i in range(6):
        if i < 5:
            a('s_waitcnt vmcnt(16)')
        else:
            a(f"""
            s_waitcnt vmcnt(32)
            s_cmp_lt_u32 s{sWV}, 2
            s_cbranch_scc1 C_w5
            s_waitcnt vmcnt(0)
            """)
            a.label('C_w5')
        a('s_barrier')
        consume(i)
        a('s_waitcnt lgkmcnt(0)')
        a('s_barrier')
        if i + 2 < 6: issue(i+2)
        if i == 4:
            a(f's_cmp_ge_u32 s{sWV}, 2')
            a('s_cbranch_scc1 C_wo1')
            issue_wo()
            a.label('C_wo1')
    a(f's_cmp_lt_u32 s{sWV}, 2')
    a('s_cbranch_scc1 C_wo2')
    issue_wo()
    a.label('C_wo2')
    if mid_hook: mid_hook(a)
    lane(a, T2)
    a(f"""
    v_lshrrev_b32 v{T}, 5, v{T2}
    v_lshlrev_b32 v{T}, 4, v{T}
    v_bfe_u32 v{VB0}, v{T2}, 4, 1
    v_lshl_add_u32 v{T}, v{VB0}, 2, v{T}
    v_lshlrev_b32 v{T}, 8, v{T}
    v_and_b32 v{VB0}, 15, v{T2}
    v_lshl_add_u32 v{T}, v{VB0}, 4, v{T}
    v_add_u32 v{VB0}, s77, v{T}
    s_waitcnt vmcnt(0)
    """)
    if late_hook: late_hook(a)
    lane(a, T2)
    RO = 56
    FO0 = 24
    def wo_item(ko, qv, dstf):
        e0 = 64*ko + 32*(qv >> 2) + 8*(qv & 1) + 2*((qv >> 1) & 1)
        a(f'ds_read_b128 {vr(RO,4)}, v{VB0} offset:{e0*256}')
        a(f'ds_read_b128 {vr(RO+4,4)}, v{VB0} offset:{(e0+1)*256}')
        for c in range(4):
            for hi, sel in ((0, sPLO), (1, sPHI)):
                t = 2*c + hi
                dst = dstf(t, qv) if t < 4 else WOR + (ko*4+t-4)*8 + qv
                a(f'v_perm_b32 v{dst}, v{RO+4+c}, v{RO+c}, s{sel}')
    for qv in range(8): wo_item(0, qv, lambda t, qv: FO0 + t*8 + qv)
    a('s_waitcnt lgkmcnt(0)')
    for f in range(8):
        a(f'ds_write_b128 v{WL}, {vr(POOL+f*8,4)} offset:{f*2048}')
        a(f'ds_write_b128 v{WL}, {vr(POOL+f*8+4,4)} offset:{f*2048+1024}')
    a('s_waitcnt lgkmcnt(0)')
    for qv in range(8): wo_item(1, qv, lambda t, qv: POOL + t*8 + qv)
    a('s_waitcnt lgkmcnt(0)')
    for t in range(4):
        a(f'ds_write_b128 v{WL}, {vr(FO0+t*8,4)} offset:{16384+t*2048}')
        a(f'ds_write_b128 v{WL}, {vr(FO0+t*8+4,4)} offset:{16384+t*2048+1024}')
        a(f'ds_write_b128 v{WL}, {vr(POOL+t*8,4)} offset:{16384+(4+t)*2048}')
        a(f'ds_write_b128 v{WL}, {vr(POOL+t*8+4,4)} offset:{16384+(4+t)*2048+1024}')
    a('s_waitcnt vmcnt(0) lgkmcnt(0)')

def poll_loop(a, name, loads, checks):
    a.label(f'{name}')
    for l in loads: a(l)
    a('s_waitcnt vmcnt(0)')
    c = list(checks)
    if len(c) == 2:
        a(f'v_max_u32 v{T}, v{c[0]}, v{c[1]}')
    else:
        a(f'v_max3_u32 v{T}, v{c[0]}, v{c[1]}, v{c[2]}')
        c = c[3:]
        while len(c) >= 2:
            a(f'v_max3_u32 v{T}, v{T}, v{c[0]}, v{c[1]}'); c = c[2:]
        if c: a(f'v_max_u32 v{T}, v{T}, v{c[0]}')
    a(f'''
    v_cmp_eq_u32 vcc, -1, v{T}
    s_cbranch_vccz {name}_ok
    s_cmp_eq_u32 s{sSPIN}, 0
    s_cbranch_scc1 {name}_ok
    s_sub_u32 s{sSPIN}, s{sSPIN}, 1
    s_branch {name}
    ''')
    a.label(f'{name}_ok')

def smf(a, acc, A, B):
    a(f'v_smfmac_f32_16x16x64_bf16 {vr(acc,4)}, {vr(A,4)}, {B}, v{IDX}')
def mf(a, D, A, B, C):
    a(f'v_mfma_f32_16x16x32_bf16 {vr(D,4)}, {vr(A,4)}, {vr(B,4)}, {C if C == "0" else vr(C,4)}')
def rd128(a, dst, addr, off):
    a(f'ds_read_b128 {vr(dst,4)}, v{addr} offset:{off}')

def zero(a, r0, n):
    for r in range(r0, r0+n, 2):
        a(f'v_mov_b64 {vr(r,2)}, 0')

def fin_qk(a, acc, ldsoff):
    a(f'v_pk_add_f32 {vr(acc,2)}, {vr(acc,2)}, {vr(acc+2,2)}')
    a(f'v_pk_add_f32 {vr(acc+4,2)}, {vr(acc+4,2)}, {vr(acc+6,2)}')
    a(f'v_cvt_pk_bf16_f32 v{acc}, v{acc}, v{acc+4}')
    a(f'v_cvt_pk_bf16_f32 v{acc+1}, v{acc+1}, v{acc+5}')
    a(f'ds_write_b32 v{QW}, v{acc} offset:{ldsoff}')
    a(f'ds_write_b32 v{QW}, v{acc+1} offset:{ldsoff+L.QROW}')

def prefetch_wk(a, fr=range(8)):
    for f in fr:
        rd128(a, POOL+f*8, WL, f*2048)
        rd128(a, POOL+f*8+4, WL, f*2048+1024)

def prefetch_wo(a, f):
    rd128(a, POOL+WO_SLOT[f], WL, 16384+f*2048)
    rd128(a, POOL+WO_SLOT[f]+4, WL, 16384+f*2048+1024)

def dma8(a, ldsbase, soff):
    for half in range(2):
        a(f's_mov_b32 m0, {ldsbase + half*4096}')
        if half:
            a(f's_add_u32 s{sT0}, s{soff}, 4096')
        so = f's{sT0}' if half else f's{soff}'
        for k in range(4):
            off = f' offset:{k*1024}' if k else ''
            a(f'buffer_load_dwordx4 v{L16}, {WS}, {so} offen{off} lds')

def dma2(a, ldsbase_s, soff):
    if CFG.get('nodma'): soff = sAGR
    a(f's_mov_b32 m0, s{ldsbase_s}')
    a(f'buffer_load_dwordx4 v{L16}, {WS}, s{soff} offen lds')
    a(f'buffer_load_dwordx4 v{L16}, {WS}, s{soff} offen offset:1024 lds')

def fin_out(a, t):
    b = oacc(t)
    a(f'v_pk_add_f32 {vr(b,2)}, {vr(b,2)}, {vr(b+2,2)}')
    a(f'v_cvt_pk_bf16_f32 v{b}, v{b}, v{b+1}')
    a(f'buffer_store_dword v{b}, v{RSW}, {WS}, s{sRSW} offen offset:{t*256}')

def barrier(a, name):
    a('@wait_ds_writes')
    a('s_barrier')
    stamp(a, name)

def spin_fail(a, back, ok):
    a(f'''
    s_cmp_eq_u32 s{sSPIN}, 0
    s_cbranch_scc1 {ok}
    s_sub_u32 s{sSPIN}, s{sSPIN}, 1
    s_branch {back}
    ''')

def kv_wait(a, tag, sneed, v1, v2):
    a.label(tag)
    a(f'''
    v_lshrrev_b32 v{v1}, 2, v{L16}
    v_and_b32 v{v1}, 60, v{v1}
    s_lshl_b32 s{sT1}, s{sH}, 6
    s_add_u32 s{sT1}, s{sT1}, {L.F_KV}
    buffer_load_dword v{v2}, v{v1}, {WS}, s{sT1} offen sc1
    s_waitcnt vmcnt(0)
    v_cmp_ne_u32 vcc, s{sNONCE}, v{v2}
    s_nop 1
    s_or_b32 s{sT1}, vcc_lo, 0x10000
    s_ff1_i32_b32 s{sNRDY}, s{sT1}
    s_cmp_lt_u32 s{sneed}, s{sNRDY}
    s_cbranch_scc1 {tag}_ok
    s_cmp_eq_u32 s{sSPIN}, 0
    s_cbranch_scc1 {tag}_ok
    s_sub_u32 s{sSPIN}, s{sSPIN}, 1
    s_sleep 8
    s_branch {tag}
    ''')
    a.label(f'{tag}_ok')

def get_nonce(a, tag, v1, v2, make=False):
    a(f'v_mov_b32 v{v1}, {L.DBG_NONCE}')
    a(f's_mov_b32 s{sT3}, 0x40000')
    a.label(tag)
    a(f'''
    global_load_dword v{v2}, v{v1}, {sr(sDBG,2)} sc1
    s_waitcnt vmcnt(0)
    v_readfirstlane_b32 s{sNONCE}, v{v2}
    s_cmp_lg_u32 s{sNONCE}, 0
    s_cbranch_scc1 {tag}_ok
    s_sub_u32 s{sT3}, s{sT3}, 1
    s_cbranch_scc1 {tag}_ok
    s_sleep 4
    s_branch {tag}
    ''')
    a.label(f'{tag}_ok')

def emit_step(a, w):
    dbg_mems = CFG['dbg_mems']
    pub = not CFG.get('nopub'); flags = CFG.get('flags')
    Lb = lambda n: f'C{w}_{n}'
    a(f'@loop_begin chain{w}')
    a.label(Lb('step'))
    stamp(a, 'top')
    def add(r): a(f'v_add_f32 v{r}, v{r}, v{r+2}')
    def cvt(d, x, y): a(f'v_cvt_pk_bf16_f32 v{d}, v{x}, v{y}')
    def mov(d, x): a(f'v_mov_b32 v{d}, {x}')
    def wr32(r, off): a(f'ds_write_b32 v{QW}, v{r} offset:{off}')
    def rdkx(f): rd128(a, POOL+32+4*f, L16, L.L_KX+f*1024)
    def rdq(ks): rd128(a, X+4*ks, QR, L.L_Q + 128*(ks >> 1) + 16*(ks & 1))
    def rdkm(ks, dst=None): rd128(a, KMB+4*ks if dst is None else dst, OR_, L.L_K + 128*(ks >> 1) + 16*(ks & 1))
    def rdwo(f, h): rd128(a, POOL+WO_SLOT[f]+4*h, WL, 16384+f*2048+1024*h)
    def SX(tile, ks): mf(a, AQ+4*tile, POOL+32+4*(tile*4+ks), X+4*ks, '0' if ks == 0 else AQ+4*tile)
    def agl(base):
        a(f'buffer_load_dwordx4 {vr(base,4)}, v{AGP}, {WS}, s{sAGR} offen sc1')
        a(f'buffer_load_dwordx4 {vr(base+4,4)}, v{AGP}, {WS}, s{sAGR} offen offset:1024 sc1')
    def agchk(base, ok):
        a(f'v_max3_u32 v{T}, v{base}, v{base+2}, v{base+4}')
        a(f'v_max_u32 v{T}, v{T}, v{base+6}')
        a(f'v_cmp_eq_u32 vcc, -1, v{T}')
        a(f's_cbranch_vccz {ok}')
    if w == 1 and pub:
        rd128(a, X+8, L16, L.L_Q); rd128(a, X+12, L16, L.L_Q+1024)
    if w == 3 and pub:
        rd128(a, X+8, OR_, L.L_K); rd128(a, X+12, OR_, L.L_K + 128)
    if w or not CFG.get('early_ag', 0):
        for i in range(CFG.get('ag_delay', 0) if w else 0): a('s_nop 15')
        agl(AO)
        for i in range(CFG.get('ag_gap', 2)): a('s_nop 15')
    agl(X)
    a.label(Lb('ag'))
    a('s_waitcnt vmcnt(2)')
    stamp(a, 'ag_r0')
    agchk(AO, Lb('agA'))
    agl(AO)
    a('s_waitcnt vmcnt(2)')
    agchk(X, Lb('agB'))
    agl(X)
    a(f"""
    s_cmp_eq_u32 s{sSPIN}, 0
    s_cbranch_scc1 {Lb('agA')}
    s_sub_u32 s{sSPIN}, s{sSPIN}, 1
    s_branch {Lb('ag')}
    """)
    def prefix(A0, tag):
        Ar = lambda sg: A0+4*sg
        a(f'ds_write_b128 v{AGP}, {vr(A0,4)} offset:{L.L_MEM}')
        a(f'ds_write_b128 v{AGP}, {vr(A0+4,4)} offset:{L.L_MEM+1024}')
        smf(a, AQ, Ar(0), wq(0, 0)); smf(a, AQ+4, Ar(0), wq(0, 1)); smf(a, AQ, Ar(1), wq(1, 0)); smf(a, AQ+4, Ar(1), wq(1, 1))
        smf(a, AK, Ar(0), wk(0, 0)); a(f'v_xor_b32 v{T}, {1<<11}, v{AGP}')
        smf(a, AK+4, Ar(0), wk(0, 1))
        a('@wait_ds_writes')
        a('s_barrier')
        stamp(a, 'B1')
        rdA = lambda sg: rd128(a, POOL+(sg-2)*4, T, L.L_MEM + (sg & 1)*1024)
        smf(a, AK, Ar(1), wk(1, 0)); rdA(2)
        smf(a, AK+4, Ar(1), wk(1, 1)); rdA(3); a(f'v_xor_b32 v{T}, {2<<11}, v{AGP}')
        smf(a, AV, Ar(0), wv(0, 0)); rdA(4)
        smf(a, AV+4, Ar(0), wv(0, 1)); rdA(5); a(f'v_xor_b32 v{T}, {3<<11}, v{AGP}')
        smf(a, AV, Ar(1), wv(1, 0)); rdA(6)
        smf(a, AV+4, Ar(1), wv(1, 1)); rdA(7)
    a.label(Lb('agB'))
    a('@assume_vm_empty')
    stamp(a, 'ag_ok')
    prefix(X, 'B')
    a(f's_branch {Lb("agJ")}')
    a.label(Lb('agA'))
    stamp(a, 'ag_ok')
    prefix(AO, 'A')
    a.label(Lb('agJ'))
    a(f'@vm_set 2 {vr(AO,8)} {vr(X,8)}')
    Areg = lambda sg: POOL+(sg-2)*4
    Q = lambda sg, t: smf(a, AQ+4*t, Areg(sg), wq(sg, t))
    K = lambda sg, t: smf(a, AK+4*t, Areg(sg), wk(sg, t))
    V = lambda sg, t: smf(a, AV+4*t, Areg(sg), wv(sg, t))
    stamp(a, 'j0')
    def rs_reset(t): a(f'buffer_store_dwordx4 {vr(X+12,4)}, v{RSR}, {WS}, s{sRST+t} offen')
    def dma(reg_off, lds, k):
        soff = sAGR if CFG.get('nodma') else reg_off
        if k % 4 == 0:
            a(f's_mov_b32 m0, {lds + k*1024}')
            if k: a(f's_add_u32 s{sT0}, s{soff}, 4096')
        so = sT0 if k >= 4 else soff
        a(f'buffer_load_dwordx4 v{L16}, {WS}, s{so} offen' + (f' offset:{(k & 3)*1024}' if k & 3 else '') + ' lds')
    def st4(src, soff, off, extra=''): a(f'buffer_store_dwordx4 {vr(src,4)}, v{L16}, {WS}, s{soff} offen offset:{off}{extra}')
    E = {}
    def ex(slot, fn): E.setdefault(slot, []).append(fn)
    def run(slot):
        for fn in E.get(slot, []): fn()
    def pf(k):
        so = sAGR if CFG.get('nopf') else sPF
        a(f'buffer_load_dword v{T}, {WS}, s{so} offen' + (' offset:64' if k & 1 else '') + ' lds')
    def pf0(tag):
        if flags:
            a(f"""
            s_add_u32 s{sT0}, s{sSTEP}, 1
            s_lshr_b32 s{sT0}, s{sT0}, 2
            s_min_u32 s{sT0}, s{sT0}, 15
            s_cmp_lt_u32 s{sT0}, s{sNRDY}
            s_cbranch_scc1 {tag}_grpok
            """)
            kv_wait(a, f'{tag}_kvw', sT0, T, X+10)
            a.label(f'{tag}_grpok')
        if CFG.get('pf'):
            a(f's_mov_b32 m0, {L.L_O + 2176 + (w-1)*256}')
            a(f'v_lshlrev_b32 v{T}, 3, v{L16}')
    def piece(p):
        reg, lds = (sKX, L.L_KX) if p < 8 else (sVX, L.L_VX)
        k = p & 7
        soff = sAGR if CFG.get('nodma') else reg
        a(f's_mov_b32 m0, {lds + (k & 4)*1024}')
        if k >= 4: a(f's_add_u32 s{sT0}, s{soff}, 4096')
        so = sT0 if k >= 4 else soff
        a(f'buffer_load_dwordx4 v{L16}, {WS}, s{so} offen' + (f' offset:{(k & 3)*1024}' if k & 3 else '') + ' lds')
    def kmc(hf, dst): rd128(a, dst, OR_, L.L_K + 128*hf)
    if w == 0:
        ex('Q40', lambda: mov(X+12, -1)); ex('Q41', lambda: mov(X+13, -1))
        ex('Q51', lambda: a(f'buffer_store_dwordx2 {vr(X+12,2)}, v{AGW}, {WS}, s{sAGWR} offen'))
    else:
        if pub and w == 1:
            ex('Q20', lambda: st4(X+8, sVM, 0, ' sc1')); ex('Q31', lambda: st4(X+12, sVM, 1024, ' sc1'))
        if pub and w == 3:
            ex('Q40', lambda: st4(X+8, sKM, 0, ' sc1')); ex('Q50', lambda: st4(X+12, sKM, 1024, ' sc1'))
        if not CFG.get('late_reset', 0):
            movs = ('Q50', 'Q51', 'Q60', 'Q61') if w != 3 else ('Q60', 'Q61', 'Q70', 'Q71')
            for i, sl in enumerate(movs): ex(sl, lambda i=i: mov(X+12+i, -1))
            rsl_ = {1: ('Q71', 'K41', 'V20'), 2: ('Q70', 'K31', 'K61'), 3: ('K21', 'K51')}[w]
            for i, sl in enumerate(rsl_): ex(sl, lambda i=i: rs_reset(i))
        ex('K20', lambda: pf0(f'C{w}'))
        if w == 3 and flags:
            def fch():
                a(f"""
                s_mov_b64 exec, 1
                v_mov_b32 v{X+8}, s{sNONCE}
                v_mov_b32 v{X+9}, 0
                buffer_store_dword v{X+8}, v{X+9}, {WS}, s{sFCH} offen sc1
                s_mov_b64 exec, -1
                s_add_u32 s{sFCH}, s{sFCH}, 128
                """)
            ex('K60', fch)
        slots = ['S00', 'S01', 'S02', 'S03', 'S10', 'S11', 'S12', 'S13', 'M0', 'M1', 'M2', 'M3', 'F0', 'F1', 'E0', 'E1']
        for p in range(16):
            if p % 3 == w - 1: ex(slots[p], lambda p=p: piece(p))
    Q(2, 0); rdwo(1, 0); run('Q20')
    Q(2, 1); rdwo(1, 1); run('Q21')
    Q(3, 0); run('Q30')
    Q(3, 1); run('Q31')
    stamp(a, 'j1')
    Q(4, 0); run('Q40')
    Q(4, 1); run('Q41')
    Q(5, 0); run('Q50')
    Q(5, 1); run('Q51')
    Q(6, 0); rd128(a, AO, AGP, L.L_VX); run('Q60')
    Q(6, 1); rd128(a, AO+4, AGP, L.L_VX+1024); run('Q61')
    Q(7, 0); run('Q70')
    Q(7, 1); run('Q71')
    stamp(a, 'j3')
    K(2, 0); run('K20')
    K(2, 1); run('K21'); add(AQ)
    K(3, 0); add(AQ+1)
    K(3, 1); rdkx(0); run('K31'); add(AQ+4)
    K(4, 0); rdkx(1); add(AQ+5)
    K(4, 1); rdkx(2); run('K41'); cvt(AQ, AQ, AQ+4)
    K(5, 0); rdkx(3); cvt(AQ+1, AQ+1, AQ+5)
    K(5, 1); wr32(AQ, L.L_Q); wr32(AQ+1, L.L_Q+L.QROW); run('K51')
    K(6, 0); rdkx(4); run('K60')
    K(6, 1); rdkx(5); run('K61')
    K(7, 0); rdkx(6)
    K(7, 1); rdkx(7)
    stamp(a, 'j5')
    V(2, 0); run('V20')
    V(2, 1); add(AK)
    V(3, 0); run('V30'); add(AK+1)
    V(3, 1); add(AK+4)
    V(4, 0); add(AK+5)
    V(4, 1); cvt(AK, AK, AK+4)
    V(5, 0); cvt(AK+1, AK+1, AK+5)
    V(5, 1); wr32(AK, L.L_K); wr32(AK+1, L.L_K+L.QROW)
    V(6, 0)
    V(6, 1)
    barrier(a, 'B2')
    V(7, 0); rdq(0); rdq(1)
    V(7, 1); rdq(2); rdq(3)
    if CFG['nsteps'] == 64 and pub:
        a(f's_cmp_eq_u32 s{sSTEP}, 63')
        a(f's_cbranch_scc1 {Lb("last")}')
    m, m2 = AK+4, AK+5
    stamp(a, 'j6')
    rdkm(0)
    SX(0, 0); rdkm(1); run('S00')
    SX(0, 1); rdkm(2); run('S01')
    SX(0, 2); rdkm(3); run('S02')
    SX(0, 3); rdwo(7, 0); run('S03')
    SX(1, 0); rdwo(7, 1); run('S10')
    SX(1, 1); run('S11')
    SX(1, 2); run('S12')
    SX(1, 3); rdwo(5, 0); run('S13')
    def SM(ks): mf(a, AK, KMB+4*ks, X+4*ks, '0' if ks == 0 else AK)
    stamp(a, 'j8')
    SM(0); rdwo(5, 1); run('M0'); a(f'v_max3_f32 v{m}, v{AQ}, v{AQ+1}, v{AQ+2}')
    SM(1); rdwo(2, 0); run('M1'); a(f'v_max3_f32 v{m2}, v{AQ+3}, v{AQ+4}, v{AQ+5}')
    SM(2); rdwo(2, 1); run('M2'); a(f'v_max3_f32 v{m}, v{m}, v{AQ+6}, v{AQ+7}')
    SM(3); rdwo(0, 0); run('M3')
    a(f'v_max_f32 v{m}, v{m}, v{m2}')
    stamp(a, 'sm_issued')
    rdwo(0, 1); rdwo(4, 0)
    for i in range(3): mov(X+4+i, f's{sONES}')
    a(f'v_max3_f32 v{m}, v{m}, v{AK}, v{AK+1}')
    a(f'v_mov_b32 v{m2}, v{m}')
    mov(X+7, f's{sONES}'); mov(AK+2, 0)
    run('F0')
    a(f'v_permlane32_swap_b32 v{m}, v{m2}')
    a(f'v_max_f32 v{m}, v{m}, v{m2}')
    a(f'v_mov_b32 v{m2}, v{m}')
    run('F1'); rdwo(4, 1)
    a(f'v_permlane16_swap_b32 v{m}, v{m2}')
    a(f'v_max_f32 v{m}, v{m}, v{m2}')
    a(f'v_mul_f32 v{m}, s{sC}, v{m}')
    stamp(a, 'max_done')
    rdwo(6, 0); rdwo(6, 1); rdwo(3, 0); rdwo(3, 1)
    S = [AQ+i for i in range(8)] + [AK, AK+1]
    for i, r in enumerate(S):
        a(f'v_fma_f32 v{r}, v{r}, s{sC}, -v{m}')
    run('E0')
    for i, r in enumerate(S):
        a(f'v_exp_f32 v{r}, v{r}')
        if i == 4: run('E1')
    stamp(a, 'exp_done')
    cvt(AK+4, AQ, AQ+1); cvt(AK+5, AQ+2, AQ+3); cvt(AK+6, AQ+4, AQ+5); cvt(AK+7, AQ+6, AQ+7)
    mf(a, AQ, AO, AK+4, '0')
    cvt(AK+3, AK, AK+1); cvt(AK, AK, AK+1)
    mf(a, AQ+4, AO+4, AK+4, '0')
    add(AV); add(AV+1)
    mf(a, X, X+4, AK+4, '0')
    add(AV+4); add(AV+5)
    mov(AK+1, 0)
    cvt(X+12, AV, AV+1); cvt(X+13, AV+4, AV+5)
    a(f'v_mfma_f32_16x16x16_bf16 {vr(X,4)}, {vr(X+4,2)}, {vr(AK,2)}, {vr(X,4)}')
    a(f'v_mfma_f32_16x16x16_bf16 {vr(AQ,4)}, {vr(X+12,2)}, {vr(AK,2)}, {vr(AQ,4)}')
    a(f'v_mfma_f32_16x16x16_bf16 {vr(AQ+4,4)}, {vr(X+12,2)}, {vr(AK+2,2)}, {vr(AQ+4,4)}')
    stamp(a, 'pv_issued')
    a(f'v_lshrrev_b32 v{T}, 1, v{L16}')
    mov(AK+4, 0); mov(AK+5, 0)
    mov(AK+6, 0); mov(AK+7, 0)
    a(f'v_rcp_f32 v{X}, v{X}')
    for i in range(4): a(f'v_pk_mul_f32 {vr(AQ+2*i,2)}, {vr(AQ+2*i,2)}, {vr(X,2)} op_sel_hi:[1,0]')
    for i in range(4): cvt(AQ+i, AQ+i, AQ+4+i)
    a(f'ds_write2_b32 v{OW}, v{AQ}, v{AQ+1} offset0:0 offset1:2')
    a(f'ds_write2_b32 v{OW}, v{AQ+2}, v{AQ+3} offset0:4 offset1:6')
    zero(a, 56, 8); zero(a, X, 8)
    barrier(a, 'B4')
    for ko in range(2):
        rd128(a, AO+4*ko, OR_, L.L_O+128*ko)
    if pub: a(f'ds_write_b64 v{T}, {vr(X+12,2)} offset:{L.L_Q + w*512}')
    zero(a, 40, 12)
    order = [4, 5, 6, 7, 0, 1, 2, 3]
    def st(t): a(f'buffer_store_dword v{oacc(t)}, v{RSW}, {WS}, s{sRSW} offen offset:{t*256}')
    for k, t in enumerate(order):
        smf(a, oacc(t), AO, wo(0, t))
        if k >= 3: st(order[k-3])
        if k >= 2: cvt(oacc(order[k-2]), oacc(order[k-2]), oacc(order[k-2])+1)
        smf(a, oacc(t), AO+4, wo(1, t))
        if k >= 1: add(oacc(order[k-1])); add(oacc(order[k-1])+1)
    st(order[5])
    cvt(oacc(order[6]), oacc(order[6]), oacc(order[6])+1)
    add(oacc(order[7])); add(oacc(order[7])+1)
    st(order[6])
    cvt(oacc(order[7]), oacc(order[7]), oacc(order[7])+1)
    st(order[7])
    stamp(a, 'out_stored')
    a('@assume_lg_empty')
    if w != 0 and CFG.get('late_reset', 0):
        for i in range(4): mov(X+8+i, -1)
        for i in range(3 if w < 3 else 2):
            a(f'buffer_store_dwordx4 {vr(X+8,4)}, v{RSR}, {WS}, s{sRST+i} offen')
    prefetch_wk(a, range(4, 8))
    if w == 0:
        RA = [oacc(t) for t in range(8)]; RB = [POOL+4*t for t in range(8)]
        DA, DB = X+8, X+12
        def rsl(R, t): a(f'buffer_load_dwordx4 {vr(R[t],4)}, v{RSR}, {WS}, s{sRSR+t} offen sc1')
        def sweep(R, D, ok):
            for t in range(8):
                a(f's_waitcnt vmcnt({15 - t})')
                mf(a, D, R[t], SEL, '0' if t == 0 else D)
                if t == 0: a(f'v_mov_b32 v{T}, v{R[0]}')
                else: a(f'v_max_u32 v{T}, v{T}, v{R[t]}')
            a(f'v_cmp_eq_u32 vcc, -1, v{T}')
            a(f's_cbranch_vccz {ok}')
            for t in range(8): rsl(R, t)
        for i in range(CFG.get('rs_delay', 0)): a('s_nop 15')
        for t in range(8): rsl(RA, t)
        for i in range(CFG.get('rs_gap', 0)): a('s_nop 15')
        for t in range(8): rsl(RB, t)
        a.label('C_rs')
        a('@assume_vm_empty')
        sweep(RA, DA, 'C_rsA')
        a('@assume_vm_empty')
        sweep(RB, DB, 'C_rsB')
        a(f"""
        s_cmp_eq_u32 s{sSPIN}, 0
        s_cbranch_scc1 C_rsA
        s_sub_u32 s{sSPIN}, s{sSPIN}, 1
        s_branch C_rs
        """)
        D = DA
        a.label('C_rsB')
        a('@assume_vm_empty')
        a('s_nop 3')
        a(f'v_cvt_pk_bf16_f32 v{D}, v{DB}, v{DB+1}')
        a(f'v_cvt_pk_bf16_f32 v{D+1}, v{DB+2}, v{DB+3}')
        a('s_branch C_rsJ')
        a.label('C_rsA')
        a(f'v_cvt_pk_bf16_f32 v{D}, v{D}, v{D+1}')
        a(f'v_cvt_pk_bf16_f32 v{D+1}, v{D+2}, v{D+3}')
        a.label('C_rsJ')
        stamp(a, 'rs_ok')
        a(f'buffer_store_dwordx2 {vr(D,2)}, v{AGW}, {WS}, s{sAGWR} offen')
        stamp(a, 'ag_pub')
        a('s_waitcnt lgkmcnt(8)')
        a('s_barrier')
        a(f's_xor_b32 s{sAGR}, s{sAGR}, 0x2000')
        if CFG.get('early_ag', 0):
            agl(AO)
            a('s_waitcnt vmcnt(3)')
        else:
            a('s_waitcnt vmcnt(1)')
        if dbg_mems:
            a(f'buffer_store_dwordx2 {vr(D,2)}, v{AGW}, {WS}, s{sMEMS} offen')
            a(f's_add_u32 s{sMEMS}, s{sMEMS}, 8192')
        prefetch_wk(a, range(0, 4))
        zero(a, 40, 24)
    else:
        prefetch_wk(a, range(0, 4))
        zero(a, 40, 24)
    ring = [sRSW] + ([sRSR+t for t in range(8)] if w == 0 else [sRST+t for t in range(3 if w < 3 else 2)])
    for r in ring:
        a(f's_add_u32 s{r}, s{r}, {L.RS_SLOT}')
        a(f's_bitset0_b32 s{r}, 21')
    if w != 0: a(f's_xor_b32 s{sAGR}, s{sAGR}, 0x2000')
    if w == 0: a(f's_xor_b32 s{sAGWR}, s{sAGWR}, 0x2000')
    if w != 0:
        a(f's_add_u32 s{sKX}, s{sKX}, 262144'); a(f's_add_u32 s{sVX}, s{sVX}, 262144')
    if w in (1, 3): a(f's_add_u32 s{sVM}, s{sVM}, 65536')
    if w == 3: a(f's_add_u32 s{sKM}, s{sKM}, 65536')
    a(f's_add_u32 s{sSTEP}, s{sSTEP}, 1')
    if w != 0:
        stamp(a, 'vmw')
        a('s_waitcnt vmcnt(0)')
        stamp(a, 'vm0')
        a('s_waitcnt lgkmcnt(8)')
        a('s_barrier')
    stamp(a, 'end')
    dump_stamps(a, w)
    a(f's_cmp_lt_u32 s{sSTEP}, {CFG["nsteps"]}')
    a(f'@loop_end chain{w}')
    a(f's_cbranch_scc1 {Lb("step")}')

def emit_chain(a):
    dbg_mems = CFG['dbg_mems']
    T2 = X
    emit_setup(a)
    a(f'''
    s_mov_b32 s{sSTEP}, 0
    s_mov_b32 s{sAGR}, {L.AG}
    s_lshl_b32 s{sT0}, s{sH}, 8
    s_add_u32 s{sAGRST}, s{sT0}, {L.AG}
    s_add_u32 s{sAGWR}, s{sT0}, {L.AG + 0x2000}
    s_add_u32 s{sMEMS}, s{sT0}, {L.MEMS + 8192}
    s_mul_i32 s{sT1}, s{sWV}, {L.RSW_STRIDE}
    s_mul_i32 s{sT0}, s{sH}, {L.RSH}
    s_add_u32 s{sT1}, s{sT1}, s{sT0}
    s_add_u32 s{sRSW}, s{sT1}, {L.RS}
    s_lshl_b32 s{sT0}, s{sH}, 13
    s_add_u32 s{sKX}, s{sT0}, {L.KX}
    s_add_u32 s{sVX}, s{sT0}, {L.VX}
    s_add_u32 s{sPF}, s{sT0}, {L.KX + 2*262144}
    s_cmp_eq_u32 s{sWV}, 2
    s_cselect_b32 s{sT1}, 0x1000000, 0
    s_add_u32 s{sPF}, s{sPF}, s{sT1}
    s_lshl_b32 s{sT0}, s{sH}, 11
    s_add_u32 s{sKM}, s{sT0}, {L.KM - 65536}
    s_lshl_b32 s{sT0}, s{sH}, 11
    s_add_u32 s{sVM}, s{sT0}, {L.VM - 65536}
    s_add_u32 s{sVML}, s{sT0}, {L.VM + 63*65536}
    ''')
    def rsr_setup(dst):
        a(f'''
        s_lshr_b32 s{sT0}, s{sH}, 3
        s_mul_i32 s{sT0}, s{sT0}, {L.RSW_STRIDE}
        s_and_b32 s{sT1}, s{sH}, 7
        s_lshl_b32 s{sT1}, s{sT1}, 8
        s_add_u32 s{sT0}, s{sT0}, s{sT1}
        ''')
        for t in range(8): a(f's_add_u32 s{dst+t}, s{sT0}, {L.RS + t*4*L.RSH}')
    a(f'''
    s_cmp_lg_u32 s{sWV}, 0
    s_cbranch_scc1 C_noinit
    ''')
    if CFG.get('flags'):
        a(f'''
        s_cmp_lg_u32 s{sH}, 0
        s_cbranch_scc1 C_nononce
        s_memrealtime {sr(sSAVE,2)}
        s_waitcnt lgkmcnt(0)
        s_or_b32 s{sT0}, s{sSAVE}, 1
        v_mov_b32 v{T}, {L.DBG_NONCE}
        v_mov_b32 v{T2}, s{sT0}
        global_store_dword v{T}, v{T2}, {sr(sDBG,2)} sc1
        ''')
        a.label('C_nononce')
    rsr_setup(sRSR)
    for i in range(4): a(f'v_mov_b32 v{X+12+i}, -1')
    for slot in range(4):
        for t in range(8):
            a(f's_add_u32 s{sT0}, s{sRSR+t}, {slot*L.RS_SLOT}')
            a(f'buffer_store_dwordx4 {vr(X+12,4)}, v{RSR}, {WS}, s{sT0} offen')
    a(f'buffer_store_dwordx2 {vr(X+12,2)}, v{AGW}, {WS}, s{sAGRST} offen')
    a(f'buffer_store_dwordx2 {vr(X+12,2)}, v{AGW}, {WS}, s{sAGWR} offen')
    def sig(a):
        a(f'''
        v_mov_b32 v{T}, 32
        v_mov_b32 v54, 1
        s_mov_b64 exec, 1
        global_atomic_add v{T}, v54, {sr(sDBG,2)}
        s_mov_b64 exec, -1
        ''')
    if not CFG.get('late_sig'):
        a('s_waitcnt vmcnt(0)'); sig(a)
    a.label('C_noinit')
    def late(a):
        if CFG.get('late_sig'):
            a(f'''
            s_cmp_lg_u32 s{sWV}, 0
            s_cbranch_scc1 C_nosig
            ''')
            sig(a)
            a.label('C_nosig')
        if CFG.get('flags'):
            get_nonce(a, 'C_nonce', 54, 55)
            a(f'''
            s_mov_b32 s{sNRDY}, 0
            s_mov_b32 s{sT0}, 0
            s_lshl_b32 s{sFCH}, s{sH}, 2
            s_add_u32 s{sFCH}, s{sFCH}, {L.F_CH - 256}
            ''')
            kv_wait(a, 'C_kv0', sT0, 54, 55)
        a(f'''
        s_cmp_lg_u32 s{sWV}, 1
        s_cbranch_scc1 C_nokx0
        ''')
        dma8(a, L.L_KX, sKX)
        a.label('C_nokx0')
        a(f'''
        s_cmp_lg_u32 s{sWV}, 2
        s_cbranch_scc1 C_novx0
        ''')
        dma8(a, L.L_VX, sVX)
        a.label('C_novx0')
        a(f'''
        s_add_u32 s{sKX}, s{sKX}, 262144
        s_add_u32 s{sVX}, s{sVX}, 262144
        ''')
    if CFG.get('late_polls'):
        emit_weights(a, late_hook=late)
    else:
        emit_weights(a)
        late(a)
    rsr_setup(sRSR)
    a(f'''
    s_mul_i32 s{sT0}, s{sWV}, {12*L.RSH}
    s_add_u32 s{sRST}, s{sRSR}, s{sT0}
    s_add_u32 s{sRST}, s{sRST}, {3*L.RS_SLOT - 12*L.RSH}
    s_add_u32 s{sRST+1}, s{sRST}, {4*L.RSH}
    s_add_u32 s{sRST+2}, s{sRST}, {8*L.RSH}
    ''')
    if 'tstamp' in HOOK: HOOK['tstamp'](a, 2, (24, 25))
    a(f'''
    s_cmp_lg_u32 s{sWV}, 0
    s_cbranch_scc1 C_nomem0
    ''')
    a.label('C_initwait')
    a(f'''
    v_mov_b32 v{T}, 32
    global_load_dword v{T2}, v{T}, {sr(sDBG,2)} sc1
    s_waitcnt vmcnt(0)
    v_cmp_gt_u32 vcc, 32, v{T2}
    s_cbranch_vccz C_initok
    s_cmp_eq_u32 s{sSPIN}, 0
    s_cbranch_scc1 C_initok
    s_sub_u32 s{sSPIN}, s{sSPIN}, 1
    s_branch C_initwait
    ''')
    a.label('C_initok')
    srd(a, 12, L.ARG['A_mem0'], 8192)
    lane(a, T2)
    a(f'''
    v_lshrrev_b32 v{T}, 4, v{T2}
    v_lshlrev_b32 v{T}, 1, v{T}
    v_and_b32 v{X+1}, 1, v{T2}
    v_add_u32 v{T}, v{T}, v{X+1}
    v_lshlrev_b32 v{T}, 10, v{T}
    v_bfe_u32 v{X+1}, v{T2}, 1, 2
    v_lshl_add_u32 v{T}, v{X+1}, 4, v{T}
    s_lshr_b32 s{sT0}, s{sH}, 3
    s_lshl_b32 s{sT0}, s{sT0}, 8
    s_and_b32 s{sT1}, s{sH}, 7
    s_lshl_b32 s{sT1}, s{sT1}, 1
    s_add_u32 s{sT0}, s{sT0}, s{sT1}
    ''')
    for i in range(4):
        a(f'buffer_load_ushort v{X+i}, v{T}, {sr(12,4)}, s{sT0} offen offset:{64*i}')
    a(f'''
    v_lshl_or_b32 v{X}, v{X+1}, 16, v{X}
    v_lshl_or_b32 v{X+1}, v{X+3}, 16, v{X+2}
    buffer_store_dwordx2 {vr(X,2)}, v{AGW}, {WS}, s{sAGRST} offen
    ''')
    if dbg_mems:
        a(f'''
        s_sub_u32 s{sT0}, s{sMEMS}, 8192
        buffer_store_dwordx2 {vr(X,2)}, v{AGW}, {WS}, s{sT0} offen
        ''')
    a.label('C_nomem0')
    a('s_waitcnt vmcnt(0) lgkmcnt(0)')
    a('s_barrier')
    a('@assume_drained')
    if 'tstamp' in HOOK: HOOK['tstamp'](a, 1, (24, 25))
    for w in range(1, 4):
        a(f's_cmp_eq_u32 s{sWV}, {w}')
        a(f's_cbranch_scc1 C_enter{w}')
    for w in range(4):
        a.label(f'C_enter{w}')
        a('@assume_drained')
        prefetch_wk(a, range(4, 8))
        prefetch_wk(a, range(0, 4))
        zero(a, 40, 24)
        if w == 0 and CFG.get('early_ag', 0):
            a(f'buffer_load_dwordx4 {vr(AO,4)}, v{AGP}, {WS}, s{sAGR} offen sc1')
            a(f'buffer_load_dwordx4 {vr(AO+4,4)}, v{AGP}, {WS}, s{sAGR} offen offset:1024 sc1')
        emit_step(a, w)
        if CFG['nsteps'] == 64 and not CFG.get('nopub'):
            a.label(f'C{w}_last')
            a('@assume_drained')
            a('s_waitcnt lgkmcnt(0)')
            a('s_nop 7')
            for r in (AV, AV+1, AV+4, AV+5): a(f'v_add_f32 v{r}, v{r}, v{r+2}')
            a(f'v_cvt_pk_bf16_f32 v{AV}, v{AV}, v{AV+1}')
            a(f'v_cvt_pk_bf16_f32 v{AV+1}, v{AV+4}, v{AV+5}')
            a(f'v_lshrrev_b32 v{T}, 1, v{L16}')
            a(f's_add_u32 s{sT0}, s{sVML}, {w*512}')
            a(f'buffer_store_dwordx2 {vr(AV,2)}, v{T}, {WS}, s{sT0} offen sc1')
            if w == 3:
                for hf in range(2): rd128(a, POOL+32+4*hf, OR_, L.L_K + 128*hf)
                a(f's_add_u32 s{sT0}, s{sKM}, 65536')
                for hf in range(2): a(f'buffer_store_dwordx4 {vr(POOL+32+4*hf,4)}, v{L16}, {WS}, s{sT0} offen offset:{hf*1024} sc1')
        a('s_waitcnt vmcnt(0)')
        a('s_barrier')
        if w == 3 and CFG.get('flags'):
            a(f'''
            s_mov_b64 exec, 1
            v_mov_b32 v{T}, s{sNONCE}
            v_mov_b32 v{X}, 0
            buffer_store_dword v{T}, v{X}, {WS}, s{sFCH} offen sc1
            buffer_store_dword v{T}, v{X}, {WS}, s{sFCH} offen offset:128 sc1
            s_mov_b64 exec, -1
            ''')
        if w < 3: a('s_branch C_exit')
    a.label('C_exit')
    if CFG['stamps']:
        a(f'''
        s_lshl_b32 s{sT0}, s{sH}, 2
        s_add_u32 s{sT0}, s{sT0}, s{sWV}
        s_lshl_b32 s{sT0}, s{sT0}, 7
        s_add_u32 s{sT0}, s{sT0}, {L.FLAGS + 0x10000}
        v_mov_b32 v{X}, 0
        v_mov_b32 v{T}, s{sSPIN}
        buffer_store_dword v{T}, v{X}, {WS}, s{sT0} offen offset:124
        ''')

HEADER = '''; @launch grid=(256,1,1) block=(256,1,1) lds=163840
.amdgcn_target "amdgcn-amd-amdhsa--gfx950"
.text
.globl {name}
.p2align 8
.type {name},@function
{name}:
'''
FOOTER = '''
.section .rodata,"a"
.p2align 6
.amdhsa_kernel {name}
  .amdhsa_next_free_vgpr 512
  .amdhsa_next_free_sgpr 102
  .amdhsa_accum_offset 256
  .amdhsa_group_segment_fixed_size 0
  .amdhsa_kernarg_size 152
  .amdhsa_user_sgpr_count 2
  .amdhsa_user_sgpr_kernarg_segment_ptr 1
  .amdhsa_system_sgpr_workgroup_id_x 1
.end_amdhsa_kernel
'''
NAME = 'concat_heads__memory_aug_recurrent_mem_tr__ssm_conv_s5__prompt_kernel'

def emit_elect(a):
    a(f'''
    s_cmp_ge_u32 s2, 256
    s_cbranch_scc1 L_end
    s_load_dwordx2 {sr(sDBG,2)}, s[0:1], {L.ARG['dbg']}
    s_getreg_b32 s3, hwreg(HW_REG_XCC_ID)
    s_and_b32 s3, s3, 7
    s_waitcnt lgkmcnt(0)
    ''')
    srd(a, S_WS, L.ARG['ws'], L.WS_BYTES)
    a(f'''
    v_lshrrev_b32 v1, 6, v0
    s_nop 0
    v_readfirstlane_b32 s{sWV}, v1
    v_cmp_eq_u32 vcc, 0, v0
    s_and_saveexec_b64 {sr(sSAVE,2)}, vcc
    s_cbranch_execz L_noticket
    s_lshl_b32 s{sT0}, s3, 2
    v_mov_b32 v1, s{sT0}
    v_mov_b32 v2, 1
    global_atomic_add v3, v1, v2, {sr(sDBG,2)} sc0
    s_waitcnt vmcnt(0)
    v_mov_b32 v1, 0
    ds_write_b32 v1, v3
    s_waitcnt lgkmcnt(0)
    ''')
    a.label('L_noticket')
    a(f'''
    s_mov_b64 exec, {sr(sSAVE,2)}
    s_barrier
    v_mov_b32 v1, 0
    ds_read_b32 v3, v1
    s_waitcnt lgkmcnt(0)
    v_readfirstlane_b32 s{sH}, v3
    s_barrier
    ''')

if __name__ == '__main__':
    import sys
    for arg in sys.argv[1:]:
        if arg == 'stamps': CFG['stamps'] = True
        elif arg.startswith('only='): CFG['only'] = arg[5:].split(',')
        elif '=' in arg:
            k, v = arg.split('='); CFG[k] = int(v)
    a = Asm()
    emit_elect(a)
    a(f'''
    s_cmp_lg_u32 s3, 0
    s_cbranch_scc1 L_end
    s_cmp_ge_u32 s{sH}, 32
    s_cbranch_scc1 L_end
    ''')
    emit_chain(a)
    a.label('L_end')
    a('s_endpgm')
    body = a.finalize()
    open('chain_test.s', 'w').write(HEADER.format(name=NAME) + body + FOOTER.format(name=NAME))
    print('instructions:', a.count(), ','.join(STAMPS), DUMPS)
```

```python
from asmlib import Asm
import layout as L
from gen_chain import vr, ar, sr, srd, WS, S_WS, sWV, sDBG, sT0, sT1, sT2, sT3, sPLO, sPHI

sTK = 16
sXW = 3
S_X = 12
S_M = 20
S_M2 = 24
S_OUT = 28
sG, sHD, sWO = 32, 33, 34
sDST = 35
sA, sB, sC_, sD = 42, 43, 44, 45
vL16, vXA, vWA, vT, vT2, vT3 = 1, 2, 3, 4, 5, 6
EP = 16

WST = dict(on=False, n=0)
def wstamp(a, i):
    if WST['on']: a.raw(f'    s_memtime s[{70+2*i}:{71+2*i}]')
def wdump(a, tag):
    if not WST['on']: return
    k = WST['n']; WST['n'] += 1
    a(f'''
    s_waitcnt lgkmcnt(0)
    s_lshl_b32 s{sT0}, s2, 2
    s_add_u32 s{sT0}, s{sT0}, s{sWV}
    s_lshl_b32 s{sT0}, s{sT0}, 7
    s_add_u32 s{sT0}, s{sT0}, {L.FLAGS + 0x40000 + k*32}
    v_mov_b32 v{vT2}, 0
    ''')
    for i in range(5):
        a(f'v_mov_b32 v{vT}, s{70+2*i}')
        a(f'buffer_store_dword v{vT}, v{vT2}, {WS}, s{sT0} offen offset:{4*i}')

def setup_lane(a):
    a(f'''
    v_and_b32 v{vT}, 63, v0
    v_lshlrev_b32 v{vL16}, 4, v{vT}
    s_mov_b32 s{sPLO}, 0x05040100
    s_mov_b32 s{sPHI}, 0x07060302
    ''')

XROW = 1040
def load_xtile(a, tok0_s, koff_bytes=0, row_bytes=1024):
    a(f'''
    s_lshl_b32 s{sT0}, s{sWV}, 5
    s_add_u32 s{sT1}, s{sT0}, s{tok0_s}
    s_mul_i32 s{sT1}, s{sT1}, {row_bytes}
    s_add_u32 s{sT1}, s{sT1}, {koff_bytes}
    s_mul_i32 s{sT0}, s{sT0}, {XROW}
    ''')
    for k in range(32):
        a(f's_add_u32 m0, s{sT0}, {k*XROW}')
        a(f's_add_u32 s{sT2}, s{sT1}, {k*row_bytes}')
        a(f'buffer_load_dwordx4 v{vL16}, {sr(S_X,4)}, s{sT2} offen lds')

def xtile_wait(a):
    a('s_waitcnt vmcnt(0)')
    a('s_barrier')

ACC = 128
NRAW = 5
WRAW = 16
WF = 96
vXR0, vXR1 = 8, 9
def accr(r, t): return ACC + (r*4+t)*4

def gemm128x64(a, nks, issue_w, conv_w, transposed, zero_acc=True, direct=False, pre_wait=None):
    raw = lambda ks: WRAW + (ks % NRAW)*16
    wf = (lambda ks: raw(ks)) if direct else (lambda ks: WF + (ks & 1)*16)
    xf = lambda ks: (ks & 1)*32
    a(f'''
    v_lshrrev_b32 v{vT}, 4, v{vL16}
    v_and_b32 v{vT2}, 15, v{vT}
    v_mul_u32_u24 v{vXR0}, {XROW}, v{vT2}
    v_lshrrev_b32 v{vT}, 4, v{vT}
    v_lshl_add_u32 v{vXR0}, v{vT}, 4, v{vXR0}
    v_add_u32 v{vXR1}, {64*XROW}, v{vXR0}
    ''')
    def xreads(ks): return [f'ds_read_b128 {ar(xf(ks)+4*r,4)}, v{vXR0 if r < 4 else vXR1} offset:{(r & 3)*16*XROW + ks*64}' for r in range(8)]
    AH = NRAW - 1
    for k0 in range(min(AH, nks)):
        for l in issue_w(k0, raw(k0)): a(l)
    if pre_wait: pre_wait(a)
    for l in xreads(0): a(l)
    for l in conv_w(raw(0), wf(0)): a(l)
    for ks in range(nks):
        ld = issue_w(ks+AH, raw(ks+AH)) if ks+AH < nks else []
        xr = xreads(ks+1) if ks+1 < nks else []
        cv = conv_w(raw(ks+1), wf(ks+1)) if ks+1 < nks else []
        chunks = []
        for l in ld:
            if l.startswith('s_') or not chunks: chunks.append([l])
            else: chunks[-1].append(l)
        k = 0
        for r in range(8):
            for t in range(4):
                acc = vr(accr(r, t), 4)
                A, B = ar(xf(ks)+4*r, 4), vr(wf(ks)+4*t, 4)
                if transposed: A, B = B, A
                c = '0' if (ks == 0 and zero_acc) else acc
                a(f'v_mfma_f32_16x16x32_bf16 {acc}, {A}, {B}, {c}')
                if k % 4 == 1 and xr: a(xr.pop(0))
                if k % 4 == 3 and chunks:
                    for l in chunks.pop(0): a(l)
                if k >= 8 and k % 4 in (0, 2) or k >= 24:
                    if cv: a(cv.pop(0))
                    if cv and k % 4 == 0: a(cv.pop(0))
                k += 1
        for c_ in chunks:
            for l in c_: a(l)
        for l in xr + cv: a(l)

def w_ncontig(srd_reg):
    def issue(ks, raw):
        out = []
        for j in range(8):
            out.append(f's_add_u32 s{sT0}, s{sWO}, {(32*ks+j)*8192}')
            out.append(f'buffer_load_dwordx2 {vr(raw+2*j,2)}, v{vWA}, {sr(srd_reg,4)}, s{sT0} offen')
        return out
    def conv(raw, wf):
        out = []
        for t in range(4):
            for q in range(4):
                r0, r1 = raw + 2*(2*q) + (t >> 1), raw + 2*(2*q+1) + (t >> 1)
                out.append(f'v_perm_b32 v{wf+4*t+q}, v{r1}, v{r0}, s{sPHI if t & 1 else sPLO}')
        return out
    return issue, conv

def epi_kq(a, base_s):
    for r in range(8):
        for u in range(2):
            b = EP + ((r*2+u) % 4)*4
            for dq in range(4):
                i = 2*u + (dq >> 1); t = 2*(dq & 1)
                a(f'v_cvt_pk_bf16_f32 v{b+dq}, v{accr(r,t)+i}, v{accr(r,t+1)+i}')
            a(f's_add_u32 s{sT0}, s{base_s}, {(r >> 1)*262144 + (r & 1)*4096 + u*1024}')
            a(f'buffer_store_dwordx4 {vr(b,4)}, v{vL16}, {WS}, s{sT0} offen sc1')

def epi_v(a, base_s):
    n = 0
    for sg in range(4):
        for t in range(4):
            b = EP + (n % 4)*4; n += 1
            for dq in range(4):
                r = 2*sg + (dq >> 1); i = 2*(dq & 1)
                a(f'v_cvt_pk_bf16_f32 v{b+dq}, v{accr(r,t)+i}, v{accr(r,t)+i+1}')
            a(f's_add_u32 s{sT0}, s{base_s}, {sg*262144 + t*1024}')
            a(f'buffer_store_dwordx4 {vr(b,4)}, v{vL16}, {WS}, s{sT0} offen sc1')

def emit_p_task(a, tag, isq):
    wstamp(a, 0)
    a(f's_lshl_b32 s{sA}, s{sG}, 7')
    load_xtile(a, sA)
    wstamp(a, 1)
    a(f'''
    v_and_b32 v{vT}, 63, v0
    v_lshrrev_b32 v{vT2}, 4, v{vT}
    v_lshlrev_b32 v{vWA}, 16, v{vT2}
    v_and_b32 v{vT2}, 15, v{vT}
    v_lshl_add_u32 v{vWA}, v{vT2}, 3, v{vWA}
    s_and_b32 s{sB}, s{sWV}, 1
    s_lshr_b32 s{sC_}, s{sWV}, 1
    ''')
    if isq:
        a(f'''
        s_lshl_b32 s{sD}, s{sHD}, 1
        s_add_u32 s{sD}, s{sD}, s{sC_}
        ''')
    else:
        a(f's_mov_b32 s{sD}, s{sHD}')
    a(f'''
    s_lshl_b32 s{sWO}, s{sD}, 8
    s_lshl_b32 s{sT0}, s{sB}, 7
    s_add_u32 s{sWO}, s{sWO}, s{sT0}
    s_lshl_b32 s{sDST}, s{sG}, 20
    s_lshl_b32 s{sT0}, s{sD}, 13
    s_add_u32 s{sDST}, s{sDST}, s{sT0}
    ''')
    if isq:
        srd(a, S_M, L.ARG['A_Wq'], 4194304)
        a(f'''
        s_lshl_b32 s{sT0}, s{sB}, 11
        s_add_u32 s{sDST}, s{sDST}, s{sT0}
        s_add_u32 s{sDST}, s{sDST}, {L.QX}
        ''')
        iss, cv = w_ncontig(S_M)
        gemm128x64(a, 16, iss, cv, True, pre_wait=xtile_wait)
        epi_kq(a, sDST)
    else:
        a(f'''
        s_cmp_eq_u32 s{sC_}, 1
        s_cbranch_scc1 {tag}_v
        ''')
        srd(a, S_M, L.ARG['A_Wk'], 4194304)
        a(f'''
        s_lshl_b32 s{sT0}, s{sB}, 11
        s_add_u32 s{sDST}, s{sDST}, s{sT0}
        s_add_u32 s{sDST}, s{sDST}, {L.KX}
        ''')
        iss, cv = w_ncontig(S_M)
        gemm128x64(a, 16, iss, cv, True, pre_wait=xtile_wait)
        wstamp(a, 2)
        epi_kq(a, sDST)
        a(f's_branch {tag}_done')
        a.label(f'{tag}_v')
        a('@assume_drained')
        srd(a, S_M, L.ARG['A_Wv'], 4194304)
        a(f'''
        s_lshl_b32 s{sT0}, s{sB}, 12
        s_add_u32 s{sDST}, s{sDST}, s{sT0}
        s_add_u32 s{sDST}, s{sDST}, {L.VX}
        ''')
        gemm128x64(a, 16, iss, cv, False, pre_wait=xtile_wait)
        epi_v(a, sDST)
        a.label(f'{tag}_done')
    wstamp(a, 3)
    a('s_waitcnt vmcnt(0) lgkmcnt(0)')
    a('s_barrier')
    wstamp(a, 4)
    wdump(a, tag)
    a('@assume_drained')

if __name__ == '__main__':
    import sys
    from gen_chain import HEADER, FOOTER, NAME, emit_elect, sH
    WST['on'] = 'stamps' in sys.argv
    a = Asm()
    emit_elect(a)
    setup_lane(a)
    srd(a, S_X, L.ARG['A_x'], 2097152)
    for rnd in range(2):
        a(f'''
        s_add_u32 s{sT0}, s2, {256*rnd}
        s_lshr_b32 s{sG}, s{sT0}, 5
        s_and_b32 s{sHD}, s{sT0}, 31
        ''')
        emit_p_task(a, f'P{rnd}', False)
    a(f'''
    s_lshr_b32 s{sG}, s2, 4
    s_and_b32 s{sHD}, s2, 15
    ''')
    emit_p_task(a, 'PQ', True)
    a.label('L_end')
    a('s_endpgm')
    body = a.finalize()
    open('p_test.s', 'w').write(HEADER.format(name=NAME) + body + FOOTER.format(name=NAME))
    print('instructions', a.count())

sSEG = 46
sMK = 54
sCC = 62
QF, KF, KMF, VF, VMF = 64, 96, 128, 144, 176
SX0, SX1, SM_, PX, PB0, PB1, ONE, TM = 184, 188, 192, 196, 200, 202, 204, 208

def attn_setup(a):
    a(f'''
    v_and_b32 v{vT}, 63, v0
    v_and_b32 v{vT2}, 15, v{vT}
    v_lshrrev_b32 v{vT}, 4, v{vT}
    v_lshlrev_b32 v{vT}, 2, v{vT}
    s_mov_b32 s{sCC}, 0x3e0293ee
    ''')
    for i in range(4):
        a(f'v_add_u32 v{vT3}, {i}, v{vT}')
        a(f'v_cmp_le_u32 {sr(sMK+2*i,2)}, v{vT3}, v{vT2}')
    for i in range(4): a(f'v_mov_b32 v{ONE+i}, 0x3f803f80')

def attn_loads_pre(a):
    a(f'''
    s_lshl_b32 s{sA}, s{sSEG}, 5
    s_add_u32 s{sA}, s{sA}, s{sHD}
    s_lshl_b32 s{sB}, s{sA}, 13
    ''')
    for nm, reg, base in (('q', QF, L.QX), ('k', KF, L.KX), ('v', VF, L.VX)):
        a(f's_add_u32 s{sT0}, s{sB}, {base}')
        a(f's_add_u32 s{sT1}, s{sB}, {base+4096}')
        for f in range(8):
            a(f'buffer_load_dwordx4 {vr(reg+4*f,4)}, v{vL16}, {WS}, s{sT0 if f < 4 else sT1} offen offset:{(f&3)*1024}')

def attn_loads_post(a):
    a(f'''
    s_lshl_b32 s{sT0}, s{sA}, 11
    s_add_u32 s{sT1}, s{sT0}, {L.VM}
    s_add_u32 s{sT0}, s{sT0}, {L.KM}
    v_lshrrev_b32 v{vT}, 1, v{vL16}
    v_and_b32 v{vT2}, 0xffffffdf, v{vL16}
    v_or_b32 v{vT3}, 32, v{vL16}
    ''')
    for ks in range(4):
        a(f'buffer_load_dwordx4 {vr(KMF+4*ks,4)}, v{vT3 if ks & 1 else vT2}, {WS}, s{sT0} offen offset:{(ks >> 1)*1024}')
    for w in range(4):
        a(f'buffer_load_dwordx2 {vr(VMF+2*w,2)}, v{vT}, {WS}, s{sT1} offen offset:{w*512}')

def attn_compute(a):
    M = 'v_mfma_f32_16x16x32_bf16'; M16 = 'v_mfma_f32_16x16x16_bf16'
    for u in range(2):
        for ks in range(4):
            c = '0' if ks == 0 else vr(SX0, 4)
            a(f'{M} {vr(SX0,4)}, {vr(KF+4*ks,4)}, {vr(QF+16*u+4*ks,4)}, {c}')
            if u == 1:
                c = '0' if ks == 0 else vr(SX1, 4)
                a(f'{M} {vr(SX1,4)}, {vr(KF+16+4*ks,4)}, {vr(QF+16*u+4*ks,4)}, {c}')
        for ks in range(4):
            c = '0' if ks == 0 else vr(SM_, 4)
            a(f'{M} {vr(SM_,4)}, {vr(KMF+4*ks,4)}, {vr(QF+16*u+4*ks,4)}, {c}')
        dg = SX0 if u == 0 else SX1
        a(f'v_mov_b32 v{TM}, 0xf149f2ca')
        for i in range(4):
            a(f'v_cndmask_b32 v{dg+i}, v{TM}, v{dg+i}, {sr(sMK+2*i,2)}')
        S = [SX0+i for i in range(4)] + ([SX1+i for i in range(4)] if u == 1 else []) + [SM_, SM_+1]
        m, m2 = TM, TM+1
        a(f'v_max3_f32 v{m}, v{S[0]}, v{S[1]}, v{S[2]}')
        rest = S[3:]
        while len(rest) >= 2:
            a(f'v_max3_f32 v{m}, v{m}, v{rest[0]}, v{rest[1]}'); rest = rest[2:]
        if rest: a(f'v_max_f32 v{m}, v{m}, v{rest[0]}')
        a(f'''
        v_mov_b32 v{m2}, v{m}
        v_permlane32_swap_b32 v{m}, v{m2}
        v_max_f32 v{m}, v{m}, v{m2}
        v_mov_b32 v{m2}, v{m}
        v_permlane16_swap_b32 v{m}, v{m2}
        v_max_f32 v{m}, v{m}, v{m2}
        v_mul_f32 v{m}, s{sCC}, v{m}
        ''')
        for r in S: a(f'v_fma_f32 v{r}, v{r}, s{sCC}, -v{m}')
        for r in S: a(f'v_exp_f32 v{r}, v{r}')
        a(f'v_cvt_pk_bf16_f32 v{PX}, v{SX0}, v{SX0+1}')
        a(f'v_cvt_pk_bf16_f32 v{PX+1}, v{SX0+2}, v{SX0+3}')
        if u == 1:
            a(f'v_cvt_pk_bf16_f32 v{PX+2}, v{SX1}, v{SX1+1}')
            a(f'v_cvt_pk_bf16_f32 v{PX+3}, v{SX1+2}, v{SX1+3}')
        else:
            a(f'v_mov_b32 v{PX+2}, 0'); a(f'v_mov_b32 v{PX+3}, 0')
        a(f'v_cvt_pk_bf16_f32 v{PB0}, v{SM_}, v{SM_+1}')
        a(f'v_mov_b32 v{PB0+1}, 0')
        a(f'v_mov_b32 v{PB1}, 0')
        a(f'v_mov_b32 v{PB1+1}, v{PB0}')
        for f in range(8):
            a(f'{M} {ar(4*f,4)}, {vr(VF+4*f,4)}, {vr(PX,4)}, 0')
        a(f'{M} {ar(32,4)}, {vr(ONE,4)}, {vr(PX,4)}, 0')
        for f in range(8):
            hf, t = f >> 2, f & 3
            w = 2*hf + (t >> 1)
            a(f'{M16} {ar(4*f,4)}, {vr(VMF+2*w,2)}, {vr(PB1 if t & 1 else PB0,2)}, {ar(4*f,4)}')
        a(f'{M16} {ar(32,4)}, {vr(ONE,2)}, {vr(PB0,2)}, {ar(32,4)}')
        a(f'v_accvgpr_read_b32 v{TM}, a32')
        a(f'v_rcp_f32 v{TM}, v{TM}')
        a(f'''
        s_lshl_b32 s{sT0}, s{sA}, 13
        s_add_u32 s{sT0}, s{sT0}, {L.OX + u*4096}
        ''')
        n = 0
        for hf in range(2):
            for up in range(2):
                b = TM + 4 + (n % 2)*8; n += 1
                for dq in range(4):
                    i = 2*up + (dq >> 1); t = 2*(dq & 1)
                    a(f'v_accvgpr_read_b32 v{b+4}, a{(4*hf+t)*4+i}')
                    a(f'v_accvgpr_read_b32 v{b+5}, a{(4*hf+t+1)*4+i}')
                    a(f'v_mul_f32 v{b+4}, v{b+4}, v{TM}')
                    a(f'v_mul_f32 v{b+5}, v{b+5}, v{TM}')
                    a(f'v_cvt_pk_bf16_f32 v{b+dq}, v{b+4}, v{b+5}')
                a(f'buffer_store_dwordx4 {vr(b,4)}, v{vL16}, {WS}, s{sT0} offen offset:{(2*hf+up)*1024} sc1')

def gen_attn_test():
    from gen_chain import HEADER, FOOTER, NAME, emit_elect
    a = Asm()
    emit_elect(a)
    setup_lane(a)
    attn_setup(a)
    for k in range(2):
        a(f'''
        s_lshl_b32 s{sT0}, s2, 2
        s_add_u32 s{sT0}, s{sT0}, s{sWV}
        s_add_u32 s{sT0}, s{sT0}, {1024*k}
        s_lshr_b32 s{sSEG}, s{sT0}, 5
        s_and_b32 s{sHD}, s{sT0}, 31
        ''')
        attn_loads_pre(a); attn_loads_post(a); attn_compute(a)
    a('s_waitcnt vmcnt(0)')
    a.label('L_end')
    a('s_endpgm')
    body = a.finalize()
    open('a_test.s', 'w').write(HEADER.format(name=NAME) + body + FOOTER.format(name=NAME))
    print('attn instructions', a.count())
gen_attn_test() if __name__ == '__main__' else None

sCB, sUN = 47, 48
OF = 64
OACC = 192
OTM = 200

def oproj_load_weights(a):
    srd(a, S_M, L.ARG['A_Wo'], 4194304)
    a(f'''
    v_and_b32 v{vT}, 63, v0
    v_lshrrev_b32 v{vT2}, 4, v{vT}
    v_lshlrev_b32 v{vWA}, 14, v{vT2}
    v_and_b32 v{vT2}, 15, v{vT}
    v_lshl_add_u32 v{vWA}, v{vT2}, 2, v{vWA}
    s_lshl_b32 s{sWO}, s{sWV}, 20
    s_lshl_b32 s{sT0}, s{sCB}, 6
    s_add_u32 s{sWO}, s{sWO}, s{sT0}
    ''')
    groups = [(hh, ks) for hh in range(8) for ks in range(4)]
    RAW = 64; NB = 7
    def issue(gi):
        hh, ks = groups[gi]
        for j in range(8):
            e = 64*(ks >> 1) + 8*(ks & 1) + j
            a(f's_add_u32 s{sT0}, s{sWO}, {hh*131072 + e*1024}')
            a(f'buffer_load_dword v{RAW+(gi % NB)*8+j}, v{vWA}, {sr(S_M,4)}, s{sT0} offen')
    def proc(gi):
        hh, ks = groups[gi]
        b = RAW+(gi % NB)*8
        for t in range(2):
            for q in range(4):
                a(f'v_perm_b32 v{vT+(q&1)}, v{b+2*q+1}, v{b+2*q}, s{sPHI if t else sPLO}')
                a(f'v_accvgpr_write_b32 a{((hh*4+ks)*2+t)*4+q}, v{vT+(q&1)}')
    for gi in range(NB-1): issue(gi)
    for gi in range(32):
        proc(gi)
        if gi+NB-1 < 32: issue(gi+NB-1)

def oproj_unit_loads(a):
    a(f'''
    s_lshr_b32 s{sT0}, s{sUN}, 1
    s_lshl_b32 s{sT0}, s{sT0}, 18
    s_and_b32 s{sT1}, s{sUN}, 1
    s_lshl_b32 s{sT1}, s{sT1}, 12
    s_add_u32 s{sT0}, s{sT0}, s{sT1}
    s_lshl_b32 s{sT1}, s{sWV}, 16
    s_add_u32 s{sT0}, s{sT0}, s{sT1}
    s_add_u32 s{sA}, s{sT0}, {L.OX}
    ''')
    for hh in range(8):
        a(f's_add_u32 s{sT0}, s{sA}, {hh*8192}')
        for ks in range(4):
            a(f'buffer_load_dwordx4 {vr(OF+(hh*4+ks)*4,4)}, v{vL16}, {WS}, s{sT0} offen offset:{ks*1024}')

def oproj_unit_compute(a, par, tag):
    M = 'v_mfma_f32_16x16x32_bf16'
    for f in range(32):
        for t in range(2):
            c = '0' if f == 0 else vr(OACC+4*t, 4)
            a(f'{M} {vr(OACC+4*t,4)}, {ar((f*2+t)*4,4)}, {vr(OF+4*f,4)}, {c}')
    lds = par*8192
    a(f'''
    s_lshl_b32 s{sT0}, s{sWV}, 11
    v_lshlrev_b32 v{vT}, 1, v{vL16}
    v_add_u32 v{vT}, s{sT0}, v{vT}
    ds_write_b128 v{vT}, {vr(OACC,4)} offset:{lds}
    ds_write_b128 v{vT}, {vr(OACC+4,4)} offset:{lds+16}
    s_waitcnt lgkmcnt(0)
    s_barrier
    s_cmp_lg_u32 s{sWV}, 0
    s_cbranch_scc1 {tag}_skip
    v_lshlrev_b32 v{vT}, 1, v{vL16}
    ''')
    for w in range(1, 4):
        a(f'ds_read_b128 {vr(OTM+8*(w-1),4)}, v{vT} offset:{lds+w*2048}')
        a(f'ds_read_b128 {vr(OTM+8*(w-1)+4,4)}, v{vT} offset:{lds+w*2048+16}')
    for w in range(1, 4):
        for i in range(8): a(f'v_add_f32 v{OACC+i}, v{OACC+i}, v{OTM+8*(w-1)+i}')
    for i in range(4):
        a(f'v_cvt_pk_bf16_f32 v{OTM+i}, v{OACC+i}, v{OACC+4+i}')
    for i in range(4):
        a(f'v_lshlrev_b32 v{OTM+8+2*i}, 16, v{OTM+i}')
        a(f'v_and_b32 v{OTM+9+2*i}, 0xffff0000, v{OTM+i}')
    a(f'''
    v_lshrrev_b32 v{vT}, 4, v{vL16}
    v_and_b32 v{vT2}, 15, v{vT}
    v_lshlrev_b32 v{vT2}, 12, v{vT2}
    v_lshrrev_b32 v{vT}, 4, v{vT}
    v_lshl_add_u32 v{vT2}, v{vT}, 5, v{vT2}
    s_lshl_b32 s{sT0}, s{sUN}, 16
    s_lshl_b32 s{sT1}, s{sCB}, 7
    s_add_u32 s{sT0}, s{sT0}, s{sT1}
    buffer_store_dwordx4 {vr(OTM+8,4)}, v{vT2}, {sr(S_OUT,4)}, s{sT0} offen
    buffer_store_dwordx4 {vr(OTM+12,4)}, v{vT2}, {sr(S_OUT,4)}, s{sT0} offen offset:16
    ''')
    a.label(f'{tag}_skip')
    a('@assume_lg_empty')

def gen_o_test():
    from gen_chain import HEADER, FOOTER, NAME, emit_elect
    a = Asm()
    emit_elect(a)
    setup_lane(a)
    srd(a, S_OUT, L.ARG['out'], 2048*1024*4)
    a(f'''
    s_and_b32 s{sCB}, s2, 15
    s_lshr_b32 s{sUN}, s2, 4
    ''')
    oproj_load_weights(a)
    for k in range(8):
        oproj_unit_loads(a)
        oproj_unit_compute(a, k & 1, f'O{k}')
        a(f's_add_u32 s{sUN}, s{sUN}, 16')
    a('s_waitcnt vmcnt(0)')
    a.label('L_end')
    a('s_endpgm')
    body = a.finalize()
    open('o_test.s', 'w').write(HEADER.format(name=NAME) + body + FOOTER.format(name=NAME))
    print('oproj instructions', a.count())
gen_o_test() if __name__ == '__main__' else None

S_BX = 12
def s0_task(a, tag):
    a(f'''
    s_cmp_ge_u32 s{sA}, 32
    s_cbranch_scc1 {tag}_c
    s_lshr_b32 s{sB}, s{sA}, 4
    s_lshl_b32 s{sT0}, s{sB}, 3
    s_add_u32 s{sT0}, s{sT0}, {L.ARG['B_B_re']}
    s_load_dwordx2 {sr(S_X,2)}, s[0:1], s{sT0}
    s_waitcnt lgkmcnt(0)
    s_and_b32 s{S_X+1}, s{S_X+1}, 0xffff
    s_mov_b32 s{S_X+2}, 524288
    s_mov_b32 s{S_X+3}, 0x20000
    s_and_b32 s{sC_}, s{sA}, 15
    ''')
    a(f'''
    s_lshl_b32 s{sT0}, s{sWV}, 3
    s_lshl_b32 s{sT1}, s{sC_}, 5
    s_add_u32 s{sT1}, s{sT1}, s{sT0}
    s_lshl_b32 s{sT1}, s{sT1}, 10
    s_mul_i32 s{sT0}, s{sT0}, {XROW}
    ''')
    for k in range(8):
        a(f's_add_u32 m0, s{sT0}, {k*XROW}')
        a(f's_add_u32 s{sT2}, s{sT1}, {k*1024}')
        a(f'buffer_load_dwordx4 v{vL16}, {sr(S_X,4)}, s{sT2} offen lds')
    a(f'''
    v_lshrrev_b32 v{vT}, 4, v{vL16}
    v_and_b32 v{vT2}, 15, v{vT}
    v_mul_u32_u24 v{vXA}, {XROW}, v{vT2}
    v_lshrrev_b32 v{vT}, 4, v{vT}
    v_lshl_add_u32 v{vXA}, v{vT}, 4, v{vXA}
    s_waitcnt vmcnt(0)
    s_barrier
    ''')
    a(f'''
    s_lshr_b32 s{sT0}, s{sWV}, 1
    s_mul_i32 s{sT1}, s{sT0}, {16*XROW}
    s_and_b32 s{sT2}, s{sWV}, 1
    s_lshl_b32 s{sT3}, s{sT2}, 9
    s_add_u32 s{sT1}, s{sT1}, s{sT3}
    v_add_u32 v{vXA}, s{sT1}, v{vXA}
    s_lshl_b32 s{sD}, s{sA}, 1
    s_add_u32 s{sD}, s{sD}, s{sT0}
    s_lshl_b32 s{sD}, s{sD}, 14
    s_lshl_b32 s{sT2}, s{sT2}, 13
    s_add_u32 s{sD}, s{sD}, s{sT2}
    s_add_u32 s{sD}, s{sD}, {L.BF}
    ''')
    for k in range(8): a(f'ds_read_b128 {vr(16+4*k,4)}, v{vXA} offset:{k*64}')
    for k in range(8):
        a(f's_add_u32 s{sT0}, s{sD}, {k*1024}')
        a(f'buffer_store_dwordx4 {vr(16+4*k,4)}, v{vL16}, {WS}, s{sT0} offen sc1')
    a(f's_branch {tag}_done')
    a.label(f'{tag}_c')
    a('@assume_drained')
    srd(a, S_M, L.ARG['B_C_re'], 524288)
    srd(a, S_M2, L.ARG['B_C_im'], 524288)
    a(f'''
    s_sub_u32 s{sC_}, s{sA}, 32
    s_lshl_b32 s{sT0}, s{sWV}, 2
    s_lshl_b32 s{sT1}, s{sC_}, 4
    s_add_u32 s{sT1}, s{sT1}, s{sT0}
    s_lshl_b32 s{sT1}, s{sT1}, 10
    s_mul_i32 s{sT0}, s{sT0}, {XROW}
    ''')
    for m_ in range(2):
        for k in range(4):
            a(f's_add_u32 m0, s{sT0}, {(m_*16+k)*XROW}')
            a(f's_add_u32 s{sT2}, s{sT1}, {k*1024}')
            a(f'buffer_load_dwordx4 v{vL16}, {sr(S_M2 if m_ else S_M,4)}, s{sT2} offen lds')
    a(f'''
    v_lshrrev_b32 v{vT}, 4, v{vL16}
    v_and_b32 v{vT2}, 15, v{vT}
    v_mul_u32_u24 v{vXA}, {XROW}, v{vT2}
    v_lshrrev_b32 v{vT}, 4, v{vT}
    v_lshl_add_u32 v{vXA}, v{vT}, 3, v{vXA}
    s_lshl_b32 s{sT0}, s{sWV}, 8
    v_add_u32 v{vXA}, s{sT0}, v{vXA}
    s_lshl_b32 s{sD}, s{sC_}, 15
    s_lshl_b32 s{sT0}, s{sWV}, 13
    s_add_u32 s{sD}, s{sD}, s{sT0}
    s_add_u32 s{sD}, s{sD}, {L.CF}
    s_waitcnt vmcnt(0)
    s_barrier
    ''')
    for k in range(8):
        a(f'ds_read_b64 {vr(16+4*k,2)}, v{vXA} offset:{k*32}')
        a(f'ds_read_b64 {vr(16+4*k+2,2)}, v{vXA} offset:{16*XROW + k*32}')
    for k in range(8):
        b = 48 + 4*(k & 3)
        for q in range(4):
            a(f'v_perm_b32 v{b+q}, v{16+4*k+2+(q>>1)}, v{16+4*k+(q>>1)}, s{sPHI if q & 1 else sPLO}')
        a(f's_add_u32 s{sT0}, s{sD}, {k*1024}')
        a(f'buffer_store_dwordx4 {vr(b,4)}, v{vL16}, {WS}, s{sT0} offen sc1')
    a.label(f'{tag}_done')

def s1_task(a, tag):
    srd(a, S_X, L.ARG['B_x'], 2097152)
    a(f's_lshl_b32 s{sA}, s{sG}, 7')
    load_xtile(a, sA)
    a(f'''
    s_lshl_b32 s{sWO}, s{sCB}, 7
    s_lshl_b32 s{sT0}, s{sWV}, 5
    s_add_u32 s{sB}, s{sWO}, s{sT0}
    s_lshl_b32 s{sWO}, s{sB}, 10
    s_add_u32 s{sWO}, s{sWO}, {L.BF}
    ''')
    def issue(ks, raw):
        out = []
        for t in range(4):
            pb, c = t >> 1, t & 1
            out.append(f's_add_u32 s{sT0}, s{sWO}, {c*32*16384 + pb*16384 + ks*1024}')
            out.append(f'buffer_load_dwordx4 {vr(raw+4*t,4)}, v{vL16}, {WS}, s{sT0} offen')
        return out
    gemm128x64(a, 16, issue, lambda raw, wf: [], True, direct=True, pre_wait=xtile_wait)
    a(f'''
    v_lshrrev_b32 v{vT}, 4, v{vL16}
    v_and_b32 v{vT2}, 15, v{vT}
    v_lshlrev_b32 v{vT2}, 12, v{vT2}
    v_lshrrev_b32 v{vT}, 4, v{vT}
    v_lshl_add_u32 v{vT2}, v{vT}, 5, v{vT2}
    s_lshl_b32 s{sDST}, s{sG}, 19
    s_lshl_b32 s{sT0}, s{sB}, 3
    s_add_u32 s{sDST}, s{sDST}, s{sT0}
    s_add_u32 s{sDST}, s{sDST}, {L.UB}
    ''')
    n = 0
    for r in range(8):
        for pb in range(2):
            b = EP + (n % 4)*8; n += 1
            for i in range(4):
                a(f'v_mov_b32 v{b+2*i}, v{accr(r,2*pb)+i}')
                a(f'v_mov_b32 v{b+2*i+1}, v{accr(r,2*pb+1)+i}')
            a(f's_add_u32 s{sT0}, s{sDST}, {r*16*4096 + pb*128}')
            a(f'buffer_store_dwordx4 {vr(b,4)}, v{vT2}, {WS}, s{sT0} offen')
            a(f'buffer_store_dwordx4 {vr(b+4,4)}, v{vT2}, {WS}, s{sT0} offen offset:16')
    a('s_waitcnt vmcnt(0) lgkmcnt(0)')
    a('s_barrier')
    a('@assume_drained')

LR, LI, CR, CI, PR, PI, GR, GI, TA_, TB_, TC_, TD_ = range(8, 20)
vP8 = 20
UREG = 64
def s5_params(a):
    srd(a, S_M, L.ARG['B_Lambda_re'], 1024)
    srd(a, S_M2, L.ARG['B_Lambda_im'], 1024)
    srd(a, S_X, L.ARG['B_log_dt'], 1024)
    a(f'''
    s_lshl_b32 s{sT0}, s{sCB}, 8
    v_add_u32 v{vT}, s{sT0}, v0
    v_lshlrev_b32 v{vP8}, 3, v{vT}
    v_lshlrev_b32 v{vT}, 1, v{vT}
    buffer_load_ushort v{TA_}, v{vT}, {sr(S_M,4)}, 0 offen
    buffer_load_ushort v{TB_}, v{vT}, {sr(S_M2,4)}, 0 offen
    buffer_load_ushort v{TC_}, v{vT}, {sr(S_X,4)}, 0 offen
    v_lshlrev_b32 v{TA_}, 16, v{TA_}
    v_lshlrev_b32 v{TB_}, 16, v{TB_}
    v_lshlrev_b32 v{TC_}, 16, v{TC_}
    v_mul_f32 v{TC_}, 0x3fb8aa3b, v{TC_}
    v_exp_f32 v{TC_}, v{TC_}
    s_nop 0
    v_cvt_pk_bf16_f32 v{TC_}, v{TC_}, v{TC_}
    v_lshlrev_b32 v{TC_}, 16, v{TC_}
    v_mul_f32 v{TD_}, v{TC_}, v{TA_}
    v_mul_f32 v{GR}, v{TC_}, v{TB_}
    v_mul_f32 v{TD_}, 0x3fb8aa3b, v{TD_}
    v_exp_f32 v{TD_}, v{TD_}
    v_mul_f32 v{GR}, 0.15915494, v{GR}
    v_rndne_f32 v{GI}, v{GR}
    v_sub_f32 v{GR}, v{GR}, v{GI}
    v_cos_f32 v{LR}, v{GR}
    v_sin_f32 v{LI}, v{GR}
    s_nop 0
    v_mul_f32 v{LR}, v{LR}, v{TD_}
    v_mul_f32 v{LI}, v{LI}, v{TD_}
    v_add_f32 v{GR}, -1.0, v{LR}
    v_mul_f32 v{GI}, v{TA_}, v{TA_}
    v_fma_f32 v{GI}, v{TB_}, v{TB_}, v{GI}
    v_rcp_f32 v{GI}, v{GI}
    v_mul_f32 v{CR}, v{GR}, v{TA_}
    v_fma_f32 v{CR}, v{LI}, v{TB_}, v{CR}
    v_mul_f32 v{CI}, v{LI}, v{TA_}
    v_fma_f32 v{CI}, -v{GR}, v{TB_}, v{CI}
    v_mul_f32 v{CR}, v{CR}, v{GI}
    v_mul_f32 v{CI}, v{CI}, v{GI}
    v_mov_b32 v{PR}, v{LR}
    v_mov_b32 v{PI}, v{LI}
    ''')
    for k in range(6):
        a(f'''
        v_mul_f32 v{TA_}, v{PI}, v{PI}
        v_mul_f32 v{TB_}, v{PR}, v{PI}
        v_fma_f32 v{PR}, v{PR}, v{PR}, -v{TA_}
        v_add_f32 v{PI}, v{TB_}, v{TB_}
        ''')

def cstep(a, xr, xi, ur, ui):
    a(f'''
    v_fma_f32 v{TA_}, -v{xi}, v{GI}, v{ur}
    v_fma_f32 v{TB_}, v{xi}, v{GR}, v{ui}
    v_fma_f32 v{GR}, v{xr}, v{GR}, v{TA_}
    v_fma_f32 v{GI}, v{xr}, v{GI}, v{TB_}
    ''')

def u_loads(a, half):
    a(f'''
    s_lshl_b32 s{sA}, s{sG}, 18
    s_add_u32 s{sA}, s{sA}, {L.UB + half*32*4096}
    ''')
    for k in range(32):
        a(f's_add_u32 s{sT0}, s{sA}, {k*4096}')
        a(f'buffer_load_dwordx2 {vr(UREG+half*64+2*k,2)}, v{vP8}, {WS}, s{sT0} offen')

def s2_task(a):
    u_loads(a, 0)
    s5_params_done = True
    a(f'v_mov_b32 v{GR}, 0'); a(f'v_mov_b32 v{GI}, 0')
    for k in range(32):
        cstep(a, LR, LI, UREG+2*k, UREG+2*k+1)
        if k == 0: u_loads(a, 1)
    for k in range(32): cstep(a, LR, LI, UREG+64+2*k, UREG+64+2*k+1)
    a(f'''
    s_lshl_b32 s{sT0}, s{sG}, 12
    s_add_u32 s{sT0}, s{sT0}, {L.EB}
    v_mov_b32 v{TC_}, v{GR}
    v_mov_b32 v{TD_}, v{GI}
    buffer_store_dwordx2 {vr(TC_,2)}, v{vP8}, {WS}, s{sT0} offen sc1
    s_waitcnt vmcnt(0)
    ''')

def s3_task(a, tag):
    EREG = 192
    for c in range(31):
        a(f'buffer_load_dwordx2 {vr(EREG+2*c,2)}, v{vP8}, {WS}, s{sD} offen offset:{(c*4096) % 4096}') if False else None
    a(f's_mov_b32 s{sD}, {L.EB}')
    for c in range(31):
        a(f's_add_u32 s{sT0}, s{sD}, {c*4096}')
        a(f'buffer_load_dwordx2 {vr(EREG+2*c,2)}, v{vP8}, {WS}, s{sT0} offen')
    u_loads(a, 0)
    a(f'v_mov_b32 v{GR}, 0'); a(f'v_mov_b32 v{GI}, 0')
    a('s_waitcnt vmcnt(32)')
    for c in range(31):
        a(f's_cmp_le_u32 s{sG}, {c}')
        a(f's_cbranch_scc1 {tag}_carry')
        cstep(a, PR, PI, EREG+2*c, EREG+2*c+1)
    a.label(f'{tag}_carry')
    a(f'''
    v_lshrrev_b32 v{vT}, 1, v{vP8}
    s_lshl_b32 s{sB}, s{sG}, 17
    s_add_u32 s{sB}, s{sB}, {L.HB}
    ''')
    for half in range(2):
        for k in range(32):
            cstep(a, LR, LI, UREG+half*64+2*k, UREG+half*64+2*k+1)
            if half == 0 and k == 0: u_loads(a, 1)
            a(f'''
            v_mul_f32 v{TC_}, v{CR}, v{GR}
            v_mul_f32 v{TD_}, v{CR}, v{GI}
            v_fma_f32 v{TC_}, -v{CI}, v{GI}, v{TC_}
            v_fma_f32 v{TD_}, v{CI}, v{GR}, v{TD_}
            v_cvt_pk_bf16_f32 v{vT2}, v{TC_}, -v{TD_}
            s_add_u32 s{sT0}, s{sB}, {(half*32+k)*2048}
            buffer_store_dword v{vT2}, v{vT}, {WS}, s{sT0} offen
            ''')
    a('s_waitcnt vmcnt(0)')

def s4_task(a, tag):
    a(f'''
    s_add_u32 s{S_X}, s{S_WS}, {L.HB}
    s_addc_u32 s{S_X+1}, s{S_WS+1}, 0
    s_mov_b32 s{S_X+2}, {2048*2048}
    s_mov_b32 s{S_X+3}, 0x20000
    ''')
    a(f'''
    s_lshl_b32 s{sB}, s{sCB}, 8
    s_lshl_b32 s{sT0}, s{sWV}, 6
    s_add_u32 s{sB}, s{sB}, s{sT0}
    s_lshl_b32 s{sWO}, s{sB}, 11
    s_add_u32 s{sWO}, s{sWO}, {L.CF}
    ''')
    def mk_issue(kh):
        def issue(ks, raw):
            out = []
            for t in range(4):
                out.append(f's_add_u32 s{sT0}, s{sWO}, {t*32768 + (kh*16+ks)*1024}')
                out.append(f'buffer_load_dwordx4 {vr(raw+4*t,4)}, v{vL16}, {WS}, s{sT0} offen')
            return out
        return issue
    for kh in range(2):
        a(f's_lshl_b32 s{sA}, s{sG}, 7')
        if kh: a('s_barrier')
        load_xtile(a, sA, koff_bytes=kh*1024, row_bytes=2048)
        gemm128x64(a, 16, mk_issue(kh), lambda raw, wf: [], True, zero_acc=(kh == 0), direct=True, pre_wait=xtile_wait)
        a('s_waitcnt vmcnt(0) lgkmcnt(0)')
    srd(a, S_X, L.ARG['B_x'], 2097152)
    srd(a, S_M, L.ARG['B_Dskip'], 1024)
    a(f'''
    v_lshrrev_b32 v{vT}, 4, v{vL16}
    v_and_b32 v{vT2}, 15, v{vT}
    v_lshrrev_b32 v{vT}, 4, v{vT}
    v_lshlrev_b32 v{vXA}, 10, v{vT2}
    v_lshl_add_u32 v{vXA}, v{vT}, 3, v{vXA}
    v_lshlrev_b32 v{vWA}, 12, v{vT2}
    v_lshl_add_u32 v{vWA}, v{vT}, 4, v{vWA}
    v_lshlrev_b32 v{vT3}, 3, v{vT}
    s_lshl_b32 s{sA}, s{sG}, 7
    s_lshl_b32 s{sC_}, s{sA}, 10
    s_lshl_b32 s{sT0}, s{sB}, 1
    s_add_u32 s{sC_}, s{sC_}, s{sT0}
    s_lshl_b32 s{sD}, s{sA}, 12
    s_lshl_b32 s{sT0}, s{sB}, 2
    s_add_u32 s{sD}, s{sD}, s{sT0}
    s_add_u32 s{sD}, s{sD}, 2048
    s_lshl_b32 s{sWO}, s{sB}, 1
    ''')
    DS_ = 48
    for t in range(4):
        a(f's_add_u32 s{sT0}, s{sWO}, {t*32}')
        a(f'buffer_load_dwordx2 {vr(120+2*t,2)}, v{vT3}, {sr(S_M,4)}, s{sT0} offen')
    for t in range(4):
        for q in range(2):
            a(f'v_lshlrev_b32 v{DS_+4*t+2*q}, 16, v{120+2*t+q}')
            a(f'v_and_b32 v{DS_+4*t+2*q+1}, 0xffff0000, v{120+2*t+q}')
    XR = 64
    def xl(hf):
        for r in range(4*hf, 4*hf+4):
            for t in range(4):
                a(f's_add_u32 s{sT0}, s{sC_}, {r*16*1024 + t*32}')
                a(f'buffer_load_dwordx2 {vr(XR+hf*32+((r & 3)*4+t)*2,2)}, v{vXA}, {sr(S_X,4)}, s{sT0} offen')
    xl(0)
    n = 0
    for r in range(8):
        if r == 1:
            pass
        for t in range(4):
            b = EP + (n % 4)*8; n += 1
            x0 = XR+(r >> 2)*32+((r & 3)*4+t)*2 if False else XR + ((r >> 2) & 1)*0 + ((r & 3)*4+t)*2
            if r == 4 and t == 0:
                for rr in range(4, 8):
                    for tt in range(4):
                        a(f's_add_u32 s{sT0}, s{sC_}, {rr*16*1024 + tt*32}')
                        a(f'buffer_load_dwordx2 {vr(XR+((rr & 3)*4+tt)*2,2)}, v{vXA}, {sr(S_X,4)}, s{sT0} offen')
            for q in range(2):
                a(f'v_lshlrev_b32 v{b+4+2*q}, 16, v{x0+q}')
                a(f'v_and_b32 v{b+5+2*q}, 0xffff0000, v{x0+q}')
            for i in range(4): a(f'v_mul_f32 v{b+4+i}, v{b+4+i}, v{DS_+4*t+i}')
            for q in range(2): a(f'v_cvt_pk_bf16_f32 v{x0+q}, v{b+4+2*q}, v{b+5+2*q}')
            for q in range(2):
                a(f'v_lshlrev_b32 v{b+4+2*q}, 16, v{x0+q}')
                a(f'v_and_b32 v{b+5+2*q}, 0xffff0000, v{x0+q}')
            for i in range(4):
                a(f'v_fma_f32 v{b+i}, v{accr(r,t)+i}, 2.0, v{b+4+i}')
            a(f's_add_u32 s{sT0}, s{sD}, {r*16*4096 + t*64}')
            a(f'buffer_store_dwordx4 {vr(b,4)}, v{vWA}, {sr(S_OUT,4)}, s{sT0} offen')
    a('s_waitcnt vmcnt(0) lgkmcnt(0)')
    a('s_barrier')
    a('@assume_drained')

def gen_s5_test():
    from gen_chain import FOOTER, NAME, emit_elect
    names = ['s5a_kernel', 's5b_kernel', 's5c_kernel', 's5d_kernel']
    txt = ''.join(f'; @launch kernel={n} grid=(256,1,1) block=(256,1,1) lds=163840\n' for n in names)
    txt += '.amdgcn_target "amdgcn-amd-amdhsa--gfx950"\n.text\n'
    for idx, n in enumerate(names):
        a = Asm()
        a(f'''
        s_cmp_ge_u32 s2, {64 if idx < 3 else 32}
        s_cbranch_scc1 L_end{idx}
        v_lshrrev_b32 v1, 6, v0
        s_nop 0
        v_readfirstlane_b32 s{sWV}, v1
        ''')
        srd(a, S_WS, L.ARG['ws'], L.WS_BYTES)
        srd(a, S_OUT, L.ARG['out'], 2048*1024*4)
        setup_lane(a)
        if idx == 0:
            a(f's_lshr_b32 s{sG}, s2, 2\ns_and_b32 s{sCB}, s2, 3'); s1_task(a, 'S1')
        elif idx == 1:
            a(f's_lshr_b32 s{sG}, s2, 1\ns_and_b32 s{sCB}, s2, 1'); s5_params(a); s2_task(a)
        elif idx == 2:
            a(f's_lshr_b32 s{sG}, s2, 1\ns_and_b32 s{sCB}, s2, 1'); s5_params(a); s3_task(a, 'S3')
        else:
            a(f's_lshr_b32 s{sG}, s2, 1\ns_and_b32 s{sCB}, s2, 1'); s4_task(a, 'S4')
        a.label(f'L_end{idx}')
        a('s_endpgm')
        txt += f'.globl {n}\n.p2align 8\n.type {n},@function\n{n}:\n' + a.finalize()
    for n in names: txt += FOOTER.format(name=n)
    open('s5_test.s', 'w').write(txt)
    print('s5 test written')
gen_s5_test() if __name__ == '__main__' else None
```

```python
import sys
from asmlib import Asm
import layout as L
import gen_chain as C
from gen_chain import srd, sr, vr, sWV, sH, S_WS, WS, FOOTER, HEADER, NAME, emit_elect, sDBG, sNONCE, sSAVE, get_nonce, sT0, sT1, sT2, sT3
import gen_work as W
from gen_work import *

sXW, sTKT, sRND, sIDX, sSPINW, sKIND = 49, 16, 63, 64, 65, 66
sFL = 67

PROF = dict(on=False)
CFGM = {}
def tstamp(a, slot, vtmp=(4, 5)):
    if not PROF['on']: return
    lab = f'TS{tstamp.n}'; tstamp.n += 1
    a(f'''
    s_cmp_lg_u32 s{sWV}, 0
    s_cbranch_scc1 {lab}
    s_memrealtime s[98:99]
    s_waitcnt lgkmcnt(0)
    s_lshl_b32 s99, s2, 6
    s_add_u32 s99, s99, {L.FLAGS + 0x50000 + slot*4}
    v_mov_b32 v{vtmp[0]}, s98
    v_mov_b32 v{vtmp[1]}, 0
    buffer_store_dword v{vtmp[0]}, v{vtmp[1]}, {WS}, s99 offen
    ''')
    a.label(lab)
tstamp.n = 0

def set_flag_wg(a, off_s):
    a(f'''
    s_waitcnt vmcnt(0) lgkmcnt(0)
    s_barrier
    s_cmp_lg_u32 s{sWV}, 0
    ''')
    lab = f'SF{set_flag_wg.n}'; set_flag_wg.n += 1
    a(f's_cbranch_scc1 {lab}')
    set_flag_wave(a, off_s, drained=True)
    a.label(lab)
set_flag_wg.n = 0

def set_flag_wave(a, off_s, drained=False):
    if not drained: a('s_waitcnt vmcnt(0)')
    a(f'''
    s_mov_b64 exec, 1
    v_mov_b32 v{vT}, s{sNONCE}
    v_mov_b32 v{vT2}, 0
    buffer_store_dword v{vT}, v{vT2}, {WS}, s{off_s} offen sc1
    s_mov_b64 exec, -1
    ''')

SLEEP = dict(mul=1)
def wait_flags(a, off_s, n, sleep=8):
    sleep = min(127, sleep*SLEEP['mul'])
    lab = f'WF{wait_flags.n}'; wait_flags.n += 1
    a(f'''
    v_lshrrev_b32 v{vT}, 2, v{vL16}
    v_min_u32 v{vT}, {4*(n-1)}, v{vT}
    ''')
    a.label(lab)
    a(f'''
    buffer_load_dword v{vT2}, v{vT}, {WS}, s{off_s} offen sc1
    s_waitcnt vmcnt(0)
    v_cmp_ne_u32 vcc, s{sNONCE}, v{vT2}
    s_cbranch_vccz {lab}_ok
    s_cmp_eq_u32 s{sSPINW}, 0
    s_cbranch_scc1 {lab}_ok
    s_sub_u32 s{sSPINW}, s{sSPINW}, 1
    s_sleep {sleep}
    s_branch {lab}
    ''')
    a.label(f'{lab}_ok')
    a('@assume_vm_empty')
wait_flags.n = 0

def p_loop(a):
    a(f's_mov_b32 s{sRND}, 0')
    a.label('P_round')
    a(f'''
    s_mul_i32 s{sA}, s{sRND}, 7
    s_add_u32 s{sA}, s{sA}, s{sXW}
    s_cmp_ge_u32 s{sA}, 24
    s_cbranch_scc1 P_end
    s_cmp_ge_u32 s{sA}, 16
    s_cselect_b32 s{sKIND}, 1, 0
    s_cbranch_scc1 P_isq
    s_lshr_b32 s{sB}, s{sA}, 2
    s_and_b32 s{sC_}, s{sA}, 3
    s_branch P_dec
    ''')
    a.label('P_isq')
    a(f'''
    s_sub_u32 s{sA}, s{sA}, 16
    s_lshr_b32 s{sB}, s{sA}, 1
    s_and_b32 s{sC_}, s{sA}, 1
    ''')
    a.label('P_dec')
    a(f'''
    s_lshl_b32 s{sG}, s{sB}, 2
    s_lshr_b32 s{sT0}, s{sTKT}, 3
    s_add_u32 s{sG}, s{sG}, s{sT0}
    s_lshl_b32 s{sHD}, s{sC_}, 3
    s_and_b32 s{sT0}, s{sTKT}, 7
    s_add_u32 s{sHD}, s{sHD}, s{sT0}
    s_lshl_b32 s{sA}, s{sG}, 7
    ''')
    srd(a, S_X, L.ARG['A_x'], 2097152)
    load_xtile(a, sA)
    a(f'''
    v_lshrrev_b32 v{vT}, 4, v{vL16}
    v_lshrrev_b32 v{vT2}, 4, v{vT}
    v_lshlrev_b32 v{vWA}, 16, v{vT2}
    v_and_b32 v{vT2}, 15, v{vT}
    v_lshl_add_u32 v{vWA}, v{vT2}, 3, v{vWA}
    s_and_b32 s{sB}, s{sWV}, 1
    s_lshr_b32 s{sC_}, s{sWV}, 1
    s_lshl_b32 s{sD}, s{sHD}, 1
    s_add_u32 s{sD}, s{sD}, s{sC_}
    s_cmp_eq_u32 s{sKIND}, 1
    s_cselect_b32 s{sD}, s{sD}, s{sHD}
    s_lshl_b32 s{sWO}, s{sD}, 8
    s_lshl_b32 s{sT0}, s{sB}, 7
    s_add_u32 s{sWO}, s{sWO}, s{sT0}
    s_lshl_b32 s{sDST}, s{sG}, 20
    s_lshl_b32 s{sT0}, s{sD}, 13
    s_add_u32 s{sDST}, s{sDST}, s{sT0}
    ''')
    a(f'''
    s_cmp_eq_u32 s{sKIND}, 1
    s_cbranch_scc1 P_mq
    s_cmp_eq_u32 s{sC_}, 1
    s_cbranch_scc1 P_v
    ''')
    srd(a, S_M, L.ARG['A_Wk'], 4194304)
    a(f's_add_u32 s{sDST}, s{sDST}, {L.KX}')
    a('s_branch P_t')
    a.label('P_mq')
    srd(a, S_M, L.ARG['A_Wq'], 4194304)
    a(f's_add_u32 s{sDST}, s{sDST}, {L.QX}')
    a.label('P_t')
    a(f'''
    s_lshl_b32 s{sT0}, s{sB}, 11
    s_add_u32 s{sDST}, s{sDST}, s{sT0}
    ''')
    iss, cv = w_ncontig(S_M)
    gemm128x64(a, 16, iss, cv, True, pre_wait=xtile_wait)
    epi_kq(a, sDST)
    a('s_branch P_done')
    a.label('P_v')
    a('@assume_drained')
    srd(a, S_M, L.ARG['A_Wv'], 4194304)
    a(f'''
    s_lshl_b32 s{sT0}, s{sB}, 12
    s_add_u32 s{sDST}, s{sDST}, s{sT0}
    s_add_u32 s{sDST}, s{sDST}, {L.VX}
    ''')
    gemm128x64(a, 16, iss, cv, False, pre_wait=xtile_wait)
    epi_v(a, sDST)
    a.label('P_done')
    a(f'''
    s_cmp_lg_u32 s{sRND}, 0
    s_cbranch_scc1 P_hasn
    ''')
    get_nonce(a, 'W_nonce', vT, vT2)
    a.label('P_hasn')
    a(f'''
    s_lshl_b32 s{sFL}, s{sHD}, 6
    s_lshl_b32 s{sT0}, s{sG}, 2
    s_add_u32 s{sFL}, s{sFL}, s{sT0}
    s_lshl_b32 s{sT0}, s{sKIND}, 12
    s_add_u32 s{sFL}, s{sFL}, s{sT0}
    s_add_u32 s{sFL}, s{sFL}, {L.F_KV}
    ''')
    set_flag_wg(a, sFL)
    a(f'''
    s_add_u32 s{sRND}, s{sRND}, 1
    s_branch P_round
    ''')
    a.label('P_end')
    a('@assume_drained')

def a_role(a, nsets):
    attn_setup(a)
    a(f'''
    s_and_b32 s{sHD}, s{sIDX}, 7
    s_lshl_b32 s{sHD}, s{sHD}, 2
    s_add_u32 s{sHD}, s{sHD}, s{sWV}
    s_lshr_b32 s{sSEG}, s{sIDX}, 3
    ''')
    a.label('A_loop')
    a(f'''
    s_lshr_b32 s{sT2}, s{sSEG}, 2
    s_lshl_b32 s{sT2}, s{sT2}, 2
    s_lshl_b32 s{sFL}, s{sHD}, 6
    s_add_u32 s{sFL}, s{sFL}, s{sT2}
    s_add_u32 s{sFL}, s{sFL}, {L.F_KV}
    ''')
    wait_flags(a, sFL, 1)
    a(f'''
    s_lshr_b32 s{sT2}, s{sSEG}, 2
    s_lshl_b32 s{sT2}, s{sT2}, 2
    s_lshr_b32 s{sFL}, s{sHD}, 1
    s_lshl_b32 s{sFL}, s{sFL}, 6
    s_add_u32 s{sFL}, s{sFL}, s{sT2}
    s_add_u32 s{sFL}, s{sFL}, {L.F_Q}
    ''')
    wait_flags(a, sFL, 1)
    attn_loads_pre(a)
    a(f'''
    s_lshl_b32 s{sFL}, s{sSEG}, 7
    s_lshl_b32 s{sT2}, s{sHD}, 2
    s_add_u32 s{sFL}, s{sFL}, s{sT2}
    s_add_u32 s{sFL}, s{sFL}, {L.F_CH}
    ''')
    wait_flags(a, sFL, 1, sleep=2)
    attn_loads_post(a)
    attn_compute(a)
    a(f's_add_u32 s{sFL}, s{sFL}, {L.F_A - L.F_CH}')
    set_flag_wave(a, sFL)
    a(f'''
    s_add_u32 s{sSEG}, s{sSEG}, {nsets}
    s_cmp_lt_u32 s{sSEG}, 64
    s_cbranch_scc1 A_loop
    ''')

def o_role(a, nsets):
    a(f'''
    s_and_b32 s{sCB}, s{sIDX}, 15
    s_lshr_b32 s{sUN}, s{sIDX}, 4
    s_mov_b32 s{sKIND}, 0
    ''')
    oproj_load_weights(a)
    a('s_waitcnt vmcnt(0)')
    tstamp(a, 2)
    a.label('O_loop')
    a('@assume_drained')
    for par in range(2):
        a(f'''
        s_lshr_b32 s{sFL}, s{sUN}, 1
        s_lshl_b32 s{sFL}, s{sFL}, 7
        s_add_u32 s{sFL}, s{sFL}, {L.F_A}
        ''')
        wait_flags(a, sFL, 32, sleep=2)
        oproj_unit_loads(a)
        oproj_unit_compute(a, par, f'OU{par}')
        a(f'''
        s_add_u32 s{sUN}, s{sUN}, {nsets}
        s_cmp_ge_u32 s{sUN}, 128
        s_cbranch_scc1 O_end
        ''')
    a('s_branch O_loop')
    a.label('O_end')
    a('s_waitcnt vmcnt(0)')

def s5_role(a):
    a(f's_mov_b32 s{sA}, s{sIDX}')
    s0_task(a, 'S0')
    a(f'''
    s_lshl_b32 s{sFL}, s{sIDX}, 2
    s_add_u32 s{sFL}, s{sFL}, {L.F_S0}
    ''')
    set_flag_wg(a, sFL)
    a(f's_mov_b32 s{sFL}, {L.F_S0}')
    wait_flags(a, sFL, 32, sleep=2)
    a(f's_lshr_b32 s{sG}, s{sIDX}, 2\ns_and_b32 s{sCB}, s{sIDX}, 3')
    s1_task(a, 'S1')
    tstamp(a, 6)
    a(f'''
    s_lshl_b32 s{sFL}, s{sIDX}, 2
    s_add_u32 s{sFL}, s{sFL}, {L.F_S1}
    ''')
    set_flag_wg(a, sFL)
    a(f'''
    s_lshr_b32 s{sG}, s{sIDX}, 1
    s_and_b32 s{sCB}, s{sIDX}, 1
    ''')
    s5_params(a)
    a(f'''
    s_lshr_b32 s{sFL}, s{sG}, 1
    s_lshl_b32 s{sFL}, s{sFL}, 4
    s_add_u32 s{sFL}, s{sFL}, {L.F_S1}
    ''')
    wait_flags(a, sFL, 4)
    tstamp(a, 7)
    s2_task(a)
    tstamp(a, 8)
    a(f'''
    s_lshl_b32 s{sFL}, s{sIDX}, 2
    s_add_u32 s{sFL}, s{sFL}, {L.F_S2}
    ''')
    set_flag_wg(a, sFL)
    a(f's_mov_b32 s{sFL}, {L.F_S2}')
    wait_flags(a, sFL, 64)
    tstamp(a, 2)
    s3_task(a, 'S3')
    tstamp(a, 9)
    a(f'''
    s_lshl_b32 s{sFL}, s{sIDX}, 2
    s_add_u32 s{sFL}, s{sFL}, {L.F_S3}
    ''')
    set_flag_wg(a, sFL)
    a(f'''
    s_and_b32 s{sT0}, s{sIDX}, 31
    s_cmp_ge_u32 s{sT0}, 16
    s_cbranch_scc1 S5_end
    s_lshr_b32 s{sG}, s{sIDX}, 5
    s_lshl_b32 s{sG}, s{sG}, 3
    s_lshr_b32 s{sT1}, s{sT0}, 1
    s_add_u32 s{sG}, s{sG}, s{sT1}
    s_and_b32 s{sCB}, s{sT0}, 1
    s_lshl_b32 s{sFL}, s{sG}, 4
    s_add_u32 s{sFL}, s{sFL}, {L.F_S3}
    ''')
    wait_flags(a, sFL, 4)
    a(f's_mov_b32 s{sFL}, {L.F_S0 + 128}')
    wait_flags(a, sFL, 32)
    tstamp(a, 10)
    s4_task(a, 'S4')
    if CFGM.get('wb', 0):
        a(f's_cmp_lg_u32 s{sWV}, 0')
        a('s_cbranch_scc1 S5_end')
        a('buffer_wbl2 sc1')
        a('s_waitcnt vmcnt(0)')
    a.label('S5_end')

def build(cfg):
    C.CFG.update(dbg_mems=False, rs_gap=1, rs_delay=1, flags=1)
    C.CFG.update(cfg)
    a = Asm()
    emit_elect(a)
    if PROF['on']:
        a(f'''
        s_lshl_b32 s99, s2, 6
        s_add_u32 s99, s99, {L.FLAGS + 0x50000}
        v_mov_b32 v4, s3
        v_mov_b32 v5, 0
        buffer_store_dword v4, v5, {WS}, s99 offen offset:16
        v_mov_b32 v4, s{sH}
        buffer_store_dword v4, v5, {WS}, s99 offen offset:20
        ''')
    a(f'''
    s_cmp_lg_u32 s3, 0
    s_cbranch_scc1 W_start
    s_cmp_ge_u32 s{sH}, 32
    s_cbranch_scc1 L_end
    ''')
    C.HOOK['tstamp'] = tstamp
    tstamp(a, 0, (24, 25))
    a(f'v_mov_b32 v24, s3') if False else None
    C.emit_chain(a)
    tstamp(a, 3, (24, 25))
    a('s_branch L_end')
    a.label('W_start')
    a('@assume_drained')
    a(f'''
    s_sub_u32 s{sXW}, s3, 1
    s_mov_b32 s{sSPINW}, 0x100000
    s_cmp_ge_u32 s{sTKT}, 32
    s_cbranch_scc1 L_end
    ''')
    srd(a, S_OUT, L.ARG['out'], 2048*1024*4)
    setup_lane(a)
    tstamp(a, 0)
    p_loop(a)
    tstamp(a, 1)
    a(f'''
    s_cmp_eq_u32 s{sXW}, 0
    s_cbranch_scc1 R_a
    s_cmp_eq_u32 s{sXW}, 3
    s_cbranch_scc1 R_s5
    s_cmp_eq_u32 s{sXW}, 4
    s_cbranch_scc1 R_s5
    s_cmp_ge_u32 s{sXW}, 5
    s_cselect_b32 s{sT0}, 3, 1
    s_sub_u32 s{sT0}, s{sXW}, s{sT0}
    s_lshl_b32 s{sIDX}, s{sT0}, 5
    s_add_u32 s{sIDX}, s{sIDX}, s{sTKT}
    ''')
    if not cfg.get('no_o'): o_role(a, 8)
    tstamp(a, 3)
    a('s_branch L_end')
    a.label('R_a')
    a('@assume_drained')
    a(f's_mov_b32 s{sIDX}, s{sTKT}')
    if not cfg.get('no_a'): a_role(a, 4)
    tstamp(a, 3)
    a('s_branch L_end')
    a.label('R_s5')
    a('@assume_drained')
    a(f'''
    s_sub_u32 s{sT0}, s{sXW}, 3
    s_lshl_b32 s{sIDX}, s{sT0}, 5
    s_add_u32 s{sIDX}, s{sIDX}, s{sTKT}
    ''')
    if not cfg.get('no_s5'): s5_role(a)
    tstamp(a, 3)
    a.label('L_end')
    a('s_endpgm')
    body = a.finalize(compact=True)
    hdr = open('concat_heads__memory_aug_recurrent_mem_tr__ssm_conv_s5__prompt.s.ref').read().split('; Override launch geometry')[0]
    return hdr + HEADER.format(name=NAME) + body + FOOTER.format(name=NAME), a.count()

if __name__ == '__main__':
    cfg = {}
    for arg in sys.argv[1:]:
        k, v = arg.split('=')
        if k == 'only': cfg[k] = v.split(',')
        else: cfg[k] = int(v)
    PROF['on'] = bool(cfg.get('prof'))
    CFGM.update(cfg)
    SLEEP['mul'] = cfg.get('sleepmul', 1)
    txt, n = build(cfg)
    open('main.s', 'w').write(txt)
    print('instructions', n, 'bytes', len(txt), ','.join(C.STAMPS))
```
